```python
import torch

def _softmax(x, axis=-1):
    return torch.softmax(x, dim=axis)
def _gelu(x):
    return torch.nn.functional.gelu(x, approximate="tanh")
def _silu(x):
    return torch.nn.functional.silu(x)
def _sigmoid(x):
    return torch.sigmoid(x)
def _layernorm(x, axis=-1, eps=1e-5):
    m = x.mean(dim=axis, keepdim=True)
    v = x.var(dim=axis, keepdim=True, unbiased=False)
    return (x - m) / torch.sqrt(v + eps)
def _scatter_add(tgt, idx, src, axis=0):
    return tgt.clone().index_add_(axis, idx, src)
def _segment_sum(src, seg, n):
    out = torch.zeros((n,) + src.shape[1:], dtype=src.dtype)
    return out.index_add_(0, seg, src)
def _pad(x, pw):
    flat = tuple(v for pair in reversed(pw) for v in pair)
    return torch.nn.functional.pad(x, flat)

kernel_name = 'parallel_sum__linear_attn_block__mixer_channel_mlp__prompt'

def setup_inputs():

    _w = (lambda a: (lambda t: t.to(torch.bfloat16) if t.is_floating_point() else t)(torch.as_tensor(a)))
    def _A_setup():
        B, S, D = 1, 2048, 640
        return {
            "x": _w((lambda *s: torch.randn(*s, dtype=torch.bfloat16) * 0.05)(B, S, D)),
            "wqkv": _w((lambda *s: torch.randn(*s, dtype=torch.bfloat16) * 0.1)(D, 3 * D)),
            "wo": _w((lambda *s: torch.randn(*s, dtype=torch.bfloat16) * 0.05)(D, D)),
        }
    _A_in = _A_setup()

    def _B_setup():
        B, S, D, F = 1, 2048, 640, 1536
        return {
            "x": _w((lambda *s: torch.randn(*s, dtype=torch.bfloat16) * 0.05)(B, S, D)),
            "w1": _w((lambda *s: torch.randn(*s, dtype=torch.bfloat16) * 1.6)(D, F) * (D ** -0.5)),
            "b1": _w((lambda *s: torch.randn(*s, dtype=torch.bfloat16) * 0.8)(F)),
            "w2": _w((lambda *s: torch.randn(*s, dtype=torch.bfloat16) * 0.05)(F, D) * (F ** -0.5)),
            "b2": _w((lambda *s: torch.randn(*s, dtype=torch.bfloat16) * 0.05)(D)),
        }
    _B_in = _B_setup()

    return {
        "A_x": _A_in["x"],
        "A_wqkv": _A_in["wqkv"],
        "A_wo": _A_in["wo"],
        "B_x": _B_in["x"],
        "B_w1": _B_in["w1"],
        "B_b1": _B_in["b1"],
        "B_w2": _B_in["w2"],
        "B_b2": _B_in["b2"],
    }

def reference(A_x, A_wqkv, A_wo, B_x, B_w1, B_b1, B_w2, B_b2):
    def _A_ref(x, wqkv, wo):
        B, S, D = x.shape
        H = 32; Dh = D // H
        qkv = (lambda x, *d: x.permute(*d))((x @ wqkv).reshape(B, S, 3, H, Dh), 2, 0, 3, 1, 4)
        q, k, v = qkv[0], qkv[1], qkv[2]
        phi = lambda t: torch.where(t > 0, t + 1, torch.exp(t)) + 1e-6
        pq, pk = phi(q), phi(k)
        kv = torch.einsum("bhsd,bhse->bhde", pk, v)
        z = torch.einsum("bhsd->bhd", pk)
        num = torch.einsum("bhqd,bhde->bhqe", pq, kv)
        den = torch.einsum("bhqd,bhd->bhq", pq, z)[..., None] + 1e-6
        o = num / den
        return (lambda x, *d: x.permute(*d))(o, 0, 2, 1, 3).reshape(B, S, D) @ wo

    def _B_ref(x, w1, b1, w2, b2):
        y = _layernorm(x, axis=-1)
        h = _gelu(torch.einsum("bsd,df->bsf", y, w1) + b1)
        return torch.einsum("bsf,fd->bsd", h, w2) + b2

    x = A_x
    xn = _layernorm(x, axis=-1)
    return x + _A_ref(xn, A_wqkv, A_wo) + _B_ref(xn, B_w1, B_b1, B_w2, B_b2)
```

```python
import re

TRANS = ("v_exp_f32","v_log_f32","v_rcp_f32","v_rsq_f32","v_sqrt_f32","v_sin_f32","v_cos_f32","v_rcp_iflag_f32")

def parse_regs(tok):
    tok = tok.strip()
    if tok.startswith('-'): tok = tok[1:]
    m = re.match(r'^abs\((.*)\)$', tok)
    if m: tok = m.group(1)
    m = re.match(r'^([vsa])\[(\d+):(\d+)\]$', tok)
    if m:
        return {(m.group(1), i) for i in range(int(m.group(2)), int(m.group(3))+1)}
    m = re.match(r'^([vsa])(\d+)$', tok)
    if m:
        return {(m.group(1), int(m.group(2)))}
    if tok == 'vcc': return {('vcc',0)}
    if tok == 'm0': return {('m0',0)}
    if tok == 'exec': return {('exec',0)}
    return set()

class Ins:
    def __init__(self, text):
        self.text = text
        t = text.split(';')[0].strip()
        parts = t.split(None, 1)
        self.op = parts[0]
        rest = parts[1] if len(parts) > 1 else ''
        ops = [o.strip() for o in rest.split(',')] if rest else []
        self.mods = ''
        if ops:
            last = ops[-1].split()
            if last:
                ops[-1] = last[0]
                self.mods = ' '.join(last[1:])
        self.ops = ops
        op = self.op
        self.kind = 'other'
        self.dst = set(); self.src = set()
        self.states = 1
        self.isC = set()
        if op == 's_nop':
            self.kind = 'nop'; self.states = int(ops[0], 0) + 1
        elif op.startswith('v_mfma'):
            self.kind = 'mfma'
            self.dst = parse_regs(ops[0]); self.srcA = parse_regs(ops[1]); self.srcB = parse_regs(ops[2]); self.srcC = parse_regs(ops[3])
            self.src = self.srcA | self.srcB | self.srcC
        elif op.startswith('v_'):
            self.kind = 'valu'
            if op.startswith('v_permlane') and 'swap' in op:
                self.dst = parse_regs(ops[0]) | parse_regs(ops[1]); self.src = set(self.dst)
            elif op.startswith('v_cmp'):
                self.dst = parse_regs(ops[0])
                for o in ops[1:]: self.src |= parse_regs(o)
            elif '_co_' in op:
                self.dst = parse_regs(ops[0]) | parse_regs(ops[1])
                for o in ops[2:]: self.src |= parse_regs(o)
            else:
                self.dst = parse_regs(ops[0])
                for o in ops[1:]: self.src |= parse_regs(o)
                if op.startswith('v_fmac') or op.startswith('v_pk_fmac'): self.src |= self.dst
            self.trans = any(op.startswith(x) for x in TRANS)
            self.dpp = ('row_' in self.mods) or ('quad_perm' in self.mods) or op.endswith('_dpp')
            self.perm = op.startswith('v_permlane')
            self.rdlane = op.startswith('v_readfirstlane') or op.startswith('v_readlane')
        elif op.startswith('buffer_') or op.startswith('global_'):
            self.kind = 'vmem'
            self.lds = ' lds' in (' ' + self.mods)
            self.wide = ('store' in op) and ('x4' in op or 'x3' in op)
            if 'store' in op or 'atomic' in op or op.startswith('buffer_inv') or op.startswith('buffer_wbl2'):
                for o in ops: self.src |= parse_regs(o)
                self.data = parse_regs(ops[0]) if (op.startswith('buffer_') and ops) else (parse_regs(ops[1]) if len(ops)>1 else set())
                if 'atomic' in op and 'sc0' in self.mods: self.dst = parse_regs(ops[0])
            elif self.lds:
                for o in ops: self.src |= parse_regs(o)
                self.src |= {('m0',0)}
            else:
                self.dst = parse_regs(ops[0])
                for o in ops[1:]: self.src |= parse_regs(o)
        elif op.startswith('ds_'):
            self.kind = 'ds'
            if 'read' in op or 'permute' in op or 'swizzle' in op or 'rtn' in op:
                self.dst = parse_regs(ops[0])
                for o in ops[1:]: self.src |= parse_regs(o)
            else:
                for o in ops: self.src |= parse_regs(o)
        elif op.startswith('s_'):
            self.kind = 'salu'
            if op in ('s_waitcnt','s_barrier','s_endpgm','s_setprio','s_sleep') or op.startswith('s_cbranch') or op == 's_branch':
                pass
            elif op.startswith('s_cmp'):
                for o in ops: self.src |= parse_regs(o)
            else:
                self.dst = parse_regs(ops[0])
                for o in ops[1:]: self.src |= parse_regs(o)

def need(prev, cur):
    n = 0
    pv = {r for r in prev.dst if r[0] in 'va'}
    ps = {r for r in prev.dst if r[0] in ('s','vcc')}
    if prev.kind == 'valu':
        if cur.kind == 'mfma' and (pv & cur.src): n = max(n, 2)
        if cur.kind == 'valu':
            if prev.trans and not cur.trans and (pv & cur.src): n = max(n, 1)
            if (cur.dpp or cur.perm) and (pv & cur.src): n = max(n, 2)
            if cur.rdlane and (pv & cur.src): n = max(n, 1)
            if ps & cur.src: n = max(n, 2)
        if cur.kind == 'vmem' and (ps & cur.src): n = max(n, 5)
        if cur.kind == 'salu' and (ps & cur.src): n = max(n, 1)
    if prev.kind == 'mfma':
        P = 8 if '32x32' in prev.op else 4
        tbl = {4:(6,8,3), 8:(10,12,7)}[P]
        if cur.kind == 'mfma':
            if pv & (cur.srcA | cur.srcB): n = max(n, tbl[1])
            if (pv & cur.srcC) and (pv != cur.srcC): n = max(n, tbl[0])
        elif cur.kind in ('valu','vmem','ds'):
            if pv & (cur.src | cur.dst): n = max(n, tbl[1])
        if cur.kind == 'valu' and (prev.srcC & cur.dst): n = max(n, tbl[2])
    if prev.kind == 'salu':
        if ('m0',0) in prev.dst and cur.kind == 'vmem' and cur.lds: n = max(n, 1)
    if prev.kind == 'vmem' and getattr(prev,'wide',False):
        if cur.kind == 'valu' and (prev.data & cur.dst): n = max(n, 2)
        elif (prev.data & cur.dst): n = max(n, 1)
    return n

class Asm:
    def __init__(self):
        self.lines = []
        self.hist = []
        self.maxv = 0
    def raw(self, s):
        self.lines.append(s)
    def label(self, l):
        self.lines.append(l + ':')
        self.hist = []
    def e(self, text):
        ins = Ins(text)
        for r in ins.dst | ins.src:
            if r[0] == 'v': self.maxv = max(self.maxv, r[1])
        pad = 0
        dist = 0
        for prev in reversed(self.hist):
            nd = need(prev, ins)
            if nd > dist: pad = max(pad, nd - dist)
            dist += prev.states
            if dist > 14: break
        while pad > 0:
            k = min(pad, 16)
            nop = Ins('s_nop %d' % (k-1))
            self.lines.append('    s_nop %d' % (k-1))
            self.hist.append(nop)
            pad -= k
        self.lines.append('    ' + text)
        self.hist.append(ins)
        if len(self.hist) > 40: self.hist = self.hist[-40:]
    def c(self, s):
        self.lines.append('    ; ' + s)
    def text(self):
        return '\n'.join(self.lines) + '\n'
```

```python
import sys
sys.path.insert(0, 'work')
from asmlib import Asm

NAME = 'parallel_sum__linear_attn_block__mixer_channel_mlp__prompt'
XN, Y, PQ, H, KVP, PQS, MM = 0x0, 0x280000, 0x500000, 0x780000, 0xD80000, 0x1000000, 0x1280000
SZ_ACT = 2048*640*2
SZ_H = 2048*1536*2
SZ_KVP = 128*18432
SZ_MM = 640*640*2
LOG2E = 1.4426950408889634

import struct
def f2u(x): return struct.unpack('<I', struct.pack('<f', x))[0]
def hx(x): return '0x%08x' % (x & 0xffffffff)

def srd(a, d, base_lo, base_hi, off, size):
    if off:
        a.e(f's_add_u32 s{d}, s{base_lo}, {hx(off)}')
        a.e(f's_addc_u32 s{d+1}, s{base_hi}, 0')
    else:
        if d != base_lo:
            a.e(f's_mov_b32 s{d}, s{base_lo}')
            a.e(f's_mov_b32 s{d+1}, s{base_hi}')
    a.e(f's_mov_b32 s{d+2}, {hx(size)}')
    a.e(f's_mov_b32 s{d+3}, 0x00020000')

def kernel_head(a, name):
    a.raw(f'.globl {name}')
    a.raw('.p2align 8')
    a.raw(f'.type {name},@function')
    a.label(name)

def kernel_desc(name, vgpr, sgpr=102):
    vg = (vgpr + 7)//8*8
    return f'''.amdhsa_kernel {name}
  .amdhsa_next_free_vgpr {vg}
  .amdhsa_next_free_sgpr {sgpr}
  .amdhsa_accum_offset {vg}
  .amdhsa_group_segment_fixed_size 0
  .amdhsa_kernarg_size 88
  .amdhsa_user_sgpr_count 2
  .amdhsa_user_sgpr_kernarg_segment_ptr 1
  .amdhsa_system_sgpr_workgroup_id_x 1
  .amdhsa_float_denorm_mode_32 3
.end_amdhsa_kernel
'''

def allreduce32(a, x, t):
    for r in (8,4,2,1):
        a.e(f'v_add_f32_dpp v{x}, v{x}, v{x} row_ror:{r} row_mask:0xf bank_mask:0xf')
    a.e(f'v_mov_b32 v{t}, v{x}')
    a.e(f'v_permlane16_swap_b32 v{x}, v{t}')
    a.e(f'v_add_f32 v{x}, v{x}, v{t}')

def rnd1(a, x):
    a.e(f'v_cvt_pk_bf16_f32 v{x}, v{x}, v{x}')
    a.e(f'v_lshlrev_b32 v{x}, 16, v{x}')

def ln_pass(a, X, P, S, T, U):
    a.e(f'v_add_f32 v{S}, v{X}, v{X+1}')
    a.e(f'v_add_f32 v{T}, v{X+2}, v{X+3}')
    for i in range(4, 20, 2):
        a.e(f'v_add_f32 v{S}, v{S}, v{X+i}')
        a.e(f'v_add_f32 v{T}, v{T}, v{X+i+1}')
    a.e(f'v_add_f32 v{S}, v{S}, v{T}')
    allreduce32(a, S, T)
    a.e(f'v_mul_f32 v{S}, {hx(f2u(1.0/640))}, v{S}')
    a.e(f'v_sub_f32 v{P}, v{X}, v{S}')
    a.e(f'v_mul_f32 v{T}, v{P}, v{P}')
    a.e(f'v_sub_f32 v{P+1}, v{X+1}, v{S}')
    a.e(f'v_mul_f32 v{U}, v{P+1}, v{P+1}')
    for i in range(2, 20, 2):
        a.e(f'v_sub_f32 v{P}, v{X+i}, v{S}')
        a.e(f'v_fmac_f32 v{T}, v{P}, v{P}')
        a.e(f'v_sub_f32 v{P+1}, v{X+i+1}, v{S}')
        a.e(f'v_fmac_f32 v{U}, v{P+1}, v{P+1}')
    a.e(f'v_add_f32 v{T}, v{T}, v{U}')
    allreduce32(a, T, U)
    a.e(f'v_mul_f32 v{T}, {hx(f2u(1.0/640))}, v{T}')
    rnd1(a, S)
    rnd1(a, T)
    a.e(f'v_add_f32 v{T}, {hx(f2u(1e-5))}, v{T}')
    rnd1(a, T)
    a.e(f'v_sqrt_f32 v{T}, v{T}')
    rnd1(a, T)
    a.e(f'v_rcp_f32 v{T}, v{T}')
    for i in range(0, 20, 2):
        p = P + i//2
        a.e(f'v_sub_f32 v{X+i}, v{X+i}, v{S}')
        a.e(f'v_sub_f32 v{X+i+1}, v{X+i+1}, v{S}')
        a.e(f'v_cvt_pk_bf16_f32 v{p}, v{X+i}, v{X+i+1}')
        a.e(f'v_lshlrev_b32 v{X+i}, 16, v{p}')
        a.e(f'v_and_b32 v{X+i+1}, 0xffff0000, v{p}')
        a.e(f'v_mul_f32 v{X+i}, v{X+i}, v{T}')
        a.e(f'v_mul_f32 v{X+i+1}, v{X+i+1}, v{T}')
        a.e(f'v_cvt_pk_bf16_f32 v{p}, v{X+i}, v{X+i+1}')
        a.e(f'v_lshlrev_b32 v{X+i}, 16, v{p}')
        a.e(f'v_and_b32 v{X+i+1}, 0xffff0000, v{p}')

def gen_k0():
    a = Asm()
    kernel_head(a, 'k0_kernel')
    a.e('s_cmp_ge_u32 s2, 256')
    a.e('s_cbranch_scc1 K0_END')
    a.e('s_load_dwordx2 s[4:5], s[0:1], 0')
    a.e('s_load_dwordx2 s[16:17], s[0:1], 80')
    a.e('v_lshrrev_b32 v1, 5, v0')
    a.e('v_and_b32 v2, 31, v0')
    a.e('s_lshl_b32 s3, s2, 3')
    a.e('v_add_u32 v1, s3, v1')
    a.e('v_mul_u32_u24 v1, 1280, v1')
    a.e('v_lshl_add_u32 v1, v2, 3, v1')
    a.e('s_waitcnt lgkmcnt(0)')
    srd(a, 4, 4, 5, 0, SZ_ACT)
    srd(a, 8, 16, 17, XN, SZ_ACT)
    srd(a, 12, 16, 17, Y, SZ_ACT)
    for i in range(5):
        a.e(f'buffer_load_dwordx2 v[{4+2*i}:{5+2*i}], v1, s[4:7], 0 offen offset:{256*i}')
    a.e('s_waitcnt vmcnt(0)')
    X = 20
    for i in range(10):
        a.e(f'v_lshlrev_b32 v{X+2*i}, 16, v{4+i}')
        a.e(f'v_and_b32 v{X+2*i+1}, 0xffff0000, v{4+i}')
    ln_pass(a, X, 4, 14, 15, 16)
    for i in range(5):
        a.e(f'buffer_store_dwordx2 v[{4+2*i}:{5+2*i}], v1, s[8:11], 0 offen offset:{256*i}')
    ln_pass(a, X, 40, 14, 15, 16)
    for i in range(5):
        a.e(f'buffer_store_dwordx2 v[{40+2*i}:{41+2*i}], v1, s[12:15], 0 offen offset:{256*i}')
    a.label('K0_END')
    a.e('s_endpgm')
    return a, 52

HEADER = open('cdna_kernels/%s.s.ref' % NAME).read().split('; Override launch')[0]

def build(kernels, launches, path):
    out = HEADER
    for l in launches: out += l + '\n'
    out += '.amdgcn_target "amdgcn-amd-amdhsa--gfx950"\n.text\n'
    descs = ''
    for name, (a, vg) in kernels:
        out += a.text()
        descs += kernel_desc(name, vg)
    out += '.section .rodata,"a"\n.p2align 6\n' + descs.replace('.end_amdhsa_kernel\n', '.end_amdhsa_kernel\n.p2align 6\n')
    open(path, 'w').write(out)

if __name__ == '__main__':
    ks = [('k0_kernel', gen_k0())]
    ls = ['; @launch kernel=k0_kernel grid=(256,1,1) block=(256,1,1) lds=0']
    build(ks, ls, 'k.s')
```

```python
from gen import *

def lane_decomp(a):
    a.e('v_and_b32 v1, 63, v0')
    a.e('v_lshrrev_b32 v2, 6, v0')
    a.e('v_readfirstlane_b32 s20, v2')
    a.e('v_lshrrev_b32 v2, 4, v1')
    a.e('v_and_b32 v3, 15, v1')
    a.e('v_lshrrev_b32 v4, 2, v3')
    a.e('v_and_b32 v5, 3, v3')

def unpack(a, lo, hi, p):
    a.e(f'v_lshlrev_b32 v{lo}, 16, v{p}')
    a.e(f'v_and_b32 v{hi}, 0xffff0000, v{p}')

def phi_pair(a, x0, x1, p, t0, t1):
    a.e(f'v_cvt_pk_bf16_f32 v{p}, v{x0}, v{x1}')
    unpack(a, x0, x1, p)
    for x, t in ((x0,t0),(x1,t1)):
        a.e(f'v_min_f32 v{t}, 0, v{x}')
        a.e(f'v_mul_f32 v{t}, {hx(f2u(LOG2E))}, v{t}')
        a.e(f'v_exp_f32 v{t}, v{t}')
        a.e(f'v_max_f32 v{x}, 0, v{x}')
    a.e(f'v_add_f32 v{x0}, v{x0}, v{t0}')
    a.e(f'v_add_f32 v{x1}, v{x1}, v{t1}')
    a.e(f'v_cvt_pk_bf16_f32 v{p}, v{x0}, v{x1}')
    unpack(a, x0, x1, p)
    a.e(f'v_add_f32 v{x0}, {hx(f2u(1e-6))}, v{x0}')
    a.e(f'v_add_f32 v{x1}, {hx(f2u(1e-6))}, v{x1}')
    a.e(f'v_cvt_pk_bf16_f32 v{p}, v{x0}, v{x1}')

C1 = -2.0*LOG2E*0.7978845608028654
C2 = C1*0.044715
def gelu_pair(a, x0, x1, b, p, t0, t1, sC1, sC2):
    a.e(f'v_cvt_pk_bf16_f32 v{p}, v{x0}, v{x1}')
    unpack(a, x0, x1, p)
    unpack(a, t0, t1, b)
    a.e(f'v_add_f32 v{x0}, v{x0}, v{t0}')
    a.e(f'v_add_f32 v{x1}, v{x1}, v{t1}')
    a.e(f'v_cvt_pk_bf16_f32 v{p}, v{x0}, v{x1}')
    unpack(a, x0, x1, p)
    for x, t in ((x0,t0),(x1,t1)):
        a.e(f'v_mul_f32 v{t}, v{x}, v{x}')
        a.e(f'v_mov_b32 v{p}, s{sC1}')
        a.e(f'v_fma_f32 v{t}, v{t}, s{sC2}, v{p}')
        a.e(f'v_mul_f32 v{t}, v{t}, v{x}')
        a.e(f'v_exp_f32 v{t}, v{t}')
    for x, t in ((x0,t0),(x1,t1)):
        a.e(f'v_add_f32 v{t}, 1.0, v{t}')
        a.e(f'v_rcp_f32 v{t}, v{t}')
    a.e(f'v_mul_f32 v{x0}, v{x0}, v{t0}')
    a.e(f'v_mul_f32 v{x1}, v{x1}, v{t1}')
    a.e(f'v_cvt_pk_bf16_f32 v{p}, v{x0}, v{x1}')

ABUF, BF, ACC, B1R = 32, 80, 112, 208
KV_PAIRS = [(0,0),(0,1),(1,0),(1,1),(1,2),(2,1),(2,2),(2,3),(3,2),(3,3),(3,4),(4,3),(4,4)]

def k1_type(a, typ):
    NT = 12 if typ == 'H' else 10
    ldb = 3072 if typ == 'H' else 3840
    RB = 32*NT; SB = 64*RB; ND = NT//2
    if typ == 'H':
        srd(a, 4, 24, 25, Y, SZ_ACT)
        srd(a, 8, 28, 29, 0, 640*1536*2)
        srd(a, 12, 24, 25, H, SZ_H)
        srd(a, 16, 30, 31, 0, 1536*2)
        a.e('s_mul_i32 s35, s22, 384')
    else:
        srd(a, 4, 24, 25, XN, SZ_ACT)
        srd(a, 8, 26, 27, 0, 640*1920*2)
        if typ == 'Q':
            srd(a, 12, 24, 25, PQ, SZ_ACT)
            a.e('s_mul_i32 s35, s22, 320')
        else:
            srd(a, 12, 24, 25, KVP, SZ_KVP)
            a.e('s_mul_i32 s35, s22, 160')
            a.e('s_add_u32 s35, s35, 1280')
    a.e('s_lshl_b32 s23, s21, 7')
    a.e('s_lshl_b32 s36, s20, 5')
    a.e('s_add_u32 s23, s23, s36')
    a.e('v_add_u32 v6, s23, v3')
    a.e('v_mul_u32_u24 v6, 1280, v6')
    a.e('v_lshl_add_u32 v6, v2, 5, v6')
    a.e('v_add_u32 v7, 20480, v6')
    if typ == 'H':
        a.e('v_lshlrev_b32 v22, 3, v2')
        a.e('v_add_u32 v22, s35, v22')
        for t in range(NT):
            a.e(f'buffer_load_dwordx2 v[{B1R+2*t}:{B1R+2*t+1}], v22, s[16:19], 0 offen offset:{32*t}')
    a.e(f's_mul_i32 s36, s20, {ND*64}')
    a.e(f's_mul_i32 s34, s20, {ND*1024}')
    magic = 52429 if NT == 10 else 43691
    for i in range(ND):
        a.e(f'v_add_u32 v22, s36, v1')
        if i: a.e(f'v_add_u32 v22, {64*i}, v22')
        a.e(f'v_mul_u32_u24 v23, {magic}, v22')
        a.e('v_lshrrev_b32 v23, 20, v23')
        a.e(f'v_mul_u32_u24 v24, {2*NT}, v23')
        a.e('v_sub_u32 v24, v22, v24')
        a.e('v_lshrrev_b32 v25, 1, v24')
        a.e('v_and_b32 v24, 1, v24')
        a.e('v_bfe_u32 v26, v23, 4, 1')
        if NT == 12:
            a.e('v_bfe_u32 v27, v23, 1, 1')
            a.e('v_lshl_or_b32 v26, v26, 1, v27')
        a.e('v_xor_b32 v25, v25, v26')
        a.e(f'v_mul_u32_u24 v{8+i}, {ldb}, v23')
        a.e(f'v_lshl_add_u32 v{8+i}, v25, 5, v{8+i}')
        a.e(f'v_lshl_add_u32 v{8+i}, v24, 4, v{8+i}')
        a.e(f'v_add_u32 v{8+i}, s35, v{8+i}')
        if typ == 'KV':
            a.e('v_add_u32 v25, 3, v25')
            a.e('v_lshrrev_b32 v25, 3, v25')
            a.e('v_mul_u32_u24 v25, 1120, v25')
            a.e(f'v_add_u32 v{8+i}, v25, v{8+i}')
    a.e('v_lshl_add_u32 v22, v2, 4, v4')
    a.e(f'v_mul_u32_u24 v22, {RB}, v22')
    a.e('v_lshl_add_u32 v22, v5, 3, v22')
    if NT == 10:
        a.e('v_and_b32 v23, 1, v2')
        a.e('v_lshlrev_b32 v23, 5, v23')
        a.e('v_add_u32 v14, v22, v23')
        a.e('v_sub_u32 v15, v22, v23')
        nb = 2
    else:
        a.e('v_and_b32 v23, 1, v2')
        a.e('v_lshrrev_b32 v24, 1, v4')
        a.e('v_lshl_or_b32 v23, v23, 1, v24')
        for m in range(4):
            a.e(f'v_xor_b32 v24, {m}, v23')
            a.e(f'v_subrev_u32 v24, {m}, v24')
            a.e(f'v_lshl_add_u32 v{14+m}, v24, 5, v22')
        nb = 4
    def issue_A(ks):
        b = ABUF + (ks % 3)*16
        for rt in range(2):
            for kh in range(2):
                r0 = b + (rt*2+kh)*4
                a.e(f'buffer_load_dwordx4 v[{r0}:{r0+3}], v{6+rt}, s[4:7], 0 offen offset:{ks*128+kh*16}')
    def issue_B(ks):
        st = ks % 3
        a.e(f's_mov_b32 s33, {ks*64*ldb}')
        for i in range(ND):
            a.e(f's_add_u32 m0, s34, {st*SB + i*1024}')
            a.e(f'buffer_load_dwordx4 v{8+i}, s[8:11], s33 offen lds')
    def rd(ks, t):
        st = ks % 3; bb = BF + (t % 4)*8
        for hq in range(4):
            a.e(f'ds_read_b64_tr_b16 v[{bb+2*hq}:{bb+2*hq+1}], v{14 + (t % nb)} offset:{st*SB + hq*4*RB + 32*t}')
    issue_A(0); issue_B(0); issue_A(1); issue_B(1)
    for ks in range(10):
        a.e(f's_waitcnt vmcnt({(4+ND) if ks+1 < 10 else 0})')
        a.e('s_barrier')
        if ks+2 < 10:
            issue_A(ks+2); issue_B(ks+2)
        rd(ks, 0); rd(ks, 1); rd(ks, 2)
        ab = ABUF + (ks % 3)*16
        for t in range(NT):
            if t+3 < NT: rd(ks, t+3)
            infl = min(NT-1, t+3) - t
            a.e(f's_waitcnt lgkmcnt({4*infl})')
            bb = BF + (t % 4)*8
            for kh in range(2):
                for rt in range(2):
                    d = ACC + (rt*NT + t)*4
                    A_ = f'v[{ab+(rt*2+kh)*4}:{ab+(rt*2+kh)*4+3}]'
                    B_ = f'v[{bb+kh*4}:{bb+kh*4+3}]'
                    C_ = '0' if (ks == 0 and kh == 0) else f'v[{d}:{d+3}]'
                    if typ == 'KV':
                        a.e(f'v_mfma_f32_16x16x32_bf16 v[{d}:{d+3}], {A_}, {B_}, {C_}')
                    else:
                        a.e(f'v_mfma_f32_16x16x32_bf16 v[{d}:{d+3}], {B_}, {A_}, {C_}')
    if typ in ('Q', 'H'):
        ldo = 1280 if typ == 'Q' else 3072
        a.e('v_add_u32 v22, s23, v3')
        a.e(f'v_mul_u32_u24 v22, {ldo}, v22')
        a.e('v_lshl_add_u32 v22, v2, 3, v22')
        a.e('v_add_u32 v22, s35, v22')
        a.e(f'v_add_u32 v23, {16*ldo}, v22')
        if typ == 'H':
            a.e(f's_mov_b32 s36, {hx(f2u(C1))}')
            a.e(f's_mov_b32 s37, {hx(f2u(C2))}')
        for rt in range(2):
            for t in range(NT):
                d = ACC + (rt*NT + t)*4
                o = ABUF + ((rt*NT+t) % 8)*2
                if typ == 'Q':
                    phi_pair(a, d, d+1, o, 24, 25)
                    phi_pair(a, d+2, d+3, o+1, 26, 27)
                else:
                    gelu_pair(a, d, d+1, B1R+2*t, o, 24, 25, 36, 37)
                    gelu_pair(a, d+2, d+3, B1R+2*t+1, o+1, 26, 27, 36, 37)
                a.e(f'buffer_store_dwordx2 v[{o}:{o+1}], v{22+rt}, s[12:15], 0 offen offset:{32*t}')
    else:
        OP = 32
        for t in range(10):
            for rt in range(2):
                d = ACC + (rt*NT + t)*4
                for hf in range(2):
                    p = OP + 4*t + rt*2 + hf
                    if t < 5:
                        phi_pair(a, d+2*hf, d+2*hf+1, p, 24+2*hf, 25+2*hf)
                    else:
                        a.e(f'v_cvt_pk_bf16_f32 v{p}, v{d+2*hf}, v{d+2*hf+1}')
        for i in range(4):
            a.e(f'v_mov_b32 v{72+i}, 0x3f803f80')
        KA = ACC
        for n, (i, j) in enumerate(KV_PAIRS):
            a.e(f'v_mfma_f32_16x16x32_bf16 v[{KA+4*n}:{KA+4*n+3}], v[{OP+4*i}:{OP+4*i+3}], v[{OP+20+4*j}:{OP+20+4*j+3}], 0')
        for i in range(5):
            n = 13+i
            a.e(f'v_mfma_f32_16x16x32_bf16 v[{KA+4*n}:{KA+4*n+3}], v[{OP+4*i}:{OP+4*i+3}], v[72:75], 0')
        a.e('s_barrier')
        a.e('s_mul_i32 s36, s20, 18432')
        a.e('v_lshlrev_b32 v22, 4, v1')
        a.e('v_add_u32 v23, s36, v22')
        for n in range(18):
            a.e(f'ds_write_b128 v23, v[{KA+4*n}:{KA+4*n+3}] offset:{1024*n}')
        a.e('s_waitcnt lgkmcnt(0)')
        a.e('s_barrier')
        a.e('s_lshl_b32 s36, s20, 10')
        a.e('v_add_u32 v23, s36, v22')
        a.e('s_lshl_b32 s37, s22, 4')
        a.e('s_add_u32 s37, s37, s21')
        a.e('s_mul_i32 s37, s37, 18432')
        a.e('s_add_u32 s37, s37, s36')
        a.e('v_add_u32 v24, s37, v22')
        a.e('v_add_u32 v25, 55296, v23')
        for i in range(5):
            if i == 4:
                a.e('s_cmp_ge_u32 s20, 2')
                a.e('s_cbranch_scc1 K1_END')
            for wv in range(4):
                if wv < 3: a.e(f'ds_read_b128 v[{32+4*wv}:{35+4*wv}], v23 offset:{wv*18432 + i*4096}')
                else: a.e(f'ds_read_b128 v[{32+4*wv}:{35+4*wv}], v25 offset:{i*4096}')
            a.e('s_waitcnt lgkmcnt(0)')
            for q in range(4):
                a.e(f'v_add_f32 v{32+q}, v{32+q}, v{36+q}')
                a.e(f'v_add_f32 v{40+q}, v{40+q}, v{44+q}')
                a.e(f'v_add_f32 v{48+4*(i%2)+q}, v{32+q}, v{40+q}')
            a.e(f'buffer_store_dwordx4 v[{48+4*(i%2)}:{51+4*(i%2)}], v24, s[12:15], 0 offen offset:{(i*4096) % 4096}' if False else
                f'buffer_store_dwordx4 v[{48+4*(i%2)}:{51+4*(i%2)}], v24, s[12:15], 0 offen')
            a.e('v_add_u32 v24, 4096, v24')
    a.e('s_branch K1_END')

def gen_k1():
    a = Asm()
    kernel_head(a, 'k1_kernel')
    a.e('s_cmp_ge_u32 s2, 320')
    a.e('s_cbranch_scc1 K1_END')
    a.e('s_load_dwordx2 s[24:25], s[0:1], 80')
    a.e('s_load_dwordx2 s[26:27], s[0:1], 8')
    a.e('s_load_dwordx2 s[28:29], s[0:1], 32')
    a.e('s_load_dwordx2 s[30:31], s[0:1], 40')
    lane_decomp(a)
    a.e('s_and_b32 s21, s2, 15')
    a.e('s_lshr_b32 s22, s2, 4')
    a.e('s_waitcnt lgkmcnt(0)')
    a.e('s_cmp_ge_u32 s2, 256')
    a.e('s_cbranch_scc1 K1_Q')
    a.e('s_cmp_ge_u32 s2, 128')
    a.e('s_cbranch_scc1 K1_H')
    k1_type(a, 'KV')
    a.label('K1_H')
    a.e('s_sub_u32 s22, s22, 8')
    k1_type(a, 'H')
    a.label('K1_Q')
    a.e('s_sub_u32 s22, s22, 16')
    k1_type(a, 'Q')
    a.label('K1_END')
    a.e('s_endpgm')
    return a, 232

if __name__ == '__main__':
    ks = [('k0_kernel', gen_k0()), ('k1_kernel', gen_k1())]
    ls = ['; @launch kernel=k0_kernel grid=(256,1,1) block=(256,1,1) lds=0',
          '; @launch kernel=k1_kernel grid=(320,1,1) block=(256,1,1) lds=73728']
    build(ks, ls, 'k.s')
```

```python
from gen_k1 import *

def gen_k1b():
    a = Asm()
    kernel_head(a, 'k1b_kernel')
    a.e('s_cmp_ge_u32 s2, 64')
    a.e('s_cbranch_scc1 K1B_END')
    a.e('s_load_dwordx2 s[24:25], s[0:1], 80')
    a.e('s_load_dwordx2 s[26:27], s[0:1], 16')
    lane_decomp(a)
    a.e('s_and_b32 s21, s2, 15')
    a.e('s_lshr_b32 s22, s2, 4')
    a.e('s_waitcnt lgkmcnt(0)')
    srd(a, 4, 24, 25, KVP, SZ_KVP)
    srd(a, 8, 26, 27, 0, SZ_MM)
    srd(a, 12, 24, 25, MM, SZ_MM)
    srd(a, 16, 24, 25, PQ, SZ_ACT)
    srd(a, 28, 24, 25, PQS, SZ_ACT)
    a.e('s_lshr_b32 s23, s21, 1')
    a.e('s_mul_i32 s23, s23, 294912')
    a.e('s_and_b32 s32, s21, 1')
    a.e('s_lshl_b32 s32, s32, 1')
    for j in range(4):
        o = 40 + j
        a.e(f'v_add_u32 v6, {256*j}, v0')
        a.e('v_min_u32 v6, 839, v6')
        a.e(f'v_lshlrev_b32 v{44+j}, 2, v6')
        a.e('v_cmp_lt_u32 vcc, 419, v6')
        a.e('v_cndmask_b32 v7, 0, 1, vcc')
        a.e('v_mul_u32_u24 v8, 420, v7')
        a.e('v_sub_u32 v6, v6, v8')
        a.e('v_add_u32 v7, s32, v7')
        a.e('v_mul_u32_u24 v7, 20, v7')
        a.e('v_mul_u32_u24 v8, 52429, v6')
        a.e('v_lshrrev_b32 v8, 20, v8')
        a.e('v_mul_u32_u24 v9, 20, v8')
        a.e('v_sub_u32 v9, v6, v9')
        a.e('v_cmp_lt_u32 vcc, 399, v6')
        a.e('v_subrev_u32 v10, 400, v6')
        a.e('v_cndmask_b32 v8, v8, v10, vcc')
        a.e('v_add_u32 v8, v8, v7')
        a.e('v_add_u32 v9, v9, v7')
        a.e('v_lshrrev_b32 v10, 4, v8')
        a.e('v_lshrrev_b32 v11, 4, v9')
        a.e('v_min_u32 v12, v10, v11')
        a.e('v_lshl_add_u32 v13, v10, 1, v11')
        a.e('v_add_u32 v12, 13, v10')
        a.e('v_cndmask_b32 v13, v13, v12, vcc')
        a.e('v_and_b32 v9, 15, v9')
        a.e('v_cndmask_b32 v9, v9, 0, vcc')
        a.e('v_bfe_u32 v12, v8, 2, 2')
        a.e('v_lshl_add_u32 v12, v12, 4, v9')
        a.e('v_and_b32 v8, 3, v8')
        a.e(f'v_lshlrev_b32 v{o}, 10, v13')
        a.e(f'v_lshl_add_u32 v{o}, v12, 4, v{o}')
        a.e(f'v_lshl_add_u32 v{o}, v8, 2, v{o}')
        a.e(f'v_add_u32 v{o}, s23, v{o}')
    for rb in range(16):
        a.e(f's_mov_b32 s33, {rb*18432}')
        for j in range(4):
            a.e(f'buffer_load_dword v{64+rb*4+j}, v{40+j}, s[4:7], s33 offen')
    a.e('s_waitcnt vmcnt(0)')
    for j in range(4):
        for rb in range(1, 16):
            a.e(f'v_add_f32 v{64+j}, v{64+j}, v{64+rb*4+j}')
        rnd1(a, 64+j)
        a.e(f'ds_write_b32 v{44+j}, v{64+j}')
    a.e('s_waitcnt lgkmcnt(0)')
    a.e('s_barrier')
    a.e('s_lshr_b32 s33, s20, 1')
    a.e('s_and_b32 s34, s20, 1')
    a.e('s_lshl_b32 s35, s21, 1')
    a.e('s_add_u32 s35, s35, s33')
    a.e('s_mul_i32 s36, s35, 25600')
    a.e('s_mul_i32 s37, s22, 320')
    a.e('s_add_u32 s38, s36, s37')
    a.e('v_lshlrev_b32 v6, 3, v1')
    a.e('v_add_u32 v6, s38, v6')
    for e in range(20):
        if e*1280 <= 4095:
            a.e(f'buffer_load_dwordx2 v[{24+2*e}:{25+2*e}], v6, s[8:11], 0 offen offset:{e*1280}')
        else:
            a.e(f's_mov_b32 s39, {e*1280}')
            a.e(f'buffer_load_dwordx2 v[{24+2*e}:{25+2*e}], v6, s[8:11], s39 offen')
    a.e('s_mul_i32 s39, s33, 1680')
    a.e('s_mul_i32 s40, s34, 800')
    a.e('s_add_u32 s39, s39, s40')
    a.e('v_mov_b32 v7, s39')
    a.e('s_waitcnt vmcnt(0)')
    WO = 64
    for e in range(20):
        unpack(a, WO+4*e, WO+4*e+1, 24+2*e)
        unpack(a, WO+4*e+2, WO+4*e+3, 25+2*e)
    AC = 144; KVR = 184
    a.e('s_mul_i32 s40, s34, 12800')
    a.e('s_add_u32 s38, s38, s40')
    a.e('v_lshlrev_b32 v8, 3, v1')
    a.e('v_add_u32 v8, s38, v8')
    for d in range(10):
        for q in range(5):
            a.e(f'ds_read_b128 v[{KVR+4*q}:{KVR+4*q+3}], v7 offset:{d*80+16*q}')
        a.e('s_waitcnt lgkmcnt(0)')
        for e in range(20):
            for c in range(4):
                if e == 0: a.e(f'v_mul_f32 v{AC+4*d+c}, v{KVR+e}, v{WO+4*e+c}')
                else: a.e(f'v_fmac_f32 v{AC+4*d+c}, v{KVR+e}, v{WO+4*e+c}')
    a.e('v_cmp_gt_u32 vcc, 40, v1')
    a.e('s_and_saveexec_b64 s[42:43], vcc')
    for d in range(10):
        a.e(f'v_cvt_pk_bf16_f32 v{24+2*d}, v{AC+4*d}, v{AC+4*d+1}')
        a.e(f'v_cvt_pk_bf16_f32 v{25+2*d}, v{AC+4*d+2}, v{AC+4*d+3}')
        if d*1280 <= 4095:
            a.e(f'buffer_store_dwordx2 v[{24+2*d}:{25+2*d}], v8, s[12:15], 0 offen offset:{d*1280}')
        else:
            a.e(f's_mov_b32 s39, {d*1280}')
            a.e(f'buffer_store_dwordx2 v[{24+2*d}:{25+2*d}], v8, s[12:15], s39 offen')
    a.e('s_mov_b64 exec, s[42:43]')
    Z = 64
    a.e('v_mov_b32 v7, 0')
    for hs in range(2):
        for q in range(5):
            a.e(f'ds_read_b128 v[{Z+20*hs+4*q}:{Z+20*hs+4*q+3}], v7 offset:{(400+420*hs)*4+16*q}')
    a.e('s_lshl_b32 s33, s22, 9')
    a.e('v_add_u32 v6, s33, v0')
    a.e('v_mul_u32_u24 v6, 1280, v6')
    a.e('s_mul_i32 s33, s21, 80')
    a.e('v_add_u32 v6, s33, v6')
    a.e('v_add_u32 v9, 327680, v6')
    for rr in range(2):
        for q in range(5):
            a.e(f'buffer_load_dwordx4 v[{104+20*rr+4*q}:{107+20*rr+4*q}], v{6 if rr==0 else 9}, s[16:19], 0 offen offset:{16*q}')
    a.e('s_waitcnt vmcnt(0) lgkmcnt(0)')
    X = 144
    for rr in range(2):
        P = 104+20*rr
        for i in range(20):
            unpack(a, X+2*i, X+2*i+1, P+i)
        for hs in range(2):
            dn = 10+hs
            a.e(f'v_mul_f32 v{dn}, v{X+20*hs}, v{Z+20*hs}')
            for i in range(1, 20):
                a.e(f'v_fmac_f32 v{dn}, v{X+20*hs+i}, v{Z+20*hs+i}')
            rnd1(a, dn)
            a.e(f'v_add_f32 v{dn}, {hx(f2u(1e-6))}, v{dn}')
            rnd1(a, dn)
            a.e(f'v_rcp_f32 v{dn}, v{dn}')
        for i in range(20):
            dn = 10 + (i//10)
            a.e(f'v_mul_f32 v{X+2*i}, v{X+2*i}, v{dn}')
            a.e(f'v_mul_f32 v{X+2*i+1}, v{X+2*i+1}, v{dn}')
            a.e(f'v_cvt_pk_bf16_f32 v{P+i}, v{X+2*i}, v{X+2*i+1}')
        for q in range(5):
            a.e(f'buffer_store_dwordx4 v[{P+4*q}:{P+4*q+3}], v{6 if rr==0 else 9}, s[28:31], 0 offen offset:{16*q}')
    a.label('K1B_END')
    a.e('s_endpgm')
    return a, 208

if __name__ == '__main__':
    ks = [('k0_kernel', gen_k0()), ('k1_kernel', gen_k1()), ('k1b_kernel', gen_k1b())]
    ls = ['; @launch kernel=k0_kernel grid=(256,1,1) block=(256,1,1) lds=0',
          '; @launch kernel=k1_kernel grid=(320,1,1) block=(256,1,1) lds=73728',
          '; @launch kernel=k1b_kernel grid=(64,1,1) block=(256,1,1) lds=4096']
    build(ks, ls, 'k.s')
```

```python
from gen_k1b import *

K2_STEPS = [
  [('h',i) for i in range(0,7)]  + [('a',i) for i in range(0,2)],
  [('h',i) for i in range(7,13)] + [('a',i) for i in range(2,5)],
  [('h',i) for i in range(13,19)]+ [('a',i) for i in range(5,7)],
  [('h',i) for i in range(19,24)]+ [('a',i) for i in range(7,10)],
]
A2, BF2, ACC2 = 40, 136, 168

def k2_wave(a, w):
    steps = K2_STEPS[w]
    n = len(steps)
    def issue(si):
        src, ks = steps[si]
        b = A2 + (si % 3)*32
        for rt in range(4):
            for kh in range(2):
                r0 = b + (rt*2+kh)*4
                if src == 'h':
                    a.e(f'buffer_load_dwordx4 v[{r0}:{r0+3}], v{6+rt}, s[4:7], 0 offen offset:{ks*128+kh*16}')
                else:
                    a.e(f'buffer_load_dwordx4 v[{r0}:{r0+3}], v{10+rt}, s[8:11], 0 offen offset:{ks*128+kh*16}')
        a.e(f's_mov_b32 s33, {ks*81920}')
        for i in range(10):
            a.e(f's_mov_b32 m0, {w*30720 + (si%3)*10240 + i*1024}')
            if src == 'h':
                a.e(f'buffer_load_dwordx4 v{14+i}, s[12:15], s33 offen lds')
            else:
                a.e(f'buffer_load_dwordx4 v{14+i}, s[16:19], s33 offen lds')
    def rd(si, t):
        bb = BF2 + (t % 4)*8
        for hq in range(4):
            a.e(f'ds_read_b64_tr_b16 v[{bb+2*hq}:{bb+2*hq+1}], v{24 + (hq&1)} offset:{(si%3)*10240 + hq*640 + 32*t}')
    issue(0); issue(1)
    for si in range(n):
        a.e(f's_waitcnt vmcnt({18 if si+1 < n else 0})')
        rd(si, 0); rd(si, 1); rd(si, 2)
        if si+2 < n: issue(si+2)
        ab = A2 + (si % 3)*32
        for t in range(5):
            if t+3 < 5: rd(si, t+3)
            infl = min(4, t+3) - t
            a.e(f's_waitcnt lgkmcnt({4*infl})')
            bb = BF2 + (t % 4)*8
            for kh in range(2):
                for rt in range(4):
                    d = ACC2 + (rt*5 + t)*4
                    A_ = f'v[{ab+(rt*2+kh)*4}:{ab+(rt*2+kh)*4+3}]'
                    B_ = f'v[{bb+kh*4}:{bb+kh*4+3}]'
                    C_ = '0' if (si == 0 and kh == 0) else f'v[{d}:{d+3}]'
                    a.e(f'v_mfma_f32_16x16x32_bf16 v[{d}:{d+3}], {B_}, {A_}, {C_}')
    a.e('s_barrier')
    for rt in range(4):
        if rt == w: continue
        for t in range(5):
            d = ACC2 + (rt*5+t)*4
            a.e(f'ds_write_b128 v26, v[{d}:{d+3}] offset:{w*20480 + (rt*5+t)*1024 - (0)}' if w*20480 + (rt*5+t)*1024 < 65536 else
                f'ds_write_b128 v27, v[{d}:{d+3}] offset:{w*20480 + (rt*5+t)*1024 - 65536}')
    a.e('s_waitcnt lgkmcnt(0)')
    a.e('s_barrier')
    k = 0
    for ws_ in range(4):
        if ws_ == w: continue
        for t in range(5):
            off = ws_*20480 + (w*5+t)*1024
            r0 = A2 + (k*5+t)*4
            if off < 65536: a.e(f'ds_read_b128 v[{r0}:{r0+3}], v26 offset:{off}')
            else: a.e(f'ds_read_b128 v[{r0}:{r0+3}], v27 offset:{off-65536}')
        k += 1
    a.e(f'v_add_u32 v30, {w*16*1280}, v28')
    for t in range(5):
        a.e(f'buffer_load_dwordx2 v[{BF2+2*t}:{BF2+2*t+1}], v30, s[48:51], 0 offen offset:{32*t}')
        a.e(f'buffer_load_dwordx2 v[{BF2+10+2*t}:{BF2+11+2*t}], v29, s[28:31], 0 offen offset:{32*t}')
    a.e('s_waitcnt vmcnt(0) lgkmcnt(0)')
    for t in range(5):
        d = ACC2 + (w*5+t)*4
        for q in range(4):
            a.e(f'v_add_f32 v{A2+t*4+q}, v{A2+t*4+q}, v{A2+20+t*4+q}')
            a.e(f'v_add_f32 v{d+q}, v{d+q}, v{A2+40+t*4+q}')
            a.e(f'v_add_f32 v{d+q}, v{d+q}, v{A2+t*4+q}')
        for hf in range(2):
            unpack(a, 32, 33, BF2+2*t+hf)
            unpack(a, 34, 35, BF2+10+2*t+hf)
            a.e(f'v_add_f32 v{d+2*hf}, v{d+2*hf}, v34')
            a.e(f'v_add_f32 v{d+2*hf+1}, v{d+2*hf+1}, v35')
            a.e(f'v_add_f32 v{d+2*hf}, v{d+2*hf}, v32')
            a.e(f'v_add_f32 v{d+2*hf+1}, v{d+2*hf+1}, v33')
            a.e(f'v_cvt_pk_bf16_f32 v{36+hf}, v{d+2*hf}, v{d+2*hf+1}')
        a.e(f'buffer_store_dwordx2 v[36:37], v30, s[36:39], 0 offen offset:{32*t}')
    a.e('s_branch K2_END')

def gen_k2():
    a = Asm()
    kernel_head(a, 'k2_kernel')
    a.e('s_cmp_ge_u32 s2, 256')
    a.e('s_cbranch_scc1 K2_END')
    a.e('s_load_dwordx2 s[24:25], s[0:1], 80')
    a.e('s_load_dwordx2 s[26:27], s[0:1], 48')
    a.e('s_load_dwordx2 s[48:49], s[0:1], 0')
    a.e('s_load_dwordx2 s[28:29], s[0:1], 56')
    a.e('s_load_dwordx2 s[36:37], s[0:1], 64')
    lane_decomp(a)
    a.e('s_mov_b32 s40, s20')
    a.e('s_and_b32 s41, s2, 31')
    a.e('s_lshr_b32 s42, s2, 5')
    a.e('s_waitcnt lgkmcnt(0)')
    srd(a, 4, 24, 25, H, SZ_H)
    srd(a, 8, 24, 25, PQS, SZ_ACT)
    srd(a, 12, 26, 27, 0, 1536*640*2)
    srd(a, 16, 24, 25, MM, SZ_MM)
    srd(a, 48, 48, 49, 0, SZ_ACT)
    srd(a, 28, 28, 29, 0, 1280)
    srd(a, 36, 36, 37, 0, SZ_ACT)
    a.e('s_lshl_b32 s43, s41, 6')
    a.e('s_mul_i32 s44, s42, 160')
    a.e('v_add_u32 v30, s43, v3')
    a.e('v_mul_u32_u24 v6, 3072, v30')
    a.e('v_lshl_add_u32 v6, v2, 5, v6')
    a.e('v_mul_u32_u24 v10, 1280, v30')
    a.e('v_lshl_add_u32 v28, v2, 3, v10')
    a.e('v_add_u32 v28, s44, v28')
    a.e('v_lshl_add_u32 v10, v2, 5, v10')
    for rt in range(1, 4):
        a.e(f'v_add_u32 v{6+rt}, {rt*16*3072}, v6')
        a.e(f'v_add_u32 v{10+rt}, {rt*16*1280}, v10')
    a.e('v_lshlrev_b32 v29, 3, v2')
    a.e('v_add_u32 v29, s44, v29')
    for i in range(10):
        a.e(f'v_add_u32 v30, {64*i}, v1')
        a.e('v_mul_u32_u24 v31, 6554, v30')
        a.e('v_lshrrev_b32 v31, 16, v31')
        a.e('v_mul_u32_u24 v32, 10, v31')
        a.e('v_sub_u32 v32, v30, v32')
        a.e('v_bfe_u32 v33, v31, 4, 1')
        a.e('v_lshlrev_b32 v33, 2, v33')
        a.e('v_xor_b32 v31, v31, v33')
        a.e(f'v_mul_u32_u24 v{14+i}, 1280, v31')
        a.e(f'v_lshl_add_u32 v{14+i}, v32, 4, v{14+i}')
        a.e(f'v_add_u32 v{14+i}, s44, v{14+i}')
    a.e('v_lshl_add_u32 v30, v2, 4, v4')
    a.e('v_mul_u32_u24 v30, 160, v30')
    a.e('v_lshl_add_u32 v30, v5, 3, v30')
    a.e('s_mul_i32 s45, s40, 30720')
    a.e('v_add_u32 v30, s45, v30')
    a.e('v_and_b32 v31, 1, v2')
    a.e('v_mul_u32_u24 v31, 640, v31')
    a.e('v_add_u32 v24, v30, v31')
    a.e('v_sub_u32 v25, v30, v31')
    a.e('v_lshlrev_b32 v26, 4, v1')
    a.e('v_add_u32 v27, 65536, v26')
    a.e('s_cmp_eq_u32 s40, 1'); a.e('s_cbranch_scc1 K2_W1')
    a.e('s_cmp_eq_u32 s40, 2'); a.e('s_cbranch_scc1 K2_W2')
    a.e('s_cmp_eq_u32 s40, 3'); a.e('s_cbranch_scc1 K2_W3')
    k2_wave(a, 0)
    for w in (1,2,3):
        a.label(f'K2_W{w}')
        k2_wave(a, w)
    a.label('K2_END')
    a.e('s_endpgm')
    return a, 248

if __name__ == '__main__':
    ks = [('k0_kernel', gen_k0()), ('k1_kernel', gen_k1()), ('k1b_kernel', gen_k1b()), ('k2_kernel', gen_k2())]
    ls = ['; @launch kernel=k0_kernel grid=(256,1,1) block=(256,1,1) lds=0',
          '; @launch kernel=k1_kernel grid=(320,1,1) block=(256,1,1) lds=73728',
          '; @launch kernel=k1b_kernel grid=(64,1,1) block=(256,1,1) lds=4096',
          '; @launch kernel=k2_kernel grid=(256,1,1) block=(256,1,1) lds=122880']
    build(ks, ls, 'k.s')
```

```python
import sys, os
sys.path.insert(0, 'work')
from gen import *
from gen_k1 import lane_decomp, unpack, phi_pair, gelu_pair, C1, C2, KV_PAIRS
X = os.environ.get('KX', '')

STAMP = 'stamp' in X
class St:
    def __init__(self, a): self.a = a; self.n = 0
    def __call__(self):
        if not STAMP: return
        a = self.a
        a.e('s_memtime s[60:61]')
        a.e('s_waitcnt lgkmcnt(0)')
        a.e(f's_mov_b32 s{64+self.n}, s60')
        if self.n == 0:
            a.e('s_memrealtime s[60:61]')
            a.e('s_waitcnt lgkmcnt(0)')
            a.e('s_mov_b32 s95, s60')
        self.n += 1
    def dump(self, wave_sgpr, region):
        if not STAMP: return
        a = self.a
        srd(a, 56, 24, 25, 0x3000000 + region*0x40000, 0x40000)
        a.e('s_lshl_b32 s60, s2, 2')
        a.e(f's_add_u32 s60, s60, s{wave_sgpr}')
        a.e('s_lshl_b32 s60, s60, 7')
        a.e('v_mov_b32 v31, s60')
        a.e('s_memrealtime s[62:63]')
        a.e('s_waitcnt lgkmcnt(0)')
        a.e('v_mov_b32 v29, s95')
        a.e('buffer_store_dword v29, v31, s[56:59], 0 offen offset:120')
        a.e('v_mov_b32 v29, s62')
        a.e('buffer_store_dword v29, v31, s[56:59], 0 offen offset:124')
        for i in range(self.n):
            a.e(f'v_mov_b32 v29, s{64+i}')
            a.e(f'buffer_store_dword v29, v31, s[56:59], 0 offen offset:{4*i}')

def gen_k0():
    a = Asm()
    kernel_head(a, 'k0_kernel')
    a.e('s_cmp_ge_u32 s2, 256')
    a.e('s_cbranch_scc1 K0_END')
    a.e('s_load_dwordx2 s[4:5], s[0:1], 0')
    a.e('s_load_dwordx2 s[16:17], s[0:1], 80')
    a.e('v_lshrrev_b32 v1, 5, v0')
    a.e('v_and_b32 v2, 31, v0')
    a.e('s_lshl_b32 s3, s2, 3')
    a.e('v_add_u32 v1, s3, v1')
    a.e('v_mul_u32_u24 v3, 1280, v1')
    a.e('v_lshl_add_u32 v3, v2, 3, v3')
    a.e('v_lshrrev_b32 v50, 4, v1')
    a.e('v_mul_u32_u24 v50, 20480, v50')
    a.e('v_lshrrev_b32 v51, 3, v2')
    a.e('v_lshl_add_u32 v50, v51, 10, v50')
    a.e('v_and_b32 v51, 15, v1')
    a.e('v_lshl_add_u32 v50, v51, 4, v50')
    a.e('v_bfe_u32 v51, v2, 1, 2')
    a.e('v_lshl_add_u32 v50, v51, 8, v50')
    a.e('v_and_b32 v51, 1, v2')
    a.e('v_lshl_add_u32 v50, v51, 3, v50')
    for i in range(1, 5):
        a.e(f's_mov_b32 s{20+i}, {4096*i}')
    a.e('s_waitcnt lgkmcnt(0)')
    srd(a, 4, 4, 5, 0, SZ_ACT)
    srd(a, 8, 16, 17, XN, SZ_ACT)
    srd(a, 12, 16, 17, Y, SZ_ACT)
    for i in range(5):
        a.e(f'buffer_load_dwordx2 v[{4+2*i}:{5+2*i}], v3, s[4:7], 0 offen offset:{256*i}')
    a.e('s_waitcnt vmcnt(0)')
    XX = 20
    for i in range(10):
        a.e(f'v_lshlrev_b32 v{XX+2*i}, 16, v{4+i}')
        a.e(f'v_and_b32 v{XX+2*i+1}, 0xffff0000, v{4+i}')
    ln_pass(a, XX, 4, 14, 15, 16)
    for i in range(5):
        a.e(f'buffer_store_dwordx2 v[{4+2*i}:{5+2*i}], v50, s[8:11], {"0" if i==0 else "s%d"%(20+i)} offen')
    ln_pass(a, XX, 40, 14, 15, 16)
    for i in range(5):
        a.e(f'buffer_store_dwordx2 v[{40+2*i}:{41+2*i}], v50, s[12:15], {"0" if i==0 else "s%d"%(20+i)} offen')
    a.label('K0_END')
    a.e('s_endpgm')
    return a, 52

ABUF, BF, ACC = 32, 80, 112
BIAS = 208
K1_LDS = 98304

def gelu4(a, d, o, t, sC1, vC2):
    for q in range(4): a.e(f'v_mul_f32 v{t+q}, v{d+q}, v{d+q}')
    for q in range(4): a.e(f'v_fma_f32 v{t+q}, v{t+q}, v{vC2}, s{sC1}')
    for q in range(4): a.e(f'v_mul_f32 v{t+q}, v{t+q}, v{d+q}')
    for q in range(4): a.e(f'v_exp_f32 v{t+q}, v{t+q}')
    for q in range(4): a.e(f'v_add_f32 v{t+q}, 1.0, v{t+q}')
    for q in range(4): a.e(f'v_rcp_f32 v{t+q}, v{t+q}')
    for q in range(4): a.e(f'v_mul_f32 v{d+q}, v{d+q}, v{t+q}')
    a.e(f'v_cvt_pk_bf16_f32 v{o}, v{d}, v{d+1}')
    a.e(f'v_cvt_pk_bf16_f32 v{o+1}, v{d+2}, v{d+3}')

def phi4(a, d, o, t, sL, vEps):
    for q in range(4): a.e(f'v_min_f32 v{t+q}, 0, v{d+q}')
    for q in range(4): a.e(f'v_mul_f32 v{t+q}, s{sL}, v{t+q}')
    for q in range(4): a.e(f'v_exp_f32 v{t+q}, v{t+q}')
    for q in range(4): a.e(f'v_max_f32 v{d+q}, 0, v{d+q}')
    for q in range(4): a.e(f'v_add3_u32 v{d+q}, v{d+q}, v{t+q}, v{vEps}' if False else f'v_add_f32 v{d+q}, v{d+q}, v{t+q}')
    for q in range(4): a.e(f'v_add_f32 v{d+q}, v{d+q}, v{vEps}')
    a.e(f'v_cvt_pk_bf16_f32 v{o}, v{d}, v{d+1}')
    a.e(f'v_cvt_pk_bf16_f32 v{o+1}, v{d+2}, v{d+3}')

def k1_type(a, typ):
    st_ = St(a); st_.n = 1
    st_()
    NT = 12 if typ == 'H' else 15
    ldb = 3072 if typ == 'H' else 3840
    RB = 32*NT
    SB = 24576 if typ == 'H' else 32768
    ND = 6 if typ == 'H' else 8
    if typ == 'H':
        srd(a, 4, 24, 25, Y, SZ_ACT)
        srd(a, 8, 28, 29, 0, 640*1536*2)
        srd(a, 12, 24, 25, H, SZ_H)
        srd(a, 16, 30, 31, 0, 1536*2)
        a.e('s_mul_i32 s35, s22, 384')
    else:
        srd(a, 4, 24, 25, XN, SZ_ACT)
        srd(a, 8, 26, 27, 0, 640*1920*2)
        srd(a, 12, 24, 25, PQ, SZ_ACT)
        srd(a, 16, 24, 25, KVP, SZ_KVP)
        a.e('s_mul_i32 s35, s22, 160')
    a.e('s_lshl_b32 s23, s21, 3')
    a.e('s_lshl_b32 s36, s20, 1')
    a.e('s_add_u32 s23, s23, s36')
    a.e('s_mul_i32 s36, s23, 20480')
    a.e('v_lshlrev_b32 v6, 4, v1')
    a.e('v_add_u32 v6, s36, v6')
    a.e('v_add_u32 v7, 20480, v6')
    if typ == 'H':
        a.e('v_lshlrev_b32 v22, 3, v2')
        a.e('v_add_u32 v22, s35, v22')
        for t in range(NT):
            a.e(f'buffer_load_dwordx2 v[{ACC+2*t}:{ACC+2*t+1}], v22, s[16:19], 0 offen offset:{32*t}')
    a.e(f's_mul_i32 s36, s20, {ND*64}')
    a.e(f's_mul_i32 s34, s20, {ND*1024}')
    upr = 2*NT
    magic = {24: 43691, 30: 34953}[upr]
    for i in range(ND):
        a.e(f'v_add_u32 v22, s36, v1')
        if i: a.e(f'v_add_u32 v22, {64*i}, v22')
        if typ != 'H' and i >= 6:
            a.e('v_subrev_u32 v23, 128, v22')
            a.e('v_cmp_lt_u32 vcc, 1919, v22')
            a.e('v_cndmask_b32 v22, v22, v23, vcc')
        a.e(f'v_mul_u32_u24 v23, {magic}, v22')
        a.e('v_lshrrev_b32 v23, 20, v23')
        a.e(f'v_mul_u32_u24 v24, {upr}, v23')
        a.e('v_sub_u32 v24, v22, v24')
        a.e('v_bfe_u32 v25, v23, 2, 1')
        a.e('v_bfe_u32 v26, v23, 3, 1')
        a.e('v_xor_b32 v25, v25, v26')
        a.e('v_mul_u32_u24 v25, 12, v25')
        a.e('v_xor_b32 v25, v25, v23')
        a.e(f'v_mul_u32_u24 v{8+i}, {ldb}, v25')
        if typ == 'H':
            a.e('v_bfe_u32 v26, v23, 1, 2')
            a.e('v_lshlrev_b32 v26, 1, v26')
            a.e('v_xor_b32 v24, v24, v26')
            a.e(f'v_lshl_add_u32 v{8+i}, v24, 4, v{8+i}')
        else:
            a.e(f'v_lshl_add_u32 v{8+i}, v24, 4, v{8+i}')
            a.e('v_mul_u32_u24 v26, 6554, v24')
            a.e('v_lshrrev_b32 v26, 16, v26')
            a.e('v_mul_u32_u24 v26, 1120, v26')
            a.e(f'v_add_u32 v{8+i}, v26, v{8+i}')
        a.e(f'v_add_u32 v{8+i}, s35, v{8+i}')
    def issue_list(ks):
        L = []
        b = ABUF + (ks % 3)*16
        st = ks % 3
        for rt in range(2):
            for kh in range(2):
                r0 = b + (rt*2+kh)*4
                if '1noA' in X: continue
                L.append([f's_mov_b32 s32, {ks*2048}',
                          f'buffer_load_dwordx4 v[{r0}:{r0+3}], v{6+rt}, s[4:7], s32 offen offset:{kh*1024}'])
        for i in range(ND):
            if '1noB' in X: continue
            L.append([f's_mov_b32 s33, {ks*64*ldb}', f's_add_u32 m0, s34, {st*SB + i*1024}',
                      f'buffer_load_dwordx4 v{8+i}, s[8:11], s33 offen lds'])
        return L
    def emit(L):
        for grp in L:
            for x in grp: a.e(x)
    emit(issue_list(0)); emit(issue_list(1))
    a.e('v_lshrrev_b32 v22, 1, v2')
    a.e('v_lshlrev_b32 v22, 4, v22')
    a.e('v_and_b32 v23, 1, v2')
    a.e('v_lshl_add_u32 v22, v23, 2, v22')
    a.e('v_add_u32 v22, v22, v4')
    a.e(f'v_mul_u32_u24 v22, {RB}, v22')
    a.e('v_lshl_add_u32 v22, v5, 3, v22')
    if typ == 'H':
        a.e('v_lshrrev_b32 v24, 1, v4')
        a.e('v_lshl_or_b32 v23, v23, 1, v24')
        for m in range(4):
            a.e(f'v_xor_b32 v24, {m}, v23')
            a.e(f'v_subrev_u32 v24, {m}, v24')
            a.e(f'v_lshl_add_u32 v{16+m}, v24, 5, v22')
        nb = 4
        NL0 = 2*((0 if '1noA' in X else 4) + (0 if '1noB' in X else ND))
        a.e(f's_waitcnt vmcnt({NL0})')
        for t in range(NT):
            unpack(a, BIAS+4*t, BIAS+4*t+1, ACC+2*t)
            unpack(a, BIAS+4*t+2, BIAS+4*t+3, ACC+2*t+1)
    else:
        a.e('v_mov_b32 v16, v22')
        a.e('v_add_u32 v17, 65536, v22')
        nb = 1
    def rd1(ks, t, hq):
        st = ks % 3; bb = BF + (t % 4)*8
        off = st*SB + (32*(hq>>1) + 8*(hq&1))*RB + 32*t
        base = 16 + (t % nb)
        if off >= 65536:
            assert nb == 1
            off -= 65536; base = 17
        if '1noC' in X or '1noR' in X: return
        a.e(f'ds_read_b64_tr_b16 v[{bb+2*hq}:{bb+2*hq+1}], v{base} offset:{off}')
    NLD = (0 if '1noA' in X else 4) + (0 if '1noB' in X else ND)
    for ks in range(10):
        a.e(f's_waitcnt vmcnt({NLD if ks+1 < 10 else 0})')
        a.e('s_barrier')
        st_()
        L = issue_list(ks+2) if ks+2 < 10 else []
        for t in range(3):
            for hq in range(4): rd1(ks, t, hq)
        ab = ABUF + (ks % 3)*16
        for t in range(NT):
            infl = min(NT-1, t+2) - t
            a.e(f's_waitcnt lgkmcnt({4*infl})')
            bb = BF + (t % 4)*8
            G = L.pop(0) if L else []
            n = 0
            for kh in range(2):
                for rt in range(2):
                    d = ACC + (rt*NT + t)*4
                    A_ = f'v[{ab+(rt*2+kh)*4}:{ab+(rt*2+kh)*4+3}]'
                    B_ = f'v[{bb+kh*4}:{bb+kh*4+3}]'
                    if ks == 0 and kh == 0:
                        C_ = f'v[{BIAS+4*t}:{BIAS+4*t+3}]' if typ == 'H' else '0'
                    else: C_ = f'v[{d}:{d+3}]'
                    if not ('1noC' in X or '1noM' in X):
                        if typ != 'H' and t >= 5:
                            a.e(f'v_mfma_f32_16x16x32_bf16 v[{d}:{d+3}], {A_}, {B_}, {C_}')
                        else:
                            a.e(f'v_mfma_f32_16x16x32_bf16 v[{d}:{d+3}], {B_}, {A_}, {C_}')
                    if t+3 < NT: rd1(ks, t+3, n)
                    if n == 2:
                        for x in G: a.e(x)
                    n += 1
        emit(L)
    st_()
    if '1noE' in X:
        a.e('s_branch K1_END'); return
    a.e('v_lshlrev_b32 v28, 4, v1')
    if typ == 'H':
        a.e('s_mul_i32 s36, s23, 49152')
        a.e('s_mul_i32 s37, s22, 6144')
        a.e('s_add_u32 s36, s36, s37')
        a.e('v_add_u32 v22, s36, v28')
        a.e('v_add_u32 v23, 4096, v22')
        a.e('v_add_u32 v24, 49152, v22')
        a.e('v_add_u32 v25, 53248, v22')
        a.e(f's_mov_b32 s36, {hx(f2u(C1))}')
        a.e(f'v_mov_b32 v26, {hx(f2u(C2))}')
        for rt in range(2):
            for u in range(6):
                o = ABUF + ((rt*6+u) % 4)*4
                for hi in range(2):
                    t = 2*u + hi
                    gelu4(a, ACC + (rt*NT + t)*4, o+2*hi, 48 + 4*hi, 36, 26)
                a.e(f'buffer_store_dwordx4 v[{o}:{o+3}], v{22 + 2*rt + (0 if u < 4 else 1)}, s[12:15], 0 offen offset:{(u%4)*1024}')
    else:
        a.e('s_mul_i32 s36, s23, 20480')
        a.e('v_add_u32 v22, s36, v28')
        a.e('v_add_u32 v23, 20480, v22')
        a.e('s_mul_i32 s38, s22, 5')
        for t in range(5):
            a.e(f's_add_u32 s39, s38, {t}')
            a.e('s_lshr_b32 s40, s39, 1')
            a.e('s_lshl_b32 s40, s40, 10')
            a.e('s_and_b32 s39, s39, 1')
            a.e('s_lshl_b32 s39, s39, 3')
            a.e(f's_add_u32 s{41+t}, s40, s39')
        a.e(f's_mov_b32 s36, {hx(f2u(LOG2E))}')
        a.e(f'v_mov_b32 v26, {hx(f2u(1e-6))}')
        for rt in range(2):
            for t in range(5):
                d = ACC + (rt*NT + t)*4
                o = 76 + ((rt*5+t) % 2)*2
                phi4(a, d, o, 80 + 4*(t%2), 36, 26)
                a.e(f'buffer_store_dwordx2 v[{o}:{o+1}], v{22+rt}, s[12:15], s{41+t} offen')
        st_()
        OP = 32
        for t in range(10):
            for rt in range(2):
                d = ACC + (rt*NT + 5 + t)*4
                p = OP + 4*t + rt*2
                if t < 5:
                    phi4(a, d, p, 80 + 4*rt, 36, 26)
                else:
                    a.e(f'v_cvt_pk_bf16_f32 v{p}, v{d}, v{d+1}')
                    a.e(f'v_cvt_pk_bf16_f32 v{p+1}, v{d+2}, v{d+3}')
        for i in range(4):
            a.e(f'v_mov_b32 v{72+i}, 0x3f803f80')
        KA = ACC
        for n, (i, j) in enumerate(KV_PAIRS):
            a.e(f'v_mfma_f32_16x16x32_bf16 v[{KA+4*n}:{KA+4*n+3}], v[{OP+4*i}:{OP+4*i+3}], v[{OP+20+4*j}:{OP+20+4*j+3}], 0')
        for i in range(5):
            n = 13+i
            a.e(f'v_mfma_f32_16x16x32_bf16 v[{KA+4*n}:{KA+4*n+3}], v[{OP+4*i}:{OP+4*i+3}], v[72:75], 0')
        st_()
        a.e('s_barrier')
        a.e('s_mul_i32 s36, s20, 18432')
        a.e('v_add_u32 v23, s36, v28')
        for n in range(18):
            a.e(f'ds_write_b128 v23, v[{KA+4*n}:{KA+4*n+3}] offset:{1024*n}')
        a.e('s_waitcnt lgkmcnt(0)')
        a.e('s_barrier')
        st_()
        a.e('s_lshl_b32 s36, s20, 10')
        a.e('v_add_u32 v23, s36, v28')
        a.e('s_lshl_b32 s37, s22, 4')
        a.e('s_add_u32 s37, s37, s21')
        a.e('s_mul_i32 s37, s37, 18432')
        a.e('s_add_u32 s37, s37, s36')
        a.e('v_add_u32 v24, s37, v28')
        a.e('v_add_u32 v25, 55296, v23')
        for i in range(5):
            if i == 4:
                a.e('s_cmp_ge_u32 s20, 2')
                a.e('s_cbranch_scc1 K1_TAIL' if STAMP else 's_cbranch_scc1 K1_END')
            R = 32 + 16*i
            for wv in range(4):
                if wv < 3: a.e(f'ds_read_b128 v[{R+4*wv}:{R+3+4*wv}], v23 offset:{wv*18432 + i*4096}')
                else: a.e(f'ds_read_b128 v[{R+4*wv}:{R+3+4*wv}], v25 offset:{i*4096}')
            a.e('s_waitcnt lgkmcnt(0)')
            for q in range(4):
                a.e(f'v_add_f32 v{R+q}, v{R+q}, v{R+4+q}')
                a.e(f'v_add_f32 v{R+8+q}, v{R+8+q}, v{R+12+q}')
                a.e(f'v_add_f32 v{R+q}, v{R+q}, v{R+8+q}')
            a.e(f'buffer_store_dwordx4 v[{R}:{R+3}], v24, s[16:19], 0 offen')
            if i < 4: a.e('v_add_u32 v24, 4096, v24')
        if STAMP: a.label('K1_TAIL')
    if STAMP:
        st_()
        a.e('s_waitcnt vmcnt(0)')
        st_(); st_.dump(20, 1)
    a.e('s_branch K1_END')

def gen_k1():
    a = Asm()
    kernel_head(a, 'k1_kernel')
    a.e('s_cmp_ge_u32 s2, 256')
    a.e('s_cbranch_scc1 K1_END')
    St(a)()
    a.e('s_load_dwordx2 s[24:25], s[0:1], 80')
    a.e('s_load_dwordx2 s[26:27], s[0:1], 8')
    a.e('s_load_dwordx2 s[28:29], s[0:1], 32')
    a.e('s_load_dwordx2 s[30:31], s[0:1], 40')
    lane_decomp(a)
    a.e('s_and_b32 s21, s2, 3')
    a.e('s_lshl_b32 s21, s21, 2')
    a.e('s_bfe_u32 s22, s2, 0x20003')
    a.e('s_add_u32 s21, s21, s22')
    a.e('s_lshr_b32 s22, s2, 5')
    a.e('s_waitcnt lgkmcnt(0)')
    a.e('s_bitcmp1_b32 s2, 2')
    a.e('s_cbranch_scc1 K1_H')
    k1_type(a, 'QKV')
    a.label('K1_H')
    k1_type(a, 'H')
    a.label('K1_END')
    a.e('s_endpgm')
    return a, 256

def gen_k1b():
    a = Asm()
    kernel_head(a, 'k1b_kernel')
    a.e('s_cmp_ge_u32 s2, 256')
    a.e('s_cbranch_scc1 K1B_END')
    a.e('s_load_dwordx2 s[24:25], s[0:1], 80')
    a.e('s_load_dwordx2 s[26:27], s[0:1], 16')
    a.e('s_lshr_b32 s21, s2, 3')
    a.e('s_and_b32 s22, s2, 7')
    a.e('s_lshr_b32 s23, s21, 2')
    a.e('s_mul_i32 s23, s23, 294912')
    a.e('s_and_b32 s32, s21, 3')
    a.e('s_mul_i32 s32, s32, 20')
    for j in range(2):
        o = 40 + j
        a.e(f'v_add_u32 v6, {256*j}, v0')
        a.e('v_min_u32 v6, 419, v6')
        a.e(f'v_lshlrev_b32 v{44+j}, 2, v6')
        a.e('v_mul_u32_u24 v8, 52429, v6')
        a.e('v_lshrrev_b32 v8, 20, v8')
        a.e('v_mul_u32_u24 v9, 20, v8')
        a.e('v_sub_u32 v9, v6, v9')
        a.e('v_cmp_lt_u32 vcc, 399, v6')
        a.e('v_subrev_u32 v10, 400, v6')
        a.e('v_cndmask_b32 v8, v8, v10, vcc')
        a.e('v_add_u32 v8, s32, v8')
        a.e('v_add_u32 v9, s32, v9')
        a.e('v_lshrrev_b32 v10, 4, v8')
        a.e('v_lshrrev_b32 v11, 4, v9')
        a.e('v_lshl_add_u32 v13, v10, 1, v11')
        a.e('v_add_u32 v12, 13, v10')
        a.e('v_cndmask_b32 v13, v13, v12, vcc')
        a.e('v_and_b32 v9, 15, v9')
        a.e('v_cndmask_b32 v9, v9, 0, vcc')
        a.e('v_bfe_u32 v12, v8, 2, 2')
        a.e('v_lshl_add_u32 v12, v12, 4, v9')
        a.e('v_and_b32 v8, 3, v8')
        a.e(f'v_lshlrev_b32 v{o}, 10, v13')
        a.e(f'v_lshl_add_u32 v{o}, v12, 4, v{o}')
        a.e(f'v_lshl_add_u32 v{o}, v8, 2, v{o}')
        a.e(f'v_add_u32 v{o}, s23, v{o}')
    a.e('v_min_u32 v6, 199, v0')
    a.e('v_mul_u32_u24 v7, 6554, v6')
    a.e('v_lshrrev_b32 v7, 16, v7')
    a.e('v_mul_u32_u24 v8, 10, v7')
    a.e('v_sub_u32 v8, v6, v8')
    a.e('s_mul_i32 s33, s21, 25600')
    a.e('s_mul_i32 s34, s22, 160')
    a.e('s_add_u32 s33, s33, s34')
    a.e('v_lshlrev_b32 v46, 4, v8')
    a.e('v_add_u32 v46, s33, v46')
    a.e('v_mul_u32_u24 v47, 1280, v7')
    a.e('v_add_u32 v47, v47, v46')
    a.e('v_mul_u32_u24 v48, 80, v7')
    a.e('s_lshl_b32 s34, s22, 8')
    a.e('v_add_u32 v6, s34, v0')
    a.e('v_lshrrev_b32 v49, 4, v6')
    a.e('v_mul_u32_u24 v49, 20480, v49')
    a.e('v_and_b32 v6, 15, v6')
    a.e('v_lshl_add_u32 v49, v6, 4, v49')
    a.e('s_mul_i32 s34, s21, 5')
    for m in range(5):
        a.e(f's_add_u32 s35, s34, {m}')
        a.e('s_lshr_b32 s36, s35, 3')
        a.e('s_lshl_b32 s36, s36, 10')
        a.e('s_and_b32 s37, s35, 3')
        a.e('s_lshl_b32 s37, s37, 8')
        a.e('s_add_u32 s36, s36, s37')
        a.e('s_bfe_u32 s37, s35, 0x10002')
        a.e('s_lshl_b32 s37, s37, 3')
        a.e(f's_add_u32 s{40+m}, s36, s37')
    a.e('s_waitcnt lgkmcnt(0)')
    srd(a, 4, 24, 25, KVP, SZ_KVP)
    srd(a, 8, 26, 27, 0, SZ_MM)
    srd(a, 12, 24, 25, MM, SZ_MM)
    srd(a, 16, 24, 25, PQ, SZ_ACT)
    srd(a, 28, 24, 25, PQS, SZ_ACT)
    for rb in range(16):
        a.e(f's_mov_b32 s33, {rb*18432}')
        for j in range(2):
            a.e(f'buffer_load_dword v{64+rb*2+j}, v{40+j}, s[4:7], s33 offen')
    WOP = 96
    for e in range(20):
        if e*1280 <= 4095:
            a.e(f'buffer_load_dwordx4 v[{WOP+4*e}:{WOP+4*e+3}], v46, s[8:11], 0 offen offset:{e*1280}')
        else:
            a.e(f's_mov_b32 s33, {e*1280}')
            a.e(f'buffer_load_dwordx4 v[{WOP+4*e}:{WOP+4*e+3}], v46, s[8:11], s33 offen')
    PQR = 50
    for m in range(5):
        a.e(f'buffer_load_dwordx2 v[{PQR+2*m}:{PQR+2*m+1}], v49, s[16:19], s{40+m} offen')
    a.e('s_waitcnt vmcnt(25)')
    for j in range(2):
        for rb in range(1, 16):
            a.e(f'v_add_f32 v{64+j}, v{64+j}, v{64+rb*2+j}')
        rnd1(a, 64+j)
        a.e(f'ds_write_b32 v{44+j}, v{64+j}')
    a.e('s_waitcnt lgkmcnt(0)')
    a.e('s_barrier')
    KVR, ZR = 64, 176
    for q in range(5):
        a.e(f'ds_read_b128 v[{KVR+4*q}:{KVR+4*q+3}], v48 offset:{16*q}')
    a.e('v_mov_b32 v6, 0')
    for q in range(5):
        a.e(f'ds_read_b128 v[{ZR+4*q}:{ZR+4*q+3}], v6 offset:{1600+16*q}')
    a.e('s_waitcnt vmcnt(0) lgkmcnt(0)')
    XQ = 196
    for i in range(10):
        unpack(a, XQ+2*i, XQ+2*i+1, PQR+i)
    a.e(f'v_mul_f32 v10, v{XQ}, v{ZR}')
    for i in range(1, 20):
        a.e(f'v_fmac_f32 v10, v{XQ+i}, v{ZR+i}')
    rnd1(a, 10)
    a.e(f'v_add_f32 v10, {hx(f2u(1e-6))}, v10')
    rnd1(a, 10)
    a.e('v_rcp_f32 v10, v10')
    for i in range(10):
        a.e(f'v_mul_f32 v{XQ+2*i}, v{XQ+2*i}, v10')
        a.e(f'v_mul_f32 v{XQ+2*i+1}, v{XQ+2*i+1}, v10')
        a.e(f'v_cvt_pk_bf16_f32 v{PQR+i}, v{XQ+2*i}, v{XQ+2*i+1}')
    for m in range(5):
        a.e(f'buffer_store_dwordx2 v[{PQR+2*m}:{PQR+2*m+1}], v49, s[28:31], s{40+m} offen')
    AC = 84
    for e in range(20):
        for c2 in range(4):
            unpack(a, 6, 7, WOP+4*e+c2)
            if e == 0:
                a.e(f'v_mul_f32 v{AC+2*c2}, v{KVR+e}, v6')
                a.e(f'v_mul_f32 v{AC+2*c2+1}, v{KVR+e}, v7')
            else:
                a.e(f'v_fmac_f32 v{AC+2*c2}, v{KVR+e}, v6')
                a.e(f'v_fmac_f32 v{AC+2*c2+1}, v{KVR+e}, v7')
    for c2 in range(4):
        a.e(f'v_cvt_pk_bf16_f32 v{92+c2}, v{AC+2*c2}, v{AC+2*c2+1}')
    a.e('v_cmp_gt_u32 vcc, 200, v0')
    a.e('s_and_saveexec_b64 s[46:47], vcc')
    a.e('buffer_store_dwordx4 v[92:95], v47, s[12:15], 0 offen')
    a.label('K1B_END')
    a.e('s_endpgm')
    return a, 216

K2_STEPS = [
  [('h',i) for i in range(0,7)]  + [('a',i) for i in range(0,2)],
  [('h',i) for i in range(7,13)] + [('a',i) for i in range(2,5)],
  [('h',i) for i in range(13,19)]+ [('a',i) for i in range(5,7)],
  [('h',i) for i in range(19,24)]+ [('a',i) for i in range(7,10)],
]
A2, BF2, ACC2 = 40, 136, 168

def k2_wave(a, w):
    st_ = St(a); st_.n = 1
    st_()
    steps = K2_STEPS[w]
    n = len(steps)
    def issue_list(si):
        src, ks = steps[si]
        b = A2 + (si % 3)*32
        L = []
        for rt in range(4):
            for kh in range(2):
                r0 = b + (rt*2+kh)*4
                if src == 'h':
                    L.append([f's_mov_b32 s32, {ks*2048}', f'buffer_load_dwordx4 v[{r0}:{r0+3}], v{6+rt}, s[4:7], s32 offen offset:{kh*1024}'])
                else:
                    L.append([f's_mov_b32 s32, {ks*2048}', f'buffer_load_dwordx4 v[{r0}:{r0+3}], v{10+rt}, s[8:11], s32 offen offset:{kh*1024}'])
        for i in range(10):
            L.append([f's_mov_b32 s33, {ks*81920}', f's_mov_b32 m0, {w*30720 + (si%3)*10240 + i*1024}',
                      f'buffer_load_dwordx4 v{14+i}, s[{12 if src=="h" else 16}:{15 if src=="h" else 19}], s33 offen lds'])
        return L
    def emit(L):
        for grp in L:
            for x in grp: a.e(x)
    def rd(si, t):
        bb = BF2 + (t % 4)*8
        for hq in range(4):
            a.e(f'ds_read_b64_tr_b16 v[{bb+2*hq}:{bb+2*hq+1}], v24 offset:{(si%3)*10240 + (32*(hq>>1)+16*(hq&1))*160 + 32*t}')
    emit(issue_list(0)); emit(issue_list(1))
    for si in range(n):
        a.e(f's_waitcnt vmcnt({18 if si+1 < n else 0})')
        st_()
        rd(si, 0); rd(si, 1); rd(si, 2)
        L = issue_list(si+2) if si+2 < n else []
        if 'burst' in X: emit(L); L = []
        ab = A2 + (si % 3)*32
        for t in range(5):
            if t+3 < 5: rd(si, t+3)
            infl = min(4, t+3) - t
            a.e(f's_waitcnt lgkmcnt({4*infl})')
            bb = BF2 + (t % 4)*8
            for kh in range(2):
                for rt in range(4):
                    d = ACC2 + (rt*5 + t)*4
                    A_ = f'v[{ab+(rt*2+kh)*4}:{ab+(rt*2+kh)*4+3}]'
                    B_ = f'v[{bb+kh*4}:{bb+kh*4+3}]'
                    C_ = '0' if (si == 0 and kh == 0) else f'v[{d}:{d+3}]'
                    a.e(f'v_mfma_f32_16x16x32_bf16 v[{d}:{d+3}], {B_}, {A_}, {C_}')
                    if rt % 2 == 1 and L: emit([L.pop(0)])
        emit(L)
    st_()
    XB = A2 + 64 if ((n-1) % 3) != 2 else A2 + 32
    RR = [r for r in range(A2, A2+96, 4) if not (XB <= r < XB+20)]
    a.e(f'v_add_u32 v30, {w*16*1280}, v28')
    for t in range(5):
        a.e(f'buffer_load_dwordx2 v[{XB+2*t}:{XB+2*t+1}], v30, s[48:51], 0 offen offset:{32*t}')
        a.e(f'buffer_load_dwordx2 v[{XB+10+2*t}:{XB+11+2*t}], v29, s[28:31], 0 offen offset:{32*t}')
    a.e('s_barrier')
    for rt in range(4):
        if rt == w: continue
        for t in range(5):
            d = ACC2 + (rt*5+t)*4
            off = w*20480 + (rt*5+t)*1024
            if off < 65536: a.e(f'ds_write_b128 v26, v[{d}:{d+3}] offset:{off}')
            else: a.e(f'ds_write_b128 v27, v[{d}:{d+3}] offset:{off-65536}')
    a.e('s_waitcnt lgkmcnt(0)')
    a.e('s_barrier')
    k = 0
    for ws_ in range(4):
        if ws_ == w: continue
        for t in range(5):
            off = ws_*20480 + (w*5+t)*1024
            r0 = RR[k*5+t]
            if off < 65536: a.e(f'ds_read_b128 v[{r0}:{r0+3}], v26 offset:{off}')
            else: a.e(f'ds_read_b128 v[{r0}:{r0+3}], v27 offset:{off-65536}')
        k += 1
    a.e('s_waitcnt vmcnt(0) lgkmcnt(0)')
    for t in range(5):
        d = ACC2 + (w*5+t)*4
        for q in range(4):
            a.e(f'v_add_f32 v{RR[t]+q}, v{RR[t]+q}, v{RR[5+t]+q}')
            a.e(f'v_add_f32 v{d+q}, v{d+q}, v{RR[10+t]+q}')
            a.e(f'v_add_f32 v{d+q}, v{d+q}, v{RR[t]+q}')
        for hf in range(2):
            unpack(a, 32, 33, XB+2*t+hf)
            unpack(a, 34, 35, XB+10+2*t+hf)
            a.e(f'v_add_f32 v{d+2*hf}, v{d+2*hf}, v34')
            a.e(f'v_add_f32 v{d+2*hf+1}, v{d+2*hf+1}, v35')
            a.e(f'v_add_f32 v{d+2*hf}, v{d+2*hf}, v32')
            a.e(f'v_add_f32 v{d+2*hf+1}, v{d+2*hf+1}, v33')
            a.e(f'v_cvt_pk_bf16_f32 v{36+hf}, v{d+2*hf}, v{d+2*hf+1}')
        a.e(f'buffer_store_dwordx2 v[36:37], v30, s[36:39], 0 offen offset:{32*t}')
    if STAMP:
        a.e('s_waitcnt vmcnt(0)')
        st_(); st_.dump(40, 2)
    a.e('s_branch K2_END')

def gen_k2():
    a = Asm()
    kernel_head(a, 'k2_kernel')
    a.e('s_cmp_ge_u32 s2, 256')
    a.e('s_cbranch_scc1 K2_END')
    St(a)()
    a.e('s_load_dwordx2 s[24:25], s[0:1], 80')
    a.e('s_load_dwordx2 s[26:27], s[0:1], 48')
    a.e('s_load_dwordx2 s[48:49], s[0:1], 0')
    a.e('s_load_dwordx2 s[28:29], s[0:1], 56')
    a.e('s_load_dwordx2 s[36:37], s[0:1], 64')
    lane_decomp(a)
    a.e('s_mov_b32 s40, s20')
    a.e('s_and_b32 s41, s2, 3')
    a.e('s_lshl_b32 s41, s41, 3')
    a.e('s_bfe_u32 s42, s2, 0x30003')
    a.e('s_add_u32 s41, s41, s42')
    a.e('s_bfe_u32 s42, s2, 0x10002')
    a.e('s_lshl_b32 s42, s42, 2')
    a.e('s_lshr_b32 s43, s2, 6')
    a.e('s_add_u32 s42, s42, s43')
    a.e('s_waitcnt lgkmcnt(0)')
    srd(a, 4, 24, 25, H, SZ_H)
    srd(a, 8, 24, 25, PQS, SZ_ACT)
    srd(a, 12, 26, 27, 0, 1536*640*2)
    srd(a, 16, 24, 25, MM, SZ_MM)
    srd(a, 48, 48, 49, 0, SZ_ACT)
    srd(a, 28, 28, 29, 0, 1280)
    srd(a, 36, 36, 37, 0, SZ_ACT)
    a.e('s_lshl_b32 s43, s41, 6')
    a.e('s_mul_i32 s44, s42, 160')
    a.e('v_lshlrev_b32 v26, 4, v1')
    a.e('v_add_u32 v27, 65536, v26')
    a.e('s_mul_i32 s45, s41, 196608')
    a.e('v_add_u32 v6, s45, v26')
    a.e('s_mul_i32 s45, s41, 81920')
    a.e('v_add_u32 v10, s45, v26')
    for rt in range(1, 4):
        a.e(f'v_add_u32 v{6+rt}, {rt*49152}, v6')
        a.e(f'v_add_u32 v{10+rt}, {rt*20480}, v10')
    a.e('v_add_u32 v30, s43, v3')
    a.e('v_mul_u32_u24 v28, 1280, v30')
    a.e('v_lshl_add_u32 v28, v2, 3, v28')
    a.e('v_add_u32 v28, s44, v28')
    a.e('v_lshlrev_b32 v29, 3, v2')
    a.e('v_add_u32 v29, s44, v29')
    for i in range(10):
        a.e(f'v_add_u32 v30, {64*i}, v1')
        a.e('v_mul_u32_u24 v31, 6554, v30')
        a.e('v_lshrrev_b32 v31, 16, v31')
        a.e('v_mul_u32_u24 v32, 10, v31')
        a.e('v_sub_u32 v32, v30, v32')
        a.e(f'v_mul_u32_u24 v{14+i}, 1280, v31')
        a.e(f'v_lshl_add_u32 v{14+i}, v32, 4, v{14+i}')
        a.e(f'v_add_u32 v{14+i}, s44, v{14+i}')
    a.e('v_lshl_add_u32 v30, v2, 2, v4')
    a.e('v_mul_u32_u24 v30, 160, v30')
    a.e('v_lshl_add_u32 v30, v5, 3, v30')
    a.e('s_mul_i32 s45, s40, 30720')
    a.e('v_add_u32 v24, s45, v30')
    a.e('s_cmp_eq_u32 s40, 1'); a.e('s_cbranch_scc1 K2_W1')
    a.e('s_cmp_eq_u32 s40, 2'); a.e('s_cbranch_scc1 K2_W2')
    a.e('s_cmp_eq_u32 s40, 3'); a.e('s_cbranch_scc1 K2_W3')
    k2_wave(a, 0)
    for w in (1,2,3):
        a.label(f'K2_W{w}')
        k2_wave(a, w)
    a.label('K2_END')
    a.e('s_endpgm')
    return a, 256 if STAMP else 248

if __name__ == '__main__':
    ks = [('k0_kernel', gen_k0()), ('k1_kernel', gen_k1()), ('k1b_kernel', gen_k1b()), ('k2_kernel', gen_k2())]
    ls = ['; @launch kernel=k0_kernel grid=(256,1,1) block=(256,1,1) lds=0',
          f'; @launch kernel=k1_kernel grid=(256,1,1) block=(256,1,1) lds={K1_LDS}',
          '; @launch kernel=k1b_kernel grid=(256,1,1) block=(256,1,1) lds=2048',
          '; @launch kernel=k2_kernel grid=(256,1,1) block=(256,1,1) lds=122880']
    build(ks, ls, os.environ.get('OUT', 'k.s'))
```

```python
import sys, os
sys.path.insert(0, 'work')
from gen import *
from gen_k1 import lane_decomp, unpack, C1, C2, KV_PAIRS
X = os.environ.get('KX', '')
STAMP = 'stamp' in X

FLG = 0x1400000
FH_O, FQ_O, FM_O, STS_O, CSM_O = 0x0, 0x1000, 0x2000, 0x10000, 0x20000
AOFF = 98304
CSL = 147456
K1B_L = 122880
LDS_TOTAL = 147456 + 256
SC = ' sc1'

class St:
    n = 0
    def __init__(self, a): self.a = a
    def __call__(self, n=None):
        if not STAMP: return
        a = self.a
        if n is None:
            n = St.n; St.n += 1
        a.e('s_memtime s[96:97]')
        a.e('s_waitcnt lgkmcnt(0)')
        a.e(f'v_writelane_b32 v255, s96, {n}')
    def real(self, n):
        if not STAMP: return
        a = self.a
        a.e('s_memrealtime s[96:97]')
        a.e('s_waitcnt lgkmcnt(0)')
        a.e(f'v_writelane_b32 v255, s96, {n}')
    def dump(self):
        if not STAMP: return
        a = self.a
        self.real(63)
        srd(a, 92, 76, 77, 0x3000000, 0x40000)
        a.e('s_lshl_b32 s96, s2, 10')
        a.e('v_lshlrev_b32 v254, 2, v0')
        a.e('v_add_u32 v254, s96, v254')
        a.e('buffer_store_dword v255, v254, s[92:95], 0 offen')

_lab = [0]
def newlab(p):
    _lab[0] += 1
    return f'{p}_{_lab[0]}'

def poll_check(a, regs, want, reload, sleep=True):
    L = newlab('PL'); D = newlab('PD')
    a.e('s_mov_b32 s98, 0')
    a.label(L)
    t = regs[0]
    for r in regs[1:]:
        a.e(f'v_and_b32 v{t}, v{t}, v{r}')
    a.e(f'v_cmp_ne_u32 vcc, {want}, v{t}')
    a.e(f's_cbranch_vccz {D}')
    a.e('s_add_u32 s98, s98, 1')
    a.e('s_cmp_ge_u32 s98, 0x40000')
    a.e(f's_cbranch_scc1 {D}')
    if sleep: a.e('s_sleep 4')
    a.e(reload)
    a.e('s_waitcnt vmcnt(0)')
    a.e(f's_branch {L}')
    a.label(D)

def ln_stats(a, Xr, P, S, T, U):
    a.e(f'v_add_f32 v{S}, v{Xr}, v{Xr+1}')
    a.e(f'v_add_f32 v{T}, v{Xr+2}, v{Xr+3}')
    for i in range(4, 20, 2):
        a.e(f'v_add_f32 v{S}, v{S}, v{Xr+i}')
        a.e(f'v_add_f32 v{T}, v{T}, v{Xr+i+1}')
    a.e(f'v_add_f32 v{S}, v{S}, v{T}')
    allreduce32(a, S, T)
    a.e(f'v_mul_f32 v{S}, {hx(f2u(1.0/640))}, v{S}')
    a.e(f'v_sub_f32 v{P}, v{Xr}, v{S}')
    a.e(f'v_mul_f32 v{T}, v{P}, v{P}')
    a.e(f'v_sub_f32 v{P+1}, v{Xr+1}, v{S}')
    a.e(f'v_mul_f32 v{U}, v{P+1}, v{P+1}')
    for i in range(2, 20, 2):
        a.e(f'v_sub_f32 v{P}, v{Xr+i}, v{S}')
        a.e(f'v_fmac_f32 v{T}, v{P}, v{P}')
        a.e(f'v_sub_f32 v{P+1}, v{Xr+i+1}, v{S}')
        a.e(f'v_fmac_f32 v{U}, v{P+1}, v{P+1}')
    a.e(f'v_add_f32 v{T}, v{T}, v{U}')
    allreduce32(a, T, U)
    a.e(f'v_mul_f32 v{T}, {hx(f2u(1.0/640))}, v{T}')
    rnd1(a, S); rnd1(a, T)
    a.e(f'v_add_f32 v{T}, {hx(f2u(1e-5))}, v{T}')
    rnd1(a, T)
    a.e(f'v_sqrt_f32 v{T}, v{T}')
    rnd1(a, T)
    a.e(f'v_rcp_f32 v{T}, v{T}')

def ln_norm(a, Xr, P, S, T):
    for i in range(0, 20, 2):
        p = P + i//2
        a.e(f'v_sub_f32 v{Xr+i}, v{Xr+i}, v{S}')
        a.e(f'v_sub_f32 v{Xr+i+1}, v{Xr+i+1}, v{S}')
        a.e(f'v_cvt_pk_bf16_f32 v{p}, v{Xr+i}, v{Xr+i+1}')
        a.e(f'v_lshlrev_b32 v{Xr+i}, 16, v{p}')
        a.e(f'v_and_b32 v{Xr+i+1}, 0xffff0000, v{p}')
        a.e(f'v_mul_f32 v{Xr+i}, v{Xr+i}, v{T}')
        a.e(f'v_mul_f32 v{Xr+i+1}, v{Xr+i+1}, v{T}')
        a.e(f'v_cvt_pk_bf16_f32 v{p}, v{Xr+i}, v{Xr+i+1}')
        a.e(f'v_lshlrev_b32 v{Xr+i}, 16, v{p}')
        a.e(f'v_and_b32 v{Xr+i+1}, 0xffff0000, v{p}')

ABUF, BF, ACC = 32, 48, 80
BIAS = 176
CSH = 224
PX, PXX, PP = 80, 90, 110
PC = 128

def gelu4(a, d, o, t, sC1, vC2, va, vb, cs, bias):
    for q in range(4): a.e(f'v_fma_f32 v{t+q}, v{vb}, v{cs+q}, v{bias+q}')
    for q in range(4): a.e(f'v_fma_f32 v{d+q}, v{d+q}, v{va}, v{t+q}')
    for q in range(4): a.e(f'v_mul_f32 v{t+q}, v{d+q}, v{d+q}')
    for q in range(4): a.e(f'v_fma_f32 v{t+q}, v{t+q}, v{vC2}, s{sC1}')
    for q in range(4): a.e(f'v_mul_f32 v{t+q}, v{t+q}, v{d+q}')
    for q in range(4): a.e(f'v_exp_f32 v{t+q}, v{t+q}')
    for q in range(4): a.e(f'v_add_f32 v{t+q}, 1.0, v{t+q}')
    for q in range(4): a.e(f'v_rcp_f32 v{t+q}, v{t+q}')
    for q in range(4): a.e(f'v_mul_f32 v{d+q}, v{d+q}, v{t+q}')
    a.e(f'v_cvt_pk_bf16_f32 v{o}, v{d}, v{d+1}')
    a.e(f'v_cvt_pk_bf16_f32 v{o+1}, v{d+2}, v{d+3}')

def phi4(a, d, o, t, sL, vEps, va, vb, cs):
    for q in range(4): a.e(f'v_fma_f32 v{t+q}, v{vb[q]}, v{cs[q]}, v{vEps}')
    for q in range(4): a.e(f'v_fma_f32 v{d+q}, v{d+q}, v{va[q]}, v{t+q}')
    for q in range(4): a.e(f'v_mul_f32 v{t+q}, s{sL}, v{d+q}')
    for q in range(4): a.e(f'v_exp_f32 v{t+q}, v{t+q} clamp')
    for q in range(4): a.e(f'v_max_f32 v{d+q}, v{d+q}, v{vEps}')
    for q in range(4): a.e(f'v_add_f32 v{d+q}, v{d+q}, v{t+q}')
    a.e(f'v_cvt_pk_bf16_f32 v{o}, v{d}, v{d+1}')
    a.e(f'v_cvt_pk_bf16_f32 v{o+1}, v{d+2}, v{d+3}')

def p0_loads(a):
    a.e('v_lshrrev_b32 v24, 5, v0')
    a.e('v_and_b32 v25, 31, v0')
    a.e('s_lshl_b32 s3, s2, 3')
    a.e('v_add_u32 v24, s3, v24')
    a.e('v_mul_u32_u24 v26, 1280, v24')
    a.e('v_lshl_add_u32 v26, v25, 3, v26')
    for i in range(5):
        a.e(f'buffer_load_dwordx2 v[{PX+2*i}:{PX+1+2*i}], v26, s[88:91], 0 offen offset:{256*i}')
    a.e('v_lshlrev_b32 v125, 13, v25')
    a.e('v_lshl_add_u32 v125, v24, 2, v125')
    a.e('v_mov_b32 v126, v25')
    a.e('s_min_u32 s3, s2, 215')
    a.e('s_cmp_lt_u32 s3, 120')
    a.e('s_cselect_b32 s40, s26, s28')
    a.e('s_cselect_b32 s41, s27, s29')
    a.e('s_movk_i32 s36, 3072')
    a.e('s_cselect_b32 s36, 3840, s36')
    a.e('s_mov_b32 s42, %d' % (640*1536*2))
    a.e('s_cselect_b32 s42, %d, s42' % (640*1920*2))
    a.e('s_cselect_b32 s37, 0, 120')
    a.e('s_mov_b32 s43, 0x00020000')
    a.e('s_sub_u32 s37, s3, s37')
    a.e('s_lshl_b32 s37, s37, 5')
    a.e('s_lshl_b32 s38, s3, 6')
    a.e('s_mul_i32 s39, s20, 160')
    a.e('v_lshrrev_b32 v26, 1, v1')
    a.e('v_add_u32 v26, s39, v26')
    a.e('v_mul_lo_u32 v26, v26, s36')
    a.e('v_and_b32 v27, 1, v1')
    a.e('v_lshl_add_u32 v26, v27, 4, v26')
    a.e('v_add_u32 v26, s37, v26')
    a.e('s_lshl_b32 s36, s36, 5')
    a.e('s_mov_b32 s37, 0')
    for i in range(5):
        a.e(f'buffer_load_dwordx4 v[{PC+4*i}:{PC+4*i+3}], v26, s[40:43], s37 offen')
        if i < 4: a.e('s_add_u32 s37, s37, s36')
    a.e('v_lshlrev_b32 v127, 5, v27')
    a.e('s_lshl_b32 s39, s20, 6')
    a.e('v_add_u32 v127, s39, v127')

def p0_compute(a, n_after_x, n_after_cs):
    a.e(f's_waitcnt vmcnt({n_after_x})')
    for i in range(10):
        a.e(f'v_lshlrev_b32 v{PXX+2*i}, 16, v{PX+i}')
        a.e(f'v_and_b32 v{PXX+2*i+1}, 0xffff0000, v{PX+i}')
    ln_stats(a, PXX, PP, 120, 121, 122)
    ln_norm(a, PXX, PP, 120, 121)
    a.e('v_mul_f32 v123, v120, v121')
    a.e('v_sub_f32 v123, 0, v123')
    a.e('v_mov_b32 v124, v121')
    ln_stats(a, PXX, PP, 120, 121, 122)
    a.e('v_mul_f32 v122, v124, v121')
    a.e('v_sub_f32 v120, v123, v120')
    a.e('v_mul_f32 v120, v120, v121')
    a.e('v_cmp_eq_u32 vcc, 1, v126')
    a.e('v_cndmask_b32 v124, v124, v123, vcc')
    a.e('v_cmp_eq_u32 vcc, 2, v126')
    a.e('v_cndmask_b32 v124, v124, v122, vcc')
    a.e('v_cmp_eq_u32 vcc, 3, v126')
    a.e('v_cndmask_b32 v124, v124, v120, vcc')
    a.e('v_cmp_gt_u32 vcc, 4, v126')
    a.e('s_and_saveexec_b64 s[44:45], vcc')
    a.e(f'buffer_store_dword v124, v125, s[80:83], s46 offen{SC}')
    a.e('s_mov_b64 exec, s[44:45]')
    a.e(f's_waitcnt vmcnt({n_after_cs + 1})')
    A0 = 148
    for i in range(5):
        for c2 in range(4):
            if i == 0:
                unpack(a, A0+2*c2, A0+2*c2+1, PC+c2)
            else:
                unpack(a, 156, 157, PC+4*i+c2)
                a.e(f'v_add_f32 v{A0+2*c2}, v{A0+2*c2}, v156')
                a.e(f'v_add_f32 v{A0+2*c2+1}, v{A0+2*c2+1}, v157')
    for r in (8, 4, 2):
        for c in range(8):
            a.e(f'v_add_f32_dpp v{A0+c}, v{A0+c}, v{A0+c} row_ror:{r} row_mask:0xf bank_mask:0xf')
    for sw in ('v_permlane16_swap_b32', 'v_permlane32_swap_b32'):
        for c in range(8): a.e(f'v_mov_b32 v{156+c}, v{A0+c}')
        for c in range(8): a.e(f'{sw} v{A0+c}, v{156+c}')
        for c in range(8): a.e(f'v_add_f32 v{A0+c}, v{A0+c}, v{156+c}')
    a.e(f'v_add_u32 v127, {CSL}, v127')
    a.e(f'ds_write_b128 v127, v[{A0}:{A0+3}]')
    a.e(f'ds_write_b128 v127, v[{A0+4}:{A0+7}] offset:16')
    a.e('s_waitcnt lgkmcnt(0)')

def k1_type(a, typ):
    st_ = St(a)
    NT = 12 if typ == 'H' else 15
    ldb = 3072 if typ == 'H' else 3840
    RB = 32*NT
    SB = 24576 if typ == 'H' else 32768
    ND = 6 if typ == 'H' else 8
    NLD = 4 + ND
    T = typ
    if typ == 'H':
        srd(a, 8, 28, 29, 0, 640*1536*2)
        srd(a, 12, 24, 25, H, SZ_H)
        srd(a, 16, 30, 31, 0, 1536*2)
        a.e('s_mul_i32 s35, s22, 384')
    else:
        srd(a, 8, 26, 27, 0, 640*1920*2)
        srd(a, 12, 24, 25, PQ, SZ_ACT)
        srd(a, 16, 24, 25, KVP, SZ_KVP)
        a.e('s_mul_i32 s35, s22, 160')
    a.e('s_lshl_b32 s23, s21, 3')
    a.e('s_lshl_b32 s36, s20, 1')
    a.e('s_add_u32 s23, s23, s36')
    nbias = 0
    if typ == 'H':
        a.e('v_lshlrev_b32 v24, 3, v2')
        a.e('v_add_u32 v24, s35, v24')
        for t in range(NT):
            a.e(f'buffer_load_dwordx2 v[{CSH+2*t}:{CSH+2*t+1}], v24, s[16:19], 0 offen offset:{32*t}')
        nbias = NT
    a.e('s_mul_i32 s36, s23, 20480')
    a.e('v_lshrrev_b32 v24, 3, v1')
    a.e('v_mul_u32_u24 v25, 1280, v24')
    a.e('v_add_u32 v25, s36, v25')
    a.e('v_and_b32 v26, 7, v1')
    a.e('v_xor_b32 v26, v26, v2')
    a.e('v_lshl_add_u32 v6, v26, 4, v25')
    a.e('v_xor_b32 v26, 4, v26')
    a.e('v_lshl_add_u32 v7, v26, 4, v25')
    a.e(f'v_add_u32 v7, {8*1280}, v7')
    a.e(f'v_add_u32 v8, {16*1280}, v6')
    a.e(f'v_add_u32 v9, {16*1280}, v7')
    a.e('s_lshl_b32 s47, s20, 12')
    a.e(f's_add_u32 s47, s47, {AOFF}')
    a.e(f's_mul_i32 s36, s20, {ND*64}')
    a.e(f's_mul_i32 s34, s20, {ND*1024}')
    upr = 2*NT
    magic = {24: 43691, 30: 34953}[upr]
    BO = 10
    for i in range(ND):
        a.e(f'v_add_u32 v24, s36, v1')
        if i: a.e(f'v_add_u32 v24, {64*i}, v24')
        if typ != 'H' and i >= 6:
            a.e('v_subrev_u32 v25, 128, v24')
            a.e('v_cmp_lt_u32 vcc, 1919, v24')
            a.e('v_cndmask_b32 v24, v24, v25, vcc')
        a.e(f'v_mul_u32_u24 v25, {magic}, v24')
        a.e('v_lshrrev_b32 v25, 20, v25')
        a.e(f'v_mul_u32_u24 v26, {upr}, v25')
        a.e('v_sub_u32 v26, v24, v26')
        a.e('v_bfe_u32 v27, v25, 2, 1')
        a.e('v_bfe_u32 v28, v25, 3, 1')
        a.e('v_xor_b32 v27, v27, v28')
        a.e('v_mul_u32_u24 v27, 12, v27')
        a.e('v_xor_b32 v27, v27, v25')
        a.e(f'v_mul_u32_u24 v{BO+i}, {ldb}, v27')
        if typ == 'H':
            a.e('v_bfe_u32 v28, v25, 1, 2')
            a.e('v_lshlrev_b32 v28, 1, v28')
            a.e('v_xor_b32 v26, v26, v28')
            a.e(f'v_lshl_add_u32 v{BO+i}, v26, 4, v{BO+i}')
        else:
            a.e(f'v_lshl_add_u32 v{BO+i}, v26, 4, v{BO+i}')
            a.e('v_mul_u32_u24 v28, 6554, v26')
            a.e('v_lshrrev_b32 v28, 16, v28')
            a.e('v_mul_u32_u24 v28, 1120, v28')
            a.e(f'v_add_u32 v{BO+i}, v28, v{BO+i}')
        a.e(f'v_add_u32 v{BO+i}, s35, v{BO+i}')
    def issue_list(ks):
        L = []
        st = ks % 3
        for i in range(4):
            L.append([f's_mov_b32 s32, {ks*128}', f's_add_u32 m0, s47, {st*16384 + i*1024}',
                      f'buffer_load_dwordx4 v{6+i}, s[88:91], s32 offen lds'])
        for i in range(ND):
            L.append([f's_mov_b32 s33, {ks*64*ldb}', f's_add_u32 m0, s34, {st*SB + i*1024}',
                      f'buffer_load_dwordx4 v{BO+i}, s[8:11], s33 offen lds'])
        return L
    def emit(L):
        for grp in L:
            for x in grp: a.e(x)
    emit(issue_list(0)); emit(issue_list(1))
    a.e('v_mov_b32 v24, 0')
    if typ == 'H':
        a.e('s_lshl_b32 s48, s21, 7')
        a.e('s_lshl_b32 s36, s22, 2')
        a.e('s_add_u32 s48, s48, s36')
    else:
        a.e('s_lshl_b32 s48, s21, 5')
        a.e('s_lshl_b32 s36, s22, 2')
        a.e('s_add_u32 s48, s48, s36')
        a.e(f's_add_u32 s48, s48, {FQ_O}')
    a.e(f'buffer_store_dword v24, v24, s[80:83], s48 offen{SC}')
    a.e('s_lshl_b32 s49, s2, 2')
    a.e(f's_add_u32 s49, s49, {FM_O}')
    a.e(f'buffer_store_dword v24, v24, s[80:83], s49 offen{SC}')
    a.e('v_lshrrev_b32 v24, 1, v2')
    a.e('v_lshlrev_b32 v24, 4, v24')
    a.e('v_and_b32 v25, 1, v2')
    a.e('v_lshl_add_u32 v24, v25, 2, v24')
    a.e('v_add_u32 v24, v24, v4')
    a.e(f'v_mul_u32_u24 v24, {RB}, v24')
    a.e('v_lshl_add_u32 v24, v5, 3, v24')
    if typ == 'H':
        a.e('v_lshrrev_b32 v26, 1, v4')
        a.e('v_lshl_or_b32 v25, v25, 1, v26')
        for m in range(4):
            a.e(f'v_xor_b32 v26, {m}, v25')
            a.e(f'v_subrev_u32 v26, {m}, v26')
            a.e(f'v_lshl_add_u32 v{18+m}, v26, 5, v24')
        nb = 4
    else:
        a.e('v_mov_b32 v18, v24')
        a.e('v_add_u32 v19, 65536, v24')
        nb = 1
    a.e('v_lshrrev_b32 v24, 1, v3')
    a.e('v_xor_b32 v24, v24, v2')
    a.e('v_lshlrev_b32 v24, 4, v24')
    a.e('v_lshl_add_u32 v24, v3, 7, v24')
    a.e('v_add_u32 v22, s47, v24')
    a.e('v_xor_b32 v24, 64, v24')
    a.e('v_add_u32 v23, s47, v24')
    a.e(f's_mov_b32 s46, {STS_O}')
    p0_compute(a, 5 + nbias + 2*NLD + 2, nbias + 2*NLD + 2)
    if typ == 'H':
        a.e(f's_waitcnt vmcnt({2*NLD + 3})')
        for t in range(NT):
            unpack(a, BIAS+4*t, BIAS+4*t+1, CSH+2*t)
            unpack(a, BIAS+4*t+2, BIAS+4*t+3, CSH+2*t+1)
    def rd1(ks, t, hq):
        st = ks % 3; bb = BF + (t % 4)*8
        off = st*SB + (32*(hq>>1) + 8*(hq&1))*RB + 32*t
        base = 18 + (t % nb)
        if off >= 65536:
            assert nb == 1
            off -= 65536; base = 19
        a.e(f'ds_read_b64_tr_b16 v[{bb+2*hq}:{bb+2*hq+1}], v{base} offset:{off}')
    if typ == 'H':
        SA, SBr = 28, 30
        nst = 4 + 7
    else:
        CSQ, CSLN, SA, SBr, RA, RBr = 200, 220, 230, 232, 234, 242
        nst = 5 + 10 + 4 + 4
    for ks in range(10):
        w = {0: NLD+3, 7: NLD+1, 9: nst}.get(ks, NLD)
        a.e(f's_waitcnt vmcnt({w})')
        a.e('s_barrier')
        st_()
        if ks == 0:
            lb = newlab('CS')
            a.e('s_cmp_lg_u32 s20, 0')
            a.e(f's_cbranch_scc1 {lb}')
            a.e('v_lshlrev_b32 v24, 2, v3')
            a.e(f'v_add_u32 v25, {CSL}, v24')
            for wv in range(4):
                a.e(f'ds_read_b32 v{26+wv}, v25 offset:{64*wv}')
            a.e('s_waitcnt lgkmcnt(0)')
            a.e('v_add_f32 v26, v26, v27')
            a.e('v_add_f32 v28, v28, v29')
            a.e('v_add_f32 v26, v26, v28')
            a.e(f's_add_u32 s36, s38, {CSM_O}')
            a.e(f'buffer_store_dword v26, v24, s[80:83], s36 offen{SC}')
            a.label(lb)
        if ks == 1:
            lb = newlab('F0')
            a.e('s_cmp_lg_u32 s20, 0')
            a.e(f's_cbranch_scc1 {lb}')
            a.e('v_mov_b32 v24, 1')
            a.e('v_mov_b32 v25, s2')
            a.e(f'buffer_store_byte v24, v25, s[84:87], 0 offen{SC}')
            a.label(lb)
        if ks == 8:
            poll_check(a, [24], '0x01010101', f'buffer_load_dword v24, v25, s[84:87], 0 offen{SC}')
            a.e('s_lshl_b32 s36, s23, 6')
            a.e('v_lshlrev_b32 v24, 2, v3')
            a.e('v_add_u32 v24, s36, v24')
            so = STS_O + (16384 if typ == 'H' else 0)
            a.e(f's_mov_b32 s37, {so}')
            a.e(f's_mov_b32 s39, {so + 8192}')
            for rt in range(2):
                a.e(f'buffer_load_dword v{SA+rt}, v24, s[80:83], s37 offen offset:{64*rt}{SC}')
                a.e(f'buffer_load_dword v{SBr+rt}, v24, s[80:83], s39 offen offset:{64*rt}{SC}')
            a.e('v_lshlrev_b32 v25, 4, v2')
            if typ == 'H':
                a.e('s_mul_i32 s40, s22, 768')
                a.e(f's_add_u32 s40, s40, {CSM_O + 1920*4}')
                for t in range(7):
                    a.e(f'buffer_load_dwordx4 v[{CSH+4*t}:{CSH+4*t+3}], v25, s[80:83], s40 offen offset:{64*t}{SC}')
            else:
                a.e('s_mul_i32 s40, s22, 320')
                a.e(f's_add_u32 s40, s40, {CSM_O}')
                for t in range(5):
                    a.e(f'buffer_load_dwordx4 v[{CSQ+4*t}:{CSQ+4*t+3}], v25, s[80:83], s40 offen offset:{64*t}{SC}')
                a.e('v_lshlrev_b32 v26, 2, v3')
                a.e('s_add_u32 s41, s40, 2560')
                a.e('s_add_u32 s42, s40, 5120')
                for t in range(10):
                    a.e(f'buffer_load_dword v{CSLN+t}, v26, s[80:83], s{41 if t < 5 else 42} offen offset:{64*(t%5)}{SC}')
                a.e('v_add_u32 v25, s36, v25')
                for rt in range(2):
                    a.e(f'buffer_load_dwordx4 v[{RA+4*rt}:{RA+4*rt+3}], v25, s[80:83], s37 offen offset:{64*rt}{SC}')
                    a.e(f'buffer_load_dwordx4 v[{RBr+4*rt}:{RBr+4*rt+3}], v25, s[80:83], s39 offen offset:{64*rt}{SC}')
        L = issue_list(ks+2) if ks+2 < 10 else []
        if ks == 6:
            L.append(['v_lshlrev_b32 v25, 2, v1', f'buffer_load_dword v24, v25, s[84:87], 0 offen{SC}'])
        st = ks % 3
        for rt in range(2):
            for kh in range(2):
                r0 = ABUF + (rt*2+kh)*4
                a.e(f'ds_read_b128 v[{r0}:{r0+3}], v{22+kh} offset:{st*16384 + rt*2048}')
        for t in range(3):
            for hq in range(4): rd1(ks, t, hq)
        ab = ABUF
        for t in range(NT):
            infl = min(NT-1, t+2) - t
            a.e(f's_waitcnt lgkmcnt({4*infl})')
            bb = BF + (t % 4)*8
            G = L.pop(0) if L else []
            n = 0
            for kh in range(2):
                for rt in range(2):
                    d = ACC + (rt*NT + t)*4
                    A_ = f'v[{ab+(rt*2+kh)*4}:{ab+(rt*2+kh)*4+3}]'
                    B_ = f'v[{bb+kh*4}:{bb+kh*4+3}]'
                    C_ = '0' if (ks == 0 and kh == 0) else f'v[{d}:{d+3}]'
                    if typ != 'H' and t >= 5:
                        a.e(f'v_mfma_f32_16x16x32_bf16 v[{d}:{d+3}], {A_}, {B_}, {C_}')
                    else:
                        a.e(f'v_mfma_f32_16x16x32_bf16 v[{d}:{d+3}], {B_}, {A_}, {C_}')
                    if t+3 < NT: rd1(ks, t+3, n)
                    if n == 2:
                        for x in G: a.e(x)
                    n += 1
        emit(L)
    st_()
    if typ == 'H':
        CS2 = 56
        for t in range(7, 12):
            a.e(f'buffer_load_dwordx4 v[{CS2+4*(t-7)}:{CS2+4*(t-7)+3}], v25, s[80:83], s40 offen offset:{64*t}{SC}')
        a.e('v_lshlrev_b32 v27, 4, v1')
        a.e('s_mul_i32 s36, s23, 49152')
        a.e('s_mul_i32 s37, s22, 6144')
        a.e('s_add_u32 s36, s36, s37')
        a.e('v_add_u32 v6, s36, v27')
        a.e('v_add_u32 v7, 4096, v6')
        a.e('v_add_u32 v8, 49152, v6')
        a.e('v_add_u32 v9, 53248, v6')
        a.e(f's_mov_b32 s36, {hx(f2u(C1))}')
        a.e(f'v_mov_b32 v26, {hx(f2u(C2))}')
        a.e('s_waitcnt vmcnt(5)')
        order = [(rt, u) for u in range(3) for rt in range(2)] + [(rt, u) for u in range(3, 6) for rt in range(2)]
        nstore = 0
        for idx, (rt, u) in enumerate(order):
            if idx == 6: a.e(f's_waitcnt vmcnt({nstore})')
            o = ABUF + (idx % 4)*4
            for hi in range(2):
                t = 2*u + hi
                cs = CSH + 4*t if t < 7 else CS2 + 4*(t-7)
                gelu4(a, ACC + (rt*NT + t)*4, o+2*hi, 48 + 4*hi, 36, 26, SA+rt, SBr+rt, cs, BIAS+4*t)
            a.e(f'buffer_store_dwordx4 v[{o}:{o+3}], v{6 + 2*rt + (0 if u < 4 else 1)}, s[12:15], 0 offen offset:{(u%4)*1024}{SC}')
            nstore += 1
    else:
        a.e('v_lshlrev_b32 v28, 4, v1')
        a.e('s_mul_i32 s36, s23, 20480')
        a.e('v_add_u32 v22, s36, v28')
        a.e('v_add_u32 v23, 20480, v22')
        a.e('s_mul_i32 s38, s22, 5')
        for t in range(5):
            a.e(f's_add_u32 s39, s38, {t}')
            a.e('s_lshr_b32 s40, s39, 1')
            a.e('s_lshl_b32 s40, s40, 10')
            a.e('s_and_b32 s39, s39, 1')
            a.e('s_lshl_b32 s39, s39, 3')
            a.e(f's_add_u32 s{41+t}, s40, s39')
        a.e(f's_mov_b32 s36, {hx(f2u(LOG2E))}')
        a.e(f'v_mov_b32 v26, {hx(f2u(1e-6))}')
        a.e('s_waitcnt vmcnt(0)')
        for rt in range(2):
            for t in range(5):
                d = ACC + (rt*NT + t)*4
                o = 6 + ((rt*5+t) % 2)*2
                phi4(a, d, o, 10 + 4*(t%2), 36, 26, [SA+rt]*4, [SBr+rt]*4, [CSQ+4*t+q for q in range(4)])
                a.e(f'buffer_store_dwordx2 v[{o}:{o+1}], v{22+rt}, s[12:15], s{41+t} offen{SC}')
        st_()
        OP = 32
        for t in range(10):
            for rt in range(2):
                d = ACC + (rt*NT + 5 + t)*4
                p = OP + 4*t + rt*2
                if t < 5:
                    phi4(a, d, p, 10 + 4*rt, 36, 26, [RA+4*rt+q for q in range(4)], [RBr+4*rt+q for q in range(4)], [CSLN+t]*4)
                else:
                    tt = 10 + 4*rt
                    for q in range(4): a.e(f'v_mul_f32 v{tt+q}, v{RBr+4*rt+q}, v{CSLN+t}')
                    for q in range(4): a.e(f'v_fma_f32 v{d+q}, v{d+q}, v{RA+4*rt+q}, v{tt+q}')
                    a.e(f'v_cvt_pk_bf16_f32 v{p}, v{d}, v{d+1}')
                    a.e(f'v_cvt_pk_bf16_f32 v{p+1}, v{d+2}, v{d+3}')
        for i in range(4):
            a.e(f'v_mov_b32 v{72+i}, 0x3f803f80')
        KA = ACC
        for n, (i, j) in enumerate(KV_PAIRS):
            a.e(f'v_mfma_f32_16x16x32_bf16 v[{KA+4*n}:{KA+4*n+3}], v[{OP+4*i}:{OP+4*i+3}], v[{OP+20+4*j}:{OP+20+4*j+3}], 0')
        for i in range(5):
            n = 13+i
            a.e(f'v_mfma_f32_16x16x32_bf16 v[{KA+4*n}:{KA+4*n+3}], v[{OP+4*i}:{OP+4*i+3}], v[72:75], 0')
        st_()
        a.e('s_barrier')
        a.e('s_mul_i32 s36, s20, 18432')
        a.e('v_add_u32 v23, s36, v28')
        for n in range(18):
            a.e(f'ds_write_b128 v23, v[{KA+4*n}:{KA+4*n+3}] offset:{1024*n}')
        a.e('s_waitcnt lgkmcnt(0)')
        a.e('s_barrier')
        st_()
        a.e('s_lshl_b32 s36, s20, 10')
        a.e('v_add_u32 v23, s36, v28')
        a.e('s_lshl_b32 s37, s22, 4')
        a.e('s_add_u32 s37, s37, s21')
        a.e('s_mul_i32 s37, s37, 18432')
        a.e('s_add_u32 s37, s37, s36')
        a.e('v_add_u32 v24, s37, v28')
        a.e('v_add_u32 v25, 55296, v23')
        for i in range(5):
            if i == 4:
                a.e('s_cmp_ge_u32 s20, 2')
                a.e('s_cbranch_scc1 K1_DONE')
            R = 32 + 16*i
            for wv in range(4):
                if wv < 3: a.e(f'ds_read_b128 v[{R+4*wv}:{R+3+4*wv}], v23 offset:{wv*18432 + i*4096}')
                else: a.e(f'ds_read_b128 v[{R+4*wv}:{R+3+4*wv}], v25 offset:{i*4096}')
            a.e('s_waitcnt lgkmcnt(0)')
            for q in range(4):
                a.e(f'v_add_f32 v{R+q}, v{R+q}, v{R+4+q}')
                a.e(f'v_add_f32 v{R+8+q}, v{R+8+q}, v{R+12+q}')
                a.e(f'v_add_f32 v{R+q}, v{R+q}, v{R+8+q}')
            a.e(f'buffer_store_dwordx4 v[{R}:{R+3}], v24, s[16:19], 0 offen{SC}')
            if i < 4: a.e('v_add_u32 v24, 4096, v24')
        a.e('s_branch K1_DONE')

def k1b(a):
    a.e('s_lshr_b32 s21, s2, 3')
    a.e('s_and_b32 s22, s2, 7')
    a.e('s_lshr_b32 s23, s21, 2')
    a.e('s_mul_i32 s23, s23, 294912')
    a.e('s_and_b32 s32, s21, 3')
    a.e('s_mul_i32 s32, s32, 20')
    t6, t7, t8, t9, t10, t11, t12, t13 = range(32, 40)
    a.e(f'v_lshlrev_b32 v{t6}, 3, v1')
    a.e(f's_mov_b32 s33, {FQ_O}')
    rl = f'buffer_load_dwordx2 v[216:217], v{t6}, s[80:83], s33 offen{SC}'
    a.e(rl)
    for j in range(2):
        o = 40 + j
        a.e(f'v_add_u32 v{t6}, {256*j}, v0')
        a.e(f'v_min_u32 v{t6}, 419, v{t6}')
        a.e(f'v_lshlrev_b32 v{44+j}, 2, v{t6}')
        a.e(f'v_add_u32 v{44+j}, {K1B_L}, v{44+j}')
        a.e(f'v_mul_u32_u24 v{t8}, 52429, v{t6}')
        a.e(f'v_lshrrev_b32 v{t8}, 20, v{t8}')
        a.e(f'v_mul_u32_u24 v{t9}, 20, v{t8}')
        a.e(f'v_sub_u32 v{t9}, v{t6}, v{t9}')
        a.e(f'v_cmp_lt_u32 vcc, 399, v{t6}')
        a.e(f'v_subrev_u32 v{t10}, 400, v{t6}')
        a.e(f'v_cndmask_b32 v{t8}, v{t8}, v{t10}, vcc')
        a.e(f'v_add_u32 v{t8}, s32, v{t8}')
        a.e(f'v_add_u32 v{t9}, s32, v{t9}')
        a.e(f'v_lshrrev_b32 v{t10}, 4, v{t8}')
        a.e(f'v_lshrrev_b32 v{t11}, 4, v{t9}')
        a.e(f'v_lshl_add_u32 v{t13}, v{t10}, 1, v{t11}')
        a.e(f'v_add_u32 v{t12}, 13, v{t10}')
        a.e(f'v_cndmask_b32 v{t13}, v{t13}, v{t12}, vcc')
        a.e(f'v_and_b32 v{t9}, 15, v{t9}')
        a.e(f'v_cndmask_b32 v{t9}, v{t9}, 0, vcc')
        a.e(f'v_bfe_u32 v{t12}, v{t8}, 2, 2')
        a.e(f'v_lshl_add_u32 v{t12}, v{t12}, 4, v{t9}')
        a.e(f'v_and_b32 v{t8}, 3, v{t8}')
        a.e(f'v_lshlrev_b32 v{o}, 10, v{t13}')
        a.e(f'v_lshl_add_u32 v{o}, v{t12}, 4, v{o}')
        a.e(f'v_lshl_add_u32 v{o}, v{t8}, 2, v{o}')
        a.e(f'v_add_u32 v{o}, s23, v{o}')
    a.e(f'v_min_u32 v{t6}, 199, v0')
    a.e(f'v_mul_u32_u24 v{t7}, 6554, v{t6}')
    a.e(f'v_lshrrev_b32 v{t7}, 16, v{t7}')
    a.e(f'v_mul_u32_u24 v{t8}, 10, v{t7}')
    a.e(f'v_sub_u32 v{t8}, v{t6}, v{t8}')
    a.e('s_mul_i32 s33, s21, 25600')
    a.e('s_mul_i32 s34, s22, 160')
    a.e('s_add_u32 s33, s33, s34')
    a.e(f'v_lshlrev_b32 v46, 4, v{t8}')
    a.e('v_add_u32 v46, s33, v46')
    a.e(f'v_mul_u32_u24 v47, 1280, v{t7}')
    a.e('v_add_u32 v47, v47, v46')
    a.e(f'v_mul_u32_u24 v48, 80, v{t7}')
    a.e(f'v_add_u32 v48, {K1B_L}, v48')
    a.e('s_lshl_b32 s34, s22, 8')
    a.e(f'v_add_u32 v{t6}, s34, v0')
    a.e(f'v_lshrrev_b32 v49, 4, v{t6}')
    a.e('v_mul_u32_u24 v49, 20480, v49')
    a.e(f'v_and_b32 v{t6}, 15, v{t6}')
    a.e(f'v_lshl_add_u32 v49, v{t6}, 4, v49')
    a.e('s_mul_i32 s34, s21, 5')
    for m in range(5):
        a.e(f's_add_u32 s35, s34, {m}')
        a.e('s_lshr_b32 s36, s35, 3')
        a.e('s_lshl_b32 s36, s36, 10')
        a.e('s_and_b32 s37, s35, 3')
        a.e('s_lshl_b32 s37, s37, 8')
        a.e('s_add_u32 s36, s36, s37')
        a.e('s_bfe_u32 s37, s35, 0x10002')
        a.e('s_lshl_b32 s37, s37, 3')
        a.e(f's_add_u32 s{52+m}, s36, s37')
    srd(a, 4, 76, 77, KVP, SZ_KVP)
    srd(a, 8, 66, 67, 0, SZ_MM)
    srd(a, 12, 76, 77, MM, SZ_MM)
    srd(a, 16, 76, 77, PQ, SZ_ACT)
    srd(a, 28, 76, 77, PQS, SZ_ACT)
    WOP = 96
    for e in range(20):
        if e*1280 <= 4095:
            a.e(f'buffer_load_dwordx4 v[{WOP+4*e}:{WOP+4*e+3}], v46, s[8:11], 0 offen offset:{e*1280}')
        else:
            a.e(f's_mov_b32 s33, {e*1280}')
            a.e(f'buffer_load_dwordx4 v[{WOP+4*e}:{WOP+4*e+3}], v46, s[8:11], s33 offen')
    a.e('s_waitcnt vmcnt(20)')
    a.e(f'v_lshlrev_b32 v{t6}, 3, v1')
    a.e(f's_mov_b32 s33, {FQ_O}')
    poll_check(a, [216, 217], '1', rl)
    for rb in range(16):
        a.e(f's_mov_b32 s33, {rb*18432}')
        for j in range(2):
            a.e(f'buffer_load_dword v{64+rb*2+j}, v{40+j}, s[4:7], s33 offen{SC}')
    PQR = 50
    for m in range(5):
        a.e(f'buffer_load_dwordx2 v[{PQR+2*m}:{PQR+2*m+1}], v49, s[16:19], s{52+m} offen{SC}')
    a.e('s_waitcnt vmcnt(5)')
    for j in range(2):
        for rb in range(1, 16):
            a.e(f'v_add_f32 v{64+j}, v{64+j}, v{64+rb*2+j}')
        rnd1(a, 64+j)
        a.e(f'ds_write_b32 v{44+j}, v{64+j}')
    a.e('s_waitcnt lgkmcnt(0)')
    a.e('s_barrier')
    KVR, ZR = 64, 176
    for q in range(5):
        a.e(f'ds_read_b128 v[{KVR+4*q}:{KVR+4*q+3}], v48 offset:{16*q}')
    a.e(f'v_mov_b32 v{t6}, {K1B_L}')
    for q in range(5):
        a.e(f'ds_read_b128 v[{ZR+4*q}:{ZR+4*q+3}], v{t6} offset:{1600+16*q}')
    a.e('s_waitcnt vmcnt(0) lgkmcnt(0)')
    XQ = 196
    for i in range(10):
        unpack(a, XQ+2*i, XQ+2*i+1, PQR+i)
    a.e(f'v_mul_f32 v{t10}, v{XQ}, v{ZR}')
    for i in range(1, 20):
        a.e(f'v_fmac_f32 v{t10}, v{XQ+i}, v{ZR+i}')
    rnd1(a, t10)
    a.e(f'v_add_f32 v{t10}, {hx(f2u(1e-6))}, v{t10}')
    rnd1(a, t10)
    a.e(f'v_rcp_f32 v{t10}, v{t10}')
    for i in range(10):
        a.e(f'v_mul_f32 v{XQ+2*i}, v{XQ+2*i}, v{t10}')
        a.e(f'v_mul_f32 v{XQ+2*i+1}, v{XQ+2*i+1}, v{t10}')
        a.e(f'v_cvt_pk_bf16_f32 v{PQR+i}, v{XQ+2*i}, v{XQ+2*i+1}')
    for m in range(5):
        a.e(f'buffer_store_dwordx2 v[{PQR+2*m}:{PQR+2*m+1}], v49, s[28:31], s{52+m} offen{SC}')
    AC = 84
    for e in range(20):
        for c2 in range(4):
            unpack(a, t6, t7, WOP+4*e+c2)
            if e == 0:
                a.e(f'v_mul_f32 v{AC+2*c2}, v{KVR+e}, v{t6}')
                a.e(f'v_mul_f32 v{AC+2*c2+1}, v{KVR+e}, v{t7}')
            else:
                a.e(f'v_fmac_f32 v{AC+2*c2}, v{KVR+e}, v{t6}')
                a.e(f'v_fmac_f32 v{AC+2*c2+1}, v{KVR+e}, v{t7}')
    for c2 in range(4):
        a.e(f'v_cvt_pk_bf16_f32 v{92+c2}, v{AC+2*c2}, v{AC+2*c2+1}')
    a.e('v_cmp_gt_u32 vcc, 200, v0')
    a.e('s_and_saveexec_b64 s[58:59], vcc')
    a.e(f'buffer_store_dwordx4 v[92:95], v47, s[12:15], 0 offen{SC}')
    a.e('s_mov_b64 exec, s[58:59]')
    a.e('s_waitcnt vmcnt(0)')
    a.e('s_barrier')
    lb = newlab('FM')
    a.e('s_cmp_lg_u32 s40, 0')
    a.e(f's_cbranch_scc1 {lb}')
    a.e(f'v_mov_b32 v{t6}, 1')
    a.e(f'v_mov_b32 v{t7}, 0')
    a.e(f'buffer_store_dword v{t6}, v{t7}, s[80:83], s49 offen{SC}')
    a.label(lb)

K2_H = [list(range(6*w, 6*w+6)) for w in range(4)]
K2_A = [[0,1,2], [3,4,5], [6,7], [8,9]]
A2, BF2 = 40, 136

def k2_srds(a):
    srd(a, 4, 76, 77, H, SZ_H)
    srd(a, 8, 76, 77, PQS, SZ_ACT)
    srd(a, 12, 68, 69, 0, 1536*640*2)
    srd(a, 16, 76, 77, MM, SZ_MM)
    srd(a, 28, 70, 71, 0, 1280)
    srd(a, 36, 72, 73, 0, SZ_ACT)

def k2_seg(a, w, src, steps, first):
    st_ = St(a)
    n = len(steps)
    def issue_A(si):
        ks = steps[si]; b = A2 + (si % 3)*32
        L = []
        for rt in range(4):
            for kh in range(2):
                r0 = b + (rt*2+kh)*4
                if src == 'h':
                    L.append([f's_mov_b32 s32, {ks*2048}', f'buffer_load_dwordx4 v[{r0}:{r0+3}], v{6+rt}, s[4:7], s32 offen offset:{kh*1024}{SC}'])
                else:
                    L.append([f's_mov_b32 s32, {ks*2048}', f'buffer_load_dwordx4 v[{r0}:{r0+3}], v{10+rt}, s[8:11], s32 offen offset:{kh*1024}{SC}'])
        return L
    def issue_B(si):
        ks = steps[si]
        L = []
        for i in range(10):
            L.append([f's_mov_b32 s33, {ks*81920}', f's_mov_b32 m0, {w*30720 + (si%3)*10240 + i*1024}',
                      f'buffer_load_dwordx4 v{14+i}, s[{12 if src=="h" else 16}:{15 if src=="h" else 19}], s33 offen{"" if src=="h" else SC} lds'])
        return L
    def emit(L):
        for grp in L:
            for x in grp: a.e(x)
    def rd(si, t):
        bb = BF2 + (t % 4)*8
        for hq in range(4):
            a.e(f'ds_read_b64_tr_b16 v[{bb+2*hq}:{bb+2*hq+1}], v24 offset:{(si%3)*10240 + (32*(hq>>1)+16*(hq&1))*160 + 32*t}')
    if src == 'h':
        a.e('v_and_b32 v32, 7, v1')
        a.e('v_lshlrev_b32 v32, 2, v32')
        a.e('s_lshr_b32 s34, s41, 1')
        a.e('s_lshl_b32 s34, s34, 7')
        rl = f'buffer_load_dword v33, v32, s[80:83], s34 offen{SC}'
        a.e(rl)
        emit(issue_B(0)); emit(issue_B(1))
        a.e('s_waitcnt vmcnt(20)')
        poll_check(a, [33], '1', rl)
        emit(issue_A(0)); emit(issue_A(1))
        w0 = 8
    else:
        a.e('v_lshlrev_b32 v32, 4, v1')
        a.e(f's_mov_b32 s34, {FM_O}')
        rl = f'buffer_load_dwordx4 v[36:39], v32, s[80:83], s34 offen{SC}'
        a.e(rl)
        a.e('s_waitcnt vmcnt(0)')
        poll_check(a, [36, 37, 38, 39], '1', rl)
        emit(issue_A(0)); emit(issue_B(0)); emit(issue_A(1)); emit(issue_B(1))
        w0 = 18
    for si in range(n):
        a.e(f's_waitcnt vmcnt({(w0 if si == 0 else 18) if si+1 < n else 0})')
        st_(20 + (0 if src == 'h' else 8) + si)
        rd(si, 0); rd(si, 1); rd(si, 2)
        L = (issue_A(si+2) + issue_B(si+2)) if si+2 < n else []
        ab = A2 + (si % 3)*32
        for t in range(5):
            if t+3 < 5: rd(si, t+3)
            infl = min(4, t+3) - t
            a.e(f's_waitcnt lgkmcnt({4*infl})')
            bb = BF2 + (t % 4)*8
            for kh in range(2):
                for rt in range(4):
                    d = (rt*5 + t)*4
                    A_ = f'v[{ab+(rt*2+kh)*4}:{ab+(rt*2+kh)*4+3}]'
                    B_ = f'v[{bb+kh*4}:{bb+kh*4+3}]'
                    C_ = '0' if (first and si == 0 and kh == 0) else f'a[{d}:{d+3}]'
                    a.e(f'v_mfma_f32_16x16x32_bf16 a[{d}:{d+3}], {B_}, {A_}, {C_}')
                    if rt % 2 == 1 and L: emit([L.pop(0)])
        emit(L)

def k2_epi(a, w):
    st_ = St(a)
    st_(32)
    XB = 176
    RR = [r for r in range(A2, A2+60, 4)]
    a.e(f'v_add_u32 v30, {w*16*1280}, v28')
    for t in range(5):
        a.e(f'buffer_load_dwordx2 v[{XB+2*t}:{XB+2*t+1}], v30, s[88:91], 0 offen offset:{32*t}')
        a.e(f'buffer_load_dwordx2 v[{XB+10+2*t}:{XB+11+2*t}], v29, s[28:31], 0 offen offset:{32*t}')
    a.e('s_barrier')
    for rt in range(4):
        if rt == w: continue
        for t in range(5):
            d = (rt*5+t)*4
            off = w*20480 + (rt*5+t)*1024
            if off < 65536: a.e(f'ds_write_b128 v26, a[{d}:{d+3}] offset:{off}')
            else: a.e(f'ds_write_b128 v27, a[{d}:{d+3}] offset:{off-65536}')
    OWN = 200
    for i in range(20):
        a.e(f'v_accvgpr_read_b32 v{OWN+i}, a{w*20+i}')
    a.e('s_waitcnt lgkmcnt(0)')
    a.e('s_barrier')
    k = 0
    for ws_ in range(4):
        if ws_ == w: continue
        for t in range(5):
            off = ws_*20480 + (w*5+t)*1024
            r0 = RR[k*5+t]
            if off < 65536: a.e(f'ds_read_b128 v[{r0}:{r0+3}], v26 offset:{off}')
            else: a.e(f'ds_read_b128 v[{r0}:{r0+3}], v27 offset:{off-65536}')
        k += 1
    a.e('s_waitcnt vmcnt(0) lgkmcnt(0)')
    for t in range(5):
        d = OWN + 4*t
        for q in range(4):
            a.e(f'v_add_f32 v{RR[t]+q}, v{RR[t]+q}, v{RR[5+t]+q}')
            a.e(f'v_add_f32 v{d+q}, v{d+q}, v{RR[10+t]+q}')
            a.e(f'v_add_f32 v{d+q}, v{d+q}, v{RR[t]+q}')
        for hf in range(2):
            unpack(a, 32, 33, XB+2*t+hf)
            unpack(a, 34, 35, XB+10+2*t+hf)
            a.e(f'v_add_f32 v{d+2*hf}, v{d+2*hf}, v34')
            a.e(f'v_add_f32 v{d+2*hf+1}, v{d+2*hf+1}, v35')
            a.e(f'v_add_f32 v{d+2*hf}, v{d+2*hf}, v32')
            a.e(f'v_add_f32 v{d+2*hf+1}, v{d+2*hf+1}, v33')
            a.e(f'v_cvt_pk_bf16_f32 v{36+hf}, v{d+2*hf}, v{d+2*hf+1}')
        a.e(f'buffer_store_dwordx2 v[36:37], v30, s[36:39], 0 offen offset:{32*t}')
    if STAMP:
        a.e('s_waitcnt vmcnt(0)')
        st_(33); st_.dump()
    a.e('s_branch KF_END')

def wave_switch(a, pre):
    a.e('s_cmp_eq_u32 s40, 1'); a.e(f's_cbranch_scc1 {pre}1')
    a.e('s_cmp_eq_u32 s40, 2'); a.e(f's_cbranch_scc1 {pre}2')
    a.e('s_cmp_eq_u32 s40, 3'); a.e(f's_cbranch_scc1 {pre}3')

def gen_kf():
    a = Asm()
    kernel_head(a, 'kf_kernel')
    a.e('s_cmp_ge_u32 s2, 256')
    a.e('s_cbranch_scc1 KF_END')
    st_ = St(a)
    st_.real(62); st_()
    a.e('s_load_dwordx2 s[64:65], s[0:1], 0')
    a.e('s_load_dwordx2 s[26:27], s[0:1], 8')
    a.e('s_load_dwordx2 s[66:67], s[0:1], 16')
    a.e('s_load_dwordx4 s[28:31], s[0:1], 32')
    a.e('s_load_dwordx8 s[68:75], s[0:1], 48')
    a.e('s_load_dwordx2 s[76:77], s[0:1], 80')
    lane_decomp(a)
    a.e('s_and_b32 s21, s2, 3')
    a.e('s_lshl_b32 s21, s21, 2')
    a.e('s_bfe_u32 s22, s2, 0x20003')
    a.e('s_add_u32 s21, s21, s22')
    a.e('s_lshr_b32 s22, s2, 5')
    a.e('s_waitcnt lgkmcnt(0)')
    a.e('s_mov_b64 s[24:25], s[76:77]')
    srd(a, 80, 76, 77, FLG, 0x30000)
    srd(a, 84, 74, 75, 0, 256)
    srd(a, 88, 64, 65, 0, SZ_ACT)
    p0_loads(a)
    a.e('s_bitcmp1_b32 s2, 2')
    a.e('s_cbranch_scc1 K1_H')
    n0 = St.n
    k1_type(a, 'QKV')
    a.label('K1_H')
    St.n = n0
    k1_type(a, 'H')
    a.label('K1_DONE')
    st_(18)
    a.e('s_waitcnt vmcnt(0)')
    a.e('s_barrier')
    lb = newlab('F1')
    a.e('s_cmp_lg_u32 s20, 0')
    a.e(f's_cbranch_scc1 {lb}')
    a.e('v_mov_b32 v24, 1')
    a.e('v_mov_b32 v25, 0')
    a.e(f'buffer_store_dword v24, v25, s[80:83], s48 offen{SC}')
    a.label(lb)
    st_(19)
    a.e('s_mov_b32 s40, s20')
    a.e('s_and_b32 s41, s2, 3')
    a.e('s_lshl_b32 s41, s41, 3')
    a.e('s_bfe_u32 s42, s2, 0x30003')
    a.e('s_add_u32 s41, s41, s42')
    a.e('s_bfe_u32 s42, s2, 0x10002')
    a.e('s_lshl_b32 s42, s42, 2')
    a.e('s_lshr_b32 s43, s2, 6')
    a.e('s_add_u32 s42, s42, s43')
    k2_srds(a)
    a.e('s_lshl_b32 s43, s41, 6')
    a.e('s_mul_i32 s44, s42, 160')
    a.e('v_lshlrev_b32 v26, 4, v1')
    a.e('v_add_u32 v27, 65536, v26')
    a.e('s_mul_i32 s45, s41, 196608')
    a.e('v_add_u32 v6, s45, v26')
    a.e('s_mul_i32 s45, s41, 81920')
    a.e('v_add_u32 v10, s45, v26')
    for rt in range(1, 4):
        a.e(f'v_add_u32 v{6+rt}, {rt*49152}, v6')
        a.e(f'v_add_u32 v{10+rt}, {rt*20480}, v10')
    a.e('v_add_u32 v30, s43, v3')
    a.e('v_mul_u32_u24 v28, 1280, v30')
    a.e('v_lshl_add_u32 v28, v2, 3, v28')
    a.e('v_add_u32 v28, s44, v28')
    a.e('v_lshlrev_b32 v29, 3, v2')
    a.e('v_add_u32 v29, s44, v29')
    for i in range(10):
        a.e(f'v_add_u32 v30, {64*i}, v1')
        a.e('v_mul_u32_u24 v31, 6554, v30')
        a.e('v_lshrrev_b32 v31, 16, v31')
        a.e('v_mul_u32_u24 v32, 10, v31')
        a.e('v_sub_u32 v32, v30, v32')
        a.e(f'v_mul_u32_u24 v{14+i}, 1280, v31')
        a.e(f'v_lshl_add_u32 v{14+i}, v32, 4, v{14+i}')
        a.e(f'v_add_u32 v{14+i}, s44, v{14+i}')
    a.e('v_lshl_add_u32 v30, v2, 2, v4')
    a.e('v_mul_u32_u24 v30, 160, v30')
    a.e('v_lshl_add_u32 v30, v5, 3, v30')
    a.e('s_mul_i32 s45, s40, 30720')
    a.e('v_add_u32 v24, s45, v30')
    wave_switch(a, 'K2H_W')
    for w in range(4):
        if w: a.label(f'K2H_W{w}')
        k2_seg(a, w, 'h', K2_H[w], True)
        if w < 3: a.e('s_branch K1B')
    a.label('K1B')
    st_(26)
    k1b(a)
    st_(27)
    k2_srds(a)
    wave_switch(a, 'K2A_W')
    for w in range(4):
        if w: a.label(f'K2A_W{w}')
        k2_seg(a, w, 'a', K2_A[w], False)
        k2_epi(a, w)
    a.label('KF_END')
    a.e('s_endpgm')
    return a

def desc(name):
    return f'''.amdhsa_kernel {name}
  .amdhsa_next_free_vgpr 336
  .amdhsa_next_free_sgpr 102
  .amdhsa_accum_offset 256
  .amdhsa_group_segment_fixed_size 0
  .amdhsa_kernarg_size 88
  .amdhsa_user_sgpr_count 2
  .amdhsa_user_sgpr_kernarg_segment_ptr 1
  .amdhsa_system_sgpr_workgroup_id_x 1
  .amdhsa_float_denorm_mode_32 3
.end_amdhsa_kernel
'''

if __name__ == '__main__':
    a = gen_kf()
    out = HEADER + f'; @launch kernel=kf_kernel grid=(256,1,1) block=(256,1,1) lds={LDS_TOTAL}\n'
    out += '.amdgcn_target "amdgcn-amd-amdhsa--gfx950"\n.text\n' + a.text()
    out += '.section .rodata,"a"\n.p2align 6\n' + desc('kf_kernel')
    open(os.environ.get('OUT', 'f.s'), 'w').write(out)
```

```python
import sys, os
sys.path.insert(0, 'work')
from gen import *
from gen_k1 import lane_decomp, unpack, C1, C2, KV_PAIRS
X = os.environ.get('KX', '')
STAMP = 'stamp' in X

FLG = 0x1400000
FH_O, FQ_O, FM_O, STS_O, CSM_O = 0x0, 0x1000, 0x2000, 0x10000, 0x20000
AOFF = 98304
KVR_L = 81920
CSL = 155648
K1B_L = 156672
WO_L = 122880
LDS_TOTAL = 156672 + 2560
SC = ' sc1'

class St:
    n = 0
    def __init__(self, a): self.a = a
    def __call__(self, n=None):
        if not STAMP: return
        a = self.a
        if n is None:
            n = St.n; St.n += 1
        a.e('s_memtime s[100:101]')
        a.e('s_waitcnt lgkmcnt(0)')
        a.e(f'v_writelane_b32 v255, s100, {n}')
    def real(self, n):
        if not STAMP: return
        a = self.a
        a.e('s_memrealtime s[100:101]')
        a.e('s_waitcnt lgkmcnt(0)')
        a.e(f'v_writelane_b32 v255, s100, {n}')
    def dump(self):
        if not STAMP: return
        a = self.a
        self.real(63)
        srd(a, 92, 76, 77, 0x3000000, 0x40000)
        a.e('s_lshl_b32 s96, s2, 10')
        a.e('v_lshlrev_b32 v254, 2, v0')
        a.e('v_add_u32 v254, s96, v254')
        a.e('buffer_store_dword v255, v254, s[92:95], 0 offen')

_lab = [0]
def newlab(p):
    _lab[0] += 1
    return f'{p}_{_lab[0]}'

def poll_check(a, regs, want, reload, sleep=True):
    L = newlab('PL'); D = newlab('PD')
    a.e('s_mov_b32 s98, 0')
    a.label(L)
    t = regs[0]
    for r in regs[1:]:
        a.e(f'v_and_b32 v{t}, v{t}, v{r}')
    a.e(f'v_cmp_ne_u32 vcc, {want}, v{t}')
    a.e(f's_cbranch_vccz {D}')
    a.e('s_add_u32 s98, s98, 1')
    a.e('s_cmp_ge_u32 s98, 0x40000')
    a.e(f's_cbranch_scc1 {D}')
    if sleep: a.e('s_sleep 4')
    a.e(reload)
    a.e('s_waitcnt vmcnt(0)')
    a.e(f's_branch {L}')
    a.label(D)

def ln_stats(a, Xr, P, S, T, U):
    a.e(f'v_add_f32 v{S}, v{Xr}, v{Xr+1}')
    a.e(f'v_add_f32 v{T}, v{Xr+2}, v{Xr+3}')
    for i in range(4, 20, 2):
        a.e(f'v_add_f32 v{S}, v{S}, v{Xr+i}')
        a.e(f'v_add_f32 v{T}, v{T}, v{Xr+i+1}')
    a.e(f'v_add_f32 v{S}, v{S}, v{T}')
    allreduce32(a, S, T)
    a.e(f'v_mul_f32 v{S}, {hx(f2u(1.0/640))}, v{S}')
    a.e(f'v_sub_f32 v{P}, v{Xr}, v{S}')
    a.e(f'v_mul_f32 v{T}, v{P}, v{P}')
    a.e(f'v_sub_f32 v{P+1}, v{Xr+1}, v{S}')
    a.e(f'v_mul_f32 v{U}, v{P+1}, v{P+1}')
    for i in range(2, 20, 2):
        a.e(f'v_sub_f32 v{P}, v{Xr+i}, v{S}')
        a.e(f'v_fmac_f32 v{T}, v{P}, v{P}')
        a.e(f'v_sub_f32 v{P+1}, v{Xr+i+1}, v{S}')
        a.e(f'v_fmac_f32 v{U}, v{P+1}, v{P+1}')
    a.e(f'v_add_f32 v{T}, v{T}, v{U}')
    allreduce32(a, T, U)
    a.e(f'v_mul_f32 v{T}, {hx(f2u(1.0/640))}, v{T}')
    rnd1(a, S); rnd1(a, T)
    a.e(f'v_add_f32 v{T}, {hx(f2u(1e-5))}, v{T}')
    rnd1(a, T)
    a.e(f'v_sqrt_f32 v{T}, v{T}')
    rnd1(a, T)
    a.e(f'v_rcp_f32 v{T}, v{T}')

def ln_norm(a, Xr, P, S, T):
    for i in range(0, 20, 2):
        p = P + i//2
        a.e(f'v_sub_f32 v{Xr+i}, v{Xr+i}, v{S}')
        a.e(f'v_sub_f32 v{Xr+i+1}, v{Xr+i+1}, v{S}')
        a.e(f'v_cvt_pk_bf16_f32 v{p}, v{Xr+i}, v{Xr+i+1}')
        a.e(f'v_lshlrev_b32 v{Xr+i}, 16, v{p}')
        a.e(f'v_and_b32 v{Xr+i+1}, 0xffff0000, v{p}')
        a.e(f'v_mul_f32 v{Xr+i}, v{Xr+i}, v{T}')
        a.e(f'v_mul_f32 v{Xr+i+1}, v{Xr+i+1}, v{T}')
        a.e(f'v_cvt_pk_bf16_f32 v{p}, v{Xr+i}, v{Xr+i+1}')
        a.e(f'v_lshlrev_b32 v{Xr+i}, 16, v{p}')
        a.e(f'v_and_b32 v{Xr+i+1}, 0xffff0000, v{p}')

ABUF, BF, ACC = 32, 48, 80
BIAS = 176
CSH = 224
PX, PXX, PP = 80, 90, 110
PC = 128

def gelu4(a, d, o, t, sC1, vC2, va, vb, cs, bias):
    for q in range(4): a.e(f'v_fma_f32 v{t+q}, v{vb}, v{cs+q}, v{bias+q}')
    for q in range(4): a.e(f'v_fma_f32 v{d+q}, v{d+q}, v{va}, v{t+q}')
    for q in range(4): a.e(f'v_mul_f32 v{t+q}, v{d+q}, v{d+q}')
    for q in range(4): a.e(f'v_fma_f32 v{t+q}, v{t+q}, v{vC2}, s{sC1}')
    for q in range(4): a.e(f'v_mul_f32 v{t+q}, v{t+q}, v{d+q}')
    for q in range(4): a.e(f'v_exp_f32 v{t+q}, v{t+q}')
    for q in range(4): a.e(f'v_add_f32 v{t+q}, 1.0, v{t+q}')
    for q in range(4): a.e(f'v_rcp_f32 v{t+q}, v{t+q}')
    for q in range(4): a.e(f'v_mul_f32 v{d+q}, v{d+q}, v{t+q}')
    a.e(f'v_cvt_pk_bf16_f32 v{o}, v{d}, v{d+1}')
    a.e(f'v_cvt_pk_bf16_f32 v{o+1}, v{d+2}, v{d+3}')

def phi4(a, d, o, t, sL, vEps, va, vb, cs):
    for q in range(4): a.e(f'v_fma_f32 v{t+q}, v{vb[q]}, v{cs[q]}, v{vEps}')
    for q in range(4): a.e(f'v_fma_f32 v{d+q}, v{d+q}, v{va[q]}, v{t+q}')
    for q in range(4): a.e(f'v_mul_f32 v{t+q}, s{sL}, v{d+q}')
    for q in range(4): a.e(f'v_exp_f32 v{t+q}, v{t+q} clamp')
    for q in range(4): a.e(f'v_max_f32 v{d+q}, v{d+q}, v{vEps}')
    for q in range(4): a.e(f'v_add_f32 v{d+q}, v{d+q}, v{t+q}')
    a.e(f'v_cvt_pk_bf16_f32 v{o}, v{d}, v{d+1}')
    a.e(f'v_cvt_pk_bf16_f32 v{o+1}, v{d+2}, v{d+3}')

def p0_loads(a):
    a.e('v_lshrrev_b32 v24, 5, v0')
    a.e('v_and_b32 v25, 31, v0')
    a.e('s_lshl_b32 s3, s2, 3')
    a.e('v_add_u32 v24, s3, v24')
    a.e('v_mul_u32_u24 v26, 1280, v24')
    a.e('v_lshl_add_u32 v26, v25, 3, v26')
    for i in range(5):
        a.e(f'buffer_load_dwordx2 v[{PX+2*i}:{PX+1+2*i}], v26, s[88:91], 0 offen offset:{256*i}')
    a.e('v_lshlrev_b32 v125, 13, v25')
    a.e('v_lshl_add_u32 v125, v24, 2, v125')
    a.e('v_mov_b32 v126, v25')

def cs_loads(a):
    a.e('s_lshr_b32 s3, s2, 3')
    a.e('s_lshl_b32 s3, s3, 2')
    a.e('s_and_b32 s36, s2, 3')
    a.e('s_add_u32 s3, s3, s36')
    a.e('s_mov_b32 s50, s3')
    a.e('s_cmp_ge_u32 s3, 54')
    a.e('s_cbranch_scc1 CS_SKIP1')
    a.e('s_cmp_lt_u32 s3, 30')
    a.e('s_cselect_b32 s40, s26, s28')
    a.e('s_cselect_b32 s41, s27, s29')
    a.e('s_movk_i32 s36, 3072')
    a.e('s_cselect_b32 s36, 3840, s36')
    a.e('s_mov_b32 s42, %d' % (640*1536*2))
    a.e('s_cselect_b32 s42, %d, s42' % (640*1920*2))
    a.e('s_cselect_b32 s37, 0, 30')
    a.e('s_mov_b32 s43, 0x00020000')
    a.e('s_sub_u32 s37, s3, s37')
    a.e('s_lshl_b32 s37, s37, 7')
    a.e('s_mul_i32 s39, s20, 160')
    a.e('v_lshrrev_b32 v26, 3, v1')
    a.e('v_add_u32 v26, s39, v26')
    a.e('v_mul_lo_u32 v26, v26, s36')
    a.e('v_and_b32 v27, 7, v1')
    a.e('v_lshl_add_u32 v26, v27, 4, v26')
    a.e('v_add_u32 v26, s37, v26')
    a.e('s_lshl_b32 s36, s36, 3')
    a.e('s_mov_b32 s37, 0')
    for i in range(20):
        a.e(f'buffer_load_dwordx4 v[{PC+4*i}:{PC+4*i+3}], v26, s[40:43], s37 offen')
        if i < 19: a.e('s_add_u32 s37, s37, s36')
    a.e('v_lshlrev_b32 v127, 5, v27')
    a.e('s_lshl_b32 s39, s20, 8')
    a.e('v_add_u32 v127, s39, v127')
    a.label('CS_SKIP1')

def cs_compute(a):
    a.e('s_cmp_ge_u32 s50, 54')
    a.e('s_cbranch_scc1 CS_SKIP2')
    A0 = 208
    for i in range(20):
        for c2 in range(4):
            if i == 0:
                unpack(a, A0+2*c2, A0+2*c2+1, PC+c2)
            else:
                unpack(a, 216+2*(c2&1), 217+2*(c2&1), PC+4*i+c2)
                a.e(f'v_add_f32 v{A0+2*c2}, v{A0+2*c2}, v{216+2*(c2&1)}')
                a.e(f'v_add_f32 v{A0+2*c2+1}, v{A0+2*c2+1}, v{217+2*(c2&1)}')
    for c in range(8):
        a.e(f'v_add_f32_dpp v{A0+c}, v{A0+c}, v{A0+c} row_ror:8 row_mask:0xf bank_mask:0xf')
    for sw in ('v_permlane16_swap_b32', 'v_permlane32_swap_b32'):
        for c in range(8): a.e(f'v_mov_b32 v{216+c}, v{A0+c}')
        for c in range(8): a.e(f'{sw} v{A0+c}, v{216+c}')
        for c in range(8): a.e(f'v_add_f32 v{A0+c}, v{A0+c}, v{216+c}')
    a.e(f'v_add_u32 v127, {CSL}, v127')
    a.e(f'ds_write_b128 v127, v[{A0}:{A0+3}]')
    a.e(f'ds_write_b128 v127, v[{A0+4}:{A0+7}] offset:16')
    a.e('s_waitcnt lgkmcnt(0)')
    a.label('CS_SKIP2')

def p0_compute(a, n_after_x):
    a.e(f's_waitcnt vmcnt({n_after_x})')
    for i in range(10):
        a.e(f'v_lshlrev_b32 v{PXX+2*i}, 16, v{PX+i}')
        a.e(f'v_and_b32 v{PXX+2*i+1}, 0xffff0000, v{PX+i}')
    ln_stats(a, PXX, PP, 120, 121, 122)
    ln_norm(a, PXX, PP, 120, 121)
    a.e('v_mul_f32 v123, v120, v121')
    a.e('v_sub_f32 v123, 0, v123')
    a.e('v_mov_b32 v124, v121')
    ln_stats(a, PXX, PP, 120, 121, 122)
    a.e('v_mul_f32 v122, v124, v121')
    a.e('v_sub_f32 v120, v123, v120')
    a.e('v_mul_f32 v120, v120, v121')
    a.e('v_cmp_eq_u32 vcc, 1, v126')
    a.e('v_cndmask_b32 v124, v124, v123, vcc')
    a.e('v_cmp_eq_u32 vcc, 2, v126')
    a.e('v_cndmask_b32 v124, v124, v122, vcc')
    a.e('v_cmp_eq_u32 vcc, 3, v126')
    a.e('v_cndmask_b32 v124, v124, v120, vcc')
    a.e('v_cmp_gt_u32 vcc, 4, v126')
    a.e('s_and_saveexec_b64 s[44:45], vcc')
    a.e(f'buffer_store_dword v124, v125, s[80:83], s46 offen{SC}')
    a.e('s_mov_b64 exec, s[44:45]')

def k1_type(a, typ):
    st_ = St(a)
    NT = 12 if typ == 'H' else 15
    ldb = 3072 if typ == 'H' else 3840
    RB = 32*NT
    SB = 24576 if typ == 'H' else 32768
    ND = 6 if typ == 'H' else 8
    NLD = 4 + ND
    T = typ
    if typ == 'H':
        srd(a, 8, 28, 29, 0, 640*1536*2)
        srd(a, 12, 24, 25, H, SZ_H)
        srd(a, 16, 30, 31, 0, 1536*2)
        a.e('s_mul_i32 s35, s22, 384')
    else:
        srd(a, 8, 26, 27, 0, 640*1920*2)
        srd(a, 12, 24, 25, PQ, SZ_ACT)
        srd(a, 16, 24, 25, KVP, SZ_KVP)
        a.e('s_mul_i32 s35, s22, 160')
    a.e('s_lshl_b32 s23, s21, 3')
    a.e('s_lshl_b32 s36, s20, 1')
    a.e('s_add_u32 s23, s23, s36')
    nbias = 0
    if typ == 'H':
        cs_loads(a)
        a.e('v_lshlrev_b32 v24, 3, v2')
        a.e('v_add_u32 v24, s35, v24')
        for t in range(NT):
            a.e(f'buffer_load_dwordx2 v[{CSH+2*t}:{CSH+2*t+1}], v24, s[16:19], 0 offen offset:{32*t}')
        nbias = NT
    a.e('s_mul_i32 s36, s23, 20480')
    a.e('v_lshrrev_b32 v24, 3, v1')
    a.e('v_mul_u32_u24 v25, 1280, v24')
    a.e('v_add_u32 v25, s36, v25')
    a.e('v_and_b32 v26, 7, v1')
    a.e('v_xor_b32 v26, v26, v2')
    a.e('v_lshl_add_u32 v6, v26, 4, v25')
    a.e('v_xor_b32 v26, 4, v26')
    a.e('v_lshl_add_u32 v7, v26, 4, v25')
    a.e(f'v_add_u32 v7, {8*1280}, v7')
    a.e(f'v_add_u32 v8, {16*1280}, v6')
    a.e(f'v_add_u32 v9, {16*1280}, v7')
    a.e('s_lshl_b32 s47, s20, 12')
    a.e(f's_add_u32 s47, s47, {AOFF}')
    a.e(f's_mul_i32 s36, s20, {ND*64}')
    a.e(f's_mul_i32 s34, s20, {ND*1024}')
    upr = 2*NT
    magic = {24: 43691, 30: 34953}[upr]
    BO = 10
    for i in range(ND):
        a.e(f'v_add_u32 v24, s36, v1')
        if i: a.e(f'v_add_u32 v24, {64*i}, v24')
        if typ != 'H' and i >= 6:
            a.e('v_subrev_u32 v25, 128, v24')
            a.e('v_cmp_lt_u32 vcc, 1919, v24')
            a.e('v_cndmask_b32 v24, v24, v25, vcc')
        a.e(f'v_mul_u32_u24 v25, {magic}, v24')
        a.e('v_lshrrev_b32 v25, 20, v25')
        a.e(f'v_mul_u32_u24 v26, {upr}, v25')
        a.e('v_sub_u32 v26, v24, v26')
        a.e('v_bfe_u32 v27, v25, 2, 1')
        a.e('v_bfe_u32 v28, v25, 3, 1')
        a.e('v_xor_b32 v27, v27, v28')
        a.e('v_mul_u32_u24 v27, 12, v27')
        a.e('v_xor_b32 v27, v27, v25')
        a.e(f'v_mul_u32_u24 v{BO+i}, {ldb}, v27')
        if typ == 'H':
            a.e('v_bfe_u32 v28, v25, 1, 2')
            a.e('v_lshlrev_b32 v28, 1, v28')
            a.e('v_xor_b32 v26, v26, v28')
            a.e(f'v_lshl_add_u32 v{BO+i}, v26, 4, v{BO+i}')
        else:
            a.e(f'v_lshl_add_u32 v{BO+i}, v26, 4, v{BO+i}')
            a.e('v_mul_u32_u24 v28, 6554, v26')
            a.e('v_lshrrev_b32 v28, 16, v28')
            a.e('v_mul_u32_u24 v28, 1120, v28')
            a.e(f'v_add_u32 v{BO+i}, v28, v{BO+i}')
        a.e(f'v_add_u32 v{BO+i}, s35, v{BO+i}')
    def issue_list(ks):
        L = []
        st = ks % 3
        for i in range(4):
            L.append([f's_mov_b32 s32, {ks*128}', f's_add_u32 m0, s47, {st*16384 + i*1024}',
                      f'buffer_load_dwordx4 v{6+i}, s[88:91], s32 offen lds'])
        for i in range(ND):
            L.append([f's_mov_b32 s33, {ks*64*ldb}', f's_add_u32 m0, s34, {st*SB + i*1024}',
                      f'buffer_load_dwordx4 v{BO+i}, s[8:11], s33 offen lds'])
        return L
    def emit(L):
        for grp in L:
            for x in grp: a.e(x)
    emit(issue_list(0)); emit(issue_list(1))
    a.e('v_mov_b32 v24, 0')
    if typ == 'H':
        a.e('s_lshl_b32 s48, s21, 7')
        a.e('s_lshl_b32 s36, s22, 2')
        a.e('s_add_u32 s48, s48, s36')
    else:
        a.e('s_lshl_b32 s48, s21, 5')
        a.e('s_lshl_b32 s36, s22, 2')
        a.e('s_add_u32 s48, s48, s36')
        a.e(f's_add_u32 s48, s48, {FQ_O}')
    a.e(f'buffer_store_dword v24, v24, s[80:83], s48 offen{SC}')
    a.e('s_lshl_b32 s49, s2, 2')
    a.e(f's_add_u32 s49, s49, {FM_O}')
    a.e(f'buffer_store_dword v24, v24, s[80:83], s49 offen{SC}')
    a.e('v_lshrrev_b32 v24, 1, v2')
    a.e('v_lshlrev_b32 v24, 4, v24')
    a.e('v_and_b32 v25, 1, v2')
    a.e('v_lshl_add_u32 v24, v25, 2, v24')
    a.e('v_add_u32 v24, v24, v4')
    a.e(f'v_mul_u32_u24 v24, {RB}, v24')
    a.e('v_lshl_add_u32 v24, v5, 3, v24')
    if typ == 'H':
        a.e('v_lshrrev_b32 v26, 1, v4')
        a.e('v_lshl_or_b32 v25, v25, 1, v26')
        for m in range(4):
            a.e(f'v_xor_b32 v26, {m}, v25')
            a.e(f'v_subrev_u32 v26, {m}, v26')
            a.e(f'v_lshl_add_u32 v{18+m}, v26, 5, v24')
        nb = 4
    else:
        a.e('v_mov_b32 v18, v24')
        a.e('v_add_u32 v19, 65536, v24')
        nb = 1
    a.e('v_lshrrev_b32 v24, 1, v3')
    a.e('v_xor_b32 v24, v24, v2')
    a.e('v_lshlrev_b32 v24, 4, v24')
    a.e('v_lshl_add_u32 v24, v3, 7, v24')
    a.e('v_add_u32 v22, s47, v24')
    a.e('v_xor_b32 v24, 64, v24')
    a.e('v_add_u32 v23, s47, v24')
    a.e(f's_mov_b32 s46, {STS_O}')
    p0_compute(a, nbias + 2*NLD + 2)
    if typ == 'H':
        cs_compute(a)
        a.e(f's_waitcnt vmcnt({2*NLD + 3})')
        for t in range(NT):
            unpack(a, BIAS+4*t, BIAS+4*t+1, CSH+2*t)
            unpack(a, BIAS+4*t+2, BIAS+4*t+3, CSH+2*t+1)
    def rd1(ks, t, hq):
        st = ks % 3; bb = BF + (t % 4)*8
        off = st*SB + (32*(hq>>1) + 8*(hq&1))*RB + 32*t
        base = 18 + (t % nb)
        if off >= 65536:
            assert nb == 1
            off -= 65536; base = 19
        a.e(f'ds_read_b64_tr_b16 v[{bb+2*hq}:{bb+2*hq+1}], v{base} offset:{off}')
    if typ == 'H':
        SA, SBr = 28, 30
        nst = 4 + 7
    else:
        CSQ, CSLN, SA, SBr, RA, RBr = 200, 220, 230, 232, 234, 242
        nst = 5 + 10 + 4 + 4
    for ks in range(10):
        w = {0: NLD+3, 7: NLD+1, 9: nst}.get(ks, NLD)
        if 'noD' in X: w = 0
        a.e(f's_waitcnt vmcnt({w})')
        a.e('s_barrier')
        st_()
        if ks == 0 and typ == 'H':
            lb = newlab('CS')
            a.e('s_cmp_lg_u32 s20, 0')
            a.e(f's_cbranch_scc1 {lb}')
            a.e('s_cmp_ge_u32 s50, 54')
            a.e(f's_cbranch_scc1 {lb}')
            a.e('v_lshlrev_b32 v24, 2, v1')
            a.e(f'v_add_u32 v25, {CSL}, v24')
            for wv in range(4):
                a.e(f'ds_read_b32 v{26+wv}, v25 offset:{256*wv}')
            a.e('s_waitcnt lgkmcnt(0)')
            a.e('v_add_f32 v26, v26, v27')
            a.e('v_add_f32 v28, v28, v29')
            a.e('v_add_f32 v26, v26, v28')
            a.e('s_lshl_b32 s36, s50, 8')
            a.e(f's_add_u32 s36, s36, {CSM_O}')
            a.e(f'buffer_store_dword v26, v24, s[80:83], s36 offen{SC}')
            a.label(lb)
        if ks == 1:
            lb = newlab('F0')
            a.e('s_cmp_lg_u32 s20, 0')
            a.e(f's_cbranch_scc1 {lb}')
            a.e('v_mov_b32 v24, 1')
            a.e('v_mov_b32 v25, s2')
            a.e(f'buffer_store_byte v24, v25, s[84:87], 0 offen{SC}')
            a.label(lb)
        if ks == 8:
            poll_check(a, [24], '0x01010101', f'buffer_load_dword v24, v25, s[84:87], 0 offen{SC}')
            a.e('s_lshl_b32 s36, s23, 6')
            a.e('v_lshlrev_b32 v24, 2, v3')
            a.e('v_add_u32 v24, s36, v24')
            so = STS_O + (16384 if typ == 'H' else 0)
            a.e(f's_mov_b32 s37, {so}')
            a.e(f's_mov_b32 s39, {so + 8192}')
            for rt in range(2):
                a.e(f'buffer_load_dword v{SA+rt}, v24, s[80:83], s37 offen offset:{64*rt}{SC}')
                a.e(f'buffer_load_dword v{SBr+rt}, v24, s[80:83], s39 offen offset:{64*rt}{SC}')
            a.e('v_lshlrev_b32 v25, 4, v2')
            if typ == 'H':
                a.e('s_mul_i32 s40, s22, 768')
                a.e(f's_add_u32 s40, s40, {CSM_O + 1920*4}')
                for t in range(7):
                    a.e(f'buffer_load_dwordx4 v[{CSH+4*t}:{CSH+4*t+3}], v25, s[80:83], s40 offen offset:{64*t}{SC}')
            else:
                a.e('s_mul_i32 s40, s22, 320')
                a.e(f's_add_u32 s40, s40, {CSM_O}')
                for t in range(5):
                    a.e(f'buffer_load_dwordx4 v[{CSQ+4*t}:{CSQ+4*t+3}], v25, s[80:83], s40 offen offset:{64*t}{SC}')
                a.e('v_lshlrev_b32 v26, 2, v3')
                a.e('s_add_u32 s41, s40, 2560')
                a.e('s_add_u32 s42, s40, 5120')
                for t in range(10):
                    a.e(f'buffer_load_dword v{CSLN+t}, v26, s[80:83], s{41 if t < 5 else 42} offen offset:{64*(t%5)}{SC}')
                a.e('v_add_u32 v25, s36, v25')
                for rt in range(2):
                    a.e(f'buffer_load_dwordx4 v[{RA+4*rt}:{RA+4*rt+3}], v25, s[80:83], s37 offen offset:{64*rt}{SC}')
                    a.e(f'buffer_load_dwordx4 v[{RBr+4*rt}:{RBr+4*rt+3}], v25, s[80:83], s39 offen offset:{64*rt}{SC}')
        L = issue_list(ks+2) if ks+2 < 10 else []
        if 'noD' in X: L = [[g[0], g[1], 's_nop 0'] for g in L]
        if ks == 6:
            L.append(['v_lshlrev_b32 v25, 2, v1', f'buffer_load_dword v24, v25, s[84:87], 0 offen{SC}'])
        st = ks % 3
        for rt in range(2):
            for kh in range(2):
                r0 = ABUF + (rt*2+kh)*4
                a.e(f'ds_read_b128 v[{r0}:{r0+3}], v{22+kh} offset:{st*16384 + rt*2048}')
        for t in range(3):
            for hq in range(4): rd1(ks, t, hq)
        ab = ABUF
        for t in range(NT):
            infl = min(NT-1, t+2) - t
            a.e(f's_waitcnt lgkmcnt({4*infl})')
            bb = BF + (t % 4)*8
            G = L.pop(0) if L else []
            n = 0
            for kh in range(2):
                for rt in range(2):
                    d = ACC + (rt*NT + t)*4
                    A_ = f'v[{ab+(rt*2+kh)*4}:{ab+(rt*2+kh)*4+3}]'
                    B_ = f'v[{bb+kh*4}:{bb+kh*4+3}]'
                    C_ = '0' if (ks == 0 and kh == 0) else f'v[{d}:{d+3}]'
                    if 'noM' in X and ks > 0: pass
                    elif typ != 'H' and t >= 5:
                        a.e(f'v_mfma_f32_16x16x32_bf16 v[{d}:{d+3}], {A_}, {B_}, {C_}')
                    else:
                        a.e(f'v_mfma_f32_16x16x32_bf16 v[{d}:{d+3}], {B_}, {A_}, {C_}')
                    if t+3 < NT and not ('noR' in X): rd1(ks, t+3, n)
                    if n == 2:
                        for x in G: a.e(x)
                    n += 1
        emit(L)
    st_()
    if typ == 'H':
        CS2 = 56
        for t in range(7, 12):
            a.e(f'buffer_load_dwordx4 v[{CS2+4*(t-7)}:{CS2+4*(t-7)+3}], v25, s[80:83], s40 offen offset:{64*t}{SC}')
    k2_bprefetch(a)
    if typ == 'H':
        a.e('v_lshlrev_b32 v27, 4, v1')
        a.e('s_mul_i32 s36, s23, 49152')
        a.e('s_mul_i32 s37, s22, 6144')
        a.e('s_add_u32 s36, s36, s37')
        a.e('v_add_u32 v6, s36, v27')
        a.e('v_add_u32 v7, 4096, v6')
        a.e('v_add_u32 v8, 49152, v6')
        a.e('v_add_u32 v9, 53248, v6')
        a.e(f's_mov_b32 s36, {hx(f2u(C1))}')
        a.e(f'v_mov_b32 v26, {hx(f2u(C2))}')
        a.e('s_waitcnt vmcnt(25)')
        order = [(rt, u) for u in range(3) for rt in range(2)] + [(rt, u) for u in range(3, 6) for rt in range(2)]
        nstore = 0
        for idx, (rt, u) in enumerate(order):
            if idx == 6: a.e(f's_waitcnt vmcnt({nstore+20})')
            o = ABUF + (idx % 4)*4
            for hi in range(2):
                t = 2*u + hi
                cs = CSH + 4*t if t < 7 else CS2 + 4*(t-7)
                gelu4(a, ACC + (rt*NT + t)*4, o+2*hi, 48 + 4*hi, 36, 26, SA+rt, SBr+rt, cs, BIAS+4*t)
            a.e(f'buffer_store_dwordx4 v[{o}:{o+3}], v{6 + 2*rt + (0 if u < 4 else 1)}, s[12:15], 0 offen offset:{(u%4)*1024}{SC}')
            nstore += 1
    else:
        a.e('v_lshlrev_b32 v28, 4, v1')
        a.e('s_mul_i32 s36, s23, 20480')
        a.e('v_add_u32 v22, s36, v28')
        a.e('v_add_u32 v23, 20480, v22')
        a.e('s_mul_i32 s38, s22, 5')
        for t in range(5):
            a.e(f's_add_u32 s39, s38, {t}')
            a.e('s_lshr_b32 s40, s39, 1')
            a.e('s_lshl_b32 s40, s40, 10')
            a.e('s_and_b32 s39, s39, 1')
            a.e('s_lshl_b32 s39, s39, 3')
            a.e(f's_add_u32 s{41+t}, s40, s39')
        a.e(f's_mov_b32 s36, {hx(f2u(LOG2E))}')
        a.e(f'v_mov_b32 v26, {hx(f2u(1e-6))}')
        a.e('s_waitcnt vmcnt(20)')
        for rt in range(2):
            for t in range(5):
                d = ACC + (rt*NT + t)*4
                o = 6 + ((rt*5+t) % 2)*2
                phi4(a, d, o, 10 + 4*(t%2), 36, 26, [SA+rt]*4, [SBr+rt]*4, [CSQ+4*t+q for q in range(4)])
                a.e(f'buffer_store_dwordx2 v[{o}:{o+1}], v{22+rt}, s[12:15], s{41+t} offen{SC}')
        st_()
        OP = 32
        for t in range(10):
            for rt in range(2):
                d = ACC + (rt*NT + 5 + t)*4
                p = OP + 4*t + rt*2
                if t < 5:
                    phi4(a, d, p, 10 + 4*rt, 36, 26, [RA+4*rt+q for q in range(4)], [RBr+4*rt+q for q in range(4)], [CSLN+t]*4)
                else:
                    tt = 10 + 4*rt
                    for q in range(4): a.e(f'v_mul_f32 v{tt+q}, v{RBr+4*rt+q}, v{CSLN+t}')
                    for q in range(4): a.e(f'v_fma_f32 v{d+q}, v{d+q}, v{RA+4*rt+q}, v{tt+q}')
                    a.e(f'v_cvt_pk_bf16_f32 v{p}, v{d}, v{d+1}')
                    a.e(f'v_cvt_pk_bf16_f32 v{p+1}, v{d+2}, v{d+3}')
        for i in range(4):
            a.e(f'v_mov_b32 v{72+i}, 0x3f803f80')
        KA = ACC
        for n, (i, j) in enumerate(KV_PAIRS):
            a.e(f'v_mfma_f32_16x16x32_bf16 v[{KA+4*n}:{KA+4*n+3}], v[{OP+4*i}:{OP+4*i+3}], v[{OP+20+4*j}:{OP+20+4*j+3}], 0')
        for i in range(5):
            n = 13+i
            a.e(f'v_mfma_f32_16x16x32_bf16 v[{KA+4*n}:{KA+4*n+3}], v[{OP+4*i}:{OP+4*i+3}], v[72:75], 0')
        st_()
        a.e('s_mul_i32 s36, s20, 18432')
        a.e(f's_add_u32 s36, s36, {KVR_L}')
        a.e('v_add_u32 v23, s36, v28')
        for n in range(18):
            a.e(f'ds_write_b128 v23, v[{KA+4*n}:{KA+4*n+3}] offset:{1024*n}')
        a.e('s_waitcnt lgkmcnt(0)')
        a.e('s_barrier')
        st_()
        a.e('s_lshl_b32 s36, s20, 10')
        a.e('v_add_u32 v23, s36, v28')
        a.e(f'v_add_u32 v23, {KVR_L}, v23')
        a.e('s_lshl_b32 s37, s22, 4')
        a.e('s_add_u32 s37, s37, s21')
        a.e('s_mul_i32 s37, s37, 18432')
        a.e('s_add_u32 s37, s37, s36')
        a.e('v_add_u32 v24, s37, v28')
        a.e('v_add_u32 v25, 55296, v23')
        for i in range(5):
            if i == 4:
                a.e('s_cmp_ge_u32 s20, 2')
                a.e('s_cbranch_scc1 K1_DONE')
            R = 32 + 16*i
            for wv in range(4):
                if wv < 3: a.e(f'ds_read_b128 v[{R+4*wv}:{R+3+4*wv}], v23 offset:{wv*18432 + i*4096}')
                else: a.e(f'ds_read_b128 v[{R+4*wv}:{R+3+4*wv}], v25 offset:{i*4096}')
            a.e('s_waitcnt lgkmcnt(0)')
            for q in range(4):
                a.e(f'v_add_f32 v{R+q}, v{R+q}, v{R+4+q}')
                a.e(f'v_add_f32 v{R+8+q}, v{R+8+q}, v{R+12+q}')
                a.e(f'v_add_f32 v{R+q}, v{R+q}, v{R+8+q}')
            a.e(f'buffer_store_dwordx4 v[{R}:{R+3}], v24, s[16:19], 0 offen{SC}')
            if i < 4: a.e('v_add_u32 v24, 4096, v24')
        a.e('s_branch K1_DONE')

K2_H = [list(range(6*w, 6*w+6)) for w in range(4)]
K2_A = [[0,1,2], [3,4,5], [6,7], [8,9]]
A2, BF2 = 40, 136
GR, PQR, ZR, XQ = 168, 200, 210, 230

def k2_ids(a):
    a.e('s_and_b32 s41, s2, 3')
    a.e('s_lshl_b32 s41, s41, 3')
    a.e('s_bfe_u32 s42, s2, 0x30003')
    a.e('s_add_u32 s41, s41, s42')
    a.e('s_bfe_u32 s42, s2, 0x10002')
    a.e('s_lshl_b32 s42, s42, 2')
    a.e('s_lshr_b32 s43, s2, 6')
    a.e('s_add_u32 s42, s42, s43')
    a.e('s_mul_i32 s44, s42, 160')

def k2_boffs(a, base, t0):
    for i in range(10):
        a.e(f'v_add_u32 v{t0}, {64*i}, v1')
        a.e(f'v_mul_u32_u24 v{t0+1}, 6554, v{t0}')
        a.e(f'v_lshrrev_b32 v{t0+1}, 16, v{t0+1}')
        a.e(f'v_mul_u32_u24 v{t0+2}, 10, v{t0+1}')
        a.e(f'v_sub_u32 v{t0+2}, v{t0}, v{t0+2}')
        a.e(f'v_mul_u32_u24 v{base+i}, 1280, v{t0+1}')
        a.e(f'v_lshl_add_u32 v{base+i}, v{t0+2}, 4, v{base+i}')
        a.e(f'v_add_u32 v{base+i}, s44, v{base+i}')

def k2_bprefetch(a):
    k2_ids(a)
    k2_boffs(a, 6, 16)
    srd(a, 52, 68, 69, 0, 1536*640*2)
    a.e('s_mul_i32 s56, s20, 10240')
    a.e(f's_mul_i32 s57, s20, {6*81920}')
    a.e('s_barrier')
    for si in range(2):
        for i in range(10):
            a.e(f's_add_u32 m0, s56, {si*40960 + i*1024}')
            a.e(f'buffer_load_dwordx4 v{6+i}, s[52:55], s57 offen lds')
        if si == 0: a.e('s_add_u32 s57, s57, 81920')

def k1b_setup(a):
    t6, t7, t8, t9, t10, t11, t12, t13 = range(32, 40)
    a.e('s_lshr_b32 s23, s41, 2')
    a.e('s_mul_i32 s23, s23, 294912')
    a.e('s_and_b32 s32, s41, 3')
    a.e('s_mul_i32 s32, s32, 20')
    for j in range(2):
        o = 250 + j
        l = 252 + j
        a.e(f'v_add_u32 v{t6}, {256*j}, v0')
        a.e(f'v_min_u32 v{t6}, 419, v{t6}')
        a.e(f'v_mul_u32_u24 v{t8}, 52429, v{t6}')
        a.e(f'v_lshrrev_b32 v{t8}, 20, v{t8}')
        a.e(f'v_mul_u32_u24 v{t9}, 20, v{t8}')
        a.e(f'v_sub_u32 v{t9}, v{t6}, v{t9}')
        a.e(f'v_bfe_u32 v{t10}, v{t9}, 2, 2')
        a.e(f'v_lshlrev_b32 v{l}, 4, v{t10}')
        a.e(f'v_lshrrev_b32 v{t10}, 4, v{t9}')
        a.e(f'v_lshl_add_u32 v{l}, v{t10}, 3, v{l}')
        a.e(f'v_and_b32 v{t10}, 3, v{t9}')
        a.e(f'v_lshl_add_u32 v{l}, v{t10}, 1, v{l}')
        a.e(f'v_lshl_add_u32 v{l}, v{t8}, 6, v{l}')
        a.e(f'v_add_u32 v{l}, {K1B_L}, v{l}')
        a.e(f'v_cmp_lt_u32 vcc, 399, v{t6}')
        a.e(f'v_subrev_u32 v{t10}, 400, v{t6}')
        a.e(f'v_cndmask_b32 v{t8}, v{t8}, v{t10}, vcc')
        if j == 1:
            a.e(f'v_mov_b32 v{t11}, {K1B_L + 2048 + 256}')
            a.e(f'v_cndmask_b32 v{l}, v{l}, v{t11}, vcc')
            a.e(f'v_lshlrev_b32 v{t12}, 2, v{t10}')
            a.e(f'v_add_u32 v{t12}, {K1B_L + 2048}, v{t12}')
            a.e(f'v_cndmask_b32 v31, v{t11}, v{t12}, vcc')
        a.e(f'v_add_u32 v{t8}, s32, v{t8}')
        a.e(f'v_add_u32 v{t9}, s32, v{t9}')
        a.e(f'v_lshrrev_b32 v{t10}, 4, v{t8}')
        a.e(f'v_lshrrev_b32 v{t11}, 4, v{t9}')
        a.e(f'v_lshl_add_u32 v{t13}, v{t10}, 1, v{t11}')
        a.e(f'v_add_u32 v{t12}, 13, v{t10}')
        a.e(f'v_cndmask_b32 v{t13}, v{t13}, v{t12}, vcc')
        a.e(f'v_and_b32 v{t9}, 15, v{t9}')
        a.e(f'v_cndmask_b32 v{t9}, v{t9}, 0, vcc')
        a.e(f'v_bfe_u32 v{t12}, v{t8}, 2, 2')
        a.e(f'v_lshl_add_u32 v{t12}, v{t12}, 4, v{t9}')
        a.e(f'v_and_b32 v{t8}, 3, v{t8}')
        a.e(f'v_lshlrev_b32 v{o}, 10, v{t13}')
        a.e(f'v_lshl_add_u32 v{o}, v{t12}, 4, v{o}')
        a.e(f'v_lshl_add_u32 v{o}, v{t8}, 2, v{o}')
        a.e(f'v_add_u32 v{o}, s23, v{o}')
    a.e('s_lshl_b32 s34, s42, 8')
    a.e(f'v_add_u32 v{t6}, s34, v0')
    a.e(f'v_lshrrev_b32 v25, 4, v{t6}')
    a.e('v_mul_u32_u24 v25, 20480, v25')
    a.e(f'v_and_b32 v{t6}, 15, v{t6}')
    a.e(f'v_lshl_add_u32 v25, v{t6}, 4, v25')
    a.e('s_mul_i32 s34, s41, 5')
    for m in range(5):
        a.e(f's_add_u32 s35, s34, {m}')
        a.e('s_lshr_b32 s36, s35, 3')
        a.e('s_lshl_b32 s36, s36, 10')
        a.e('s_and_b32 s37, s35, 3')
        a.e('s_lshl_b32 s37, s37, 8')
        a.e('s_add_u32 s36, s36, s37')
        a.e('s_bfe_u32 s37, s35, 0x10002')
        a.e('s_lshl_b32 s37, s37, 3')
        a.e(f's_add_u32 s{92+m}, s36, s37')
    srd(a, 52, 76, 77, KVP, SZ_KVP)
    srd(a, 56, 66, 67, 0, SZ_MM)
    srd(a, 60, 76, 77, PQ, SZ_ACT)
    a.e('s_mul_i32 s97, s41, 25600')

def k1b_loads(a, w):
    for rb in range(16):
        a.e(f's_mov_b32 s33, {rb*18432}')
        for j in range(2):
            a.e(f'buffer_load_dword v{GR+rb*2+j}, v{250+j}, s[52:55], s33 offen{SC}')
    for m in range(5):
        a.e(f'buffer_load_dwordx2 v[{PQR+2*m}:{PQR+2*m+1}], v25, s[60:63], s{92+m} offen{SC}')
    for i in ([w, 4] if w == 0 else [w]):
        a.e(f's_mov_b32 m0, {WO_L + i*1024}')
        a.e(f'buffer_load_dwordx4 v{14+i}, s[56:59], s97 offen lds')

def k1b_compute(a, w):
    t6, t7, t8, t9, t10 = range(32, 37)
    for j in range(2):
        for rb in range(1, 16):
            a.e(f'v_add_f32 v{GR+j}, v{GR+j}, v{GR+rb*2+j}')
        rnd1(a, GR+j)
        a.e(f'ds_write_b16_d16_hi v{252+j}, v{GR+j}')
    a.e(f'ds_write_b32 v31, v{GR+1}')
    a.e('s_waitcnt lgkmcnt(0)')
    a.e('s_barrier')
    dt = w & 1; nts = [0, 1, 2] if w < 2 else [3, 4]
    a.e(f'v_mov_b32 v{t6}, {K1B_L}')
    for q in range(5):
        a.e(f'ds_read_b128 v[{ZR+4*q}:{ZR+4*q+3}], v{t6} offset:{2048+16*q}')
    QO, PO, DO = BF2, BF2+4, BF2+16
    a.e(f'v_lshlrev_b32 v{t7}, 6, v3')
    a.e(f'v_lshl_add_u32 v{t7}, v2, 4, v{t7}')
    a.e(f'v_add_u32 v{t7}, {K1B_L + dt*1024}, v{t7}')
    a.e(f'ds_read_b128 v[{QO}:{QO+3}], v{t7}')
    a.e(f'v_add_u32 v{t8}, {WO_L - w*10240}, v24')
    for k, t in enumerate(nts):
        for hq in range(2):
            a.e(f'ds_read_b64_tr_b16 v[{PO+4*k+2*hq}:{PO+4*k+2*hq+1}], v{t8} offset:{16*hq*160 + 32*t}')
    a.e('s_waitcnt lgkmcnt(0)')
    for k, t in enumerate(nts):
        a.e(f'v_mfma_f32_16x16x32_bf16 v[{DO+4*k}:{DO+4*k+3}], v[{PO+4*k}:{PO+4*k+3}], v[{QO}:{QO+3}], 0')
    a.e(f'v_add_u32 v{t7}, {16*dt}, v3')
    a.e(f'v_mul_u32_u24 v{t9}, 1280, v{t7}')
    a.e(f'v_add_u32 v{t9}, v{t9}, v29')
    if dt:
        a.e(f'v_cmp_lt_u32 vcc, 19, v{t7}')
        a.e(f'v_mov_b32 v{t10}, 0x7fffffff')
        a.e(f'v_cndmask_b32 v{t9}, v{t9}, v{t10}, vcc')
    for i in range(10):
        unpack(a, XQ+2*i, XQ+2*i+1, PQR+i)
    a.e(f'v_mul_f32 v{t10}, v{XQ}, v{ZR}')
    for i in range(1, 20):
        a.e(f'v_fmac_f32 v{t10}, v{XQ+i}, v{ZR+i}')
    rnd1(a, t10)
    a.e(f'v_add_f32 v{t10}, {hx(f2u(1e-6))}, v{t10}')
    rnd1(a, t10)
    a.e(f'v_rcp_f32 v{t10}, v{t10}')
    for i in range(10):
        a.e(f'v_mul_f32 v{XQ+2*i}, v{XQ+2*i}, v{t10}')
        a.e(f'v_mul_f32 v{XQ+2*i+1}, v{XQ+2*i+1}, v{t10}')
        a.e(f'v_cvt_pk_bf16_f32 v{PQR+i}, v{XQ+2*i}, v{XQ+2*i+1}')
    for m in range(5):
        a.e(f'buffer_store_dwordx2 v[{PQR+2*m}:{PQR+2*m+1}], v25, s[8:11], s{92+m} offen{SC}')
    for k, t in enumerate(nts):
        a.e(f'v_cvt_pk_bf16_f32 v{GR+2*k}, v{DO+4*k}, v{DO+4*k+1}')
        a.e(f'v_cvt_pk_bf16_f32 v{GR+2*k+1}, v{DO+4*k+2}, v{DO+4*k+3}')
        a.e(f'buffer_store_dwordx2 v[{GR+2*k}:{GR+2*k+1}], v{t9}, s[16:19], s97 offen offset:{32*t}{SC}')

def k2_srds(a):
    srd(a, 4, 76, 77, H, SZ_H)
    srd(a, 8, 76, 77, PQS, SZ_ACT)
    srd(a, 12, 68, 69, 0, 1536*640*2)
    srd(a, 16, 76, 77, MM, SZ_MM)
    srd(a, 28, 70, 71, 0, 1280)
    srd(a, 36, 72, 73, 0, SZ_ACT)

def k2_seg(a, w, src, steps, first):
    st_ = St(a)
    n = len(steps)
    def issue_A(si):
        ks = steps[si]; b = A2 + (si % 3)*32
        L = []
        for rt in range(4):
            for kh in range(2):
                r0 = b + (rt*2+kh)*4
                if src == 'h':
                    L.append([f's_mov_b32 s32, {ks*2048}', f'buffer_load_dwordx4 v[{r0}:{r0+3}], v{6+rt}, s[4:7], s32 offen offset:{kh*1024}{SC}'])
                else:
                    L.append([f's_mov_b32 s32, {ks*2048}', f'buffer_load_dwordx4 v[{r0}:{r0+3}], v{10+rt}, s[8:11], s32 offen offset:{kh*1024}{SC}'])
        return L
    def issue_B(si):
        ks = steps[si]
        L = []
        for i in range(10):
            L.append([f's_mov_b32 s33, {ks*81920}', f's_mov_b32 m0, {w*10240 + (si%3)*40960 + i*1024}',
                      f'buffer_load_dwordx4 v{14+i}, s[{12 if src=="h" else 16}:{15 if src=="h" else 19}], s33 offen{"" if src=="h" else SC} lds'])
        return L
    def emit(L):
        for grp in L:
            for x in grp: a.e(x)
    def rd(si, t):
        bb = BF2 + (t % 4)*8
        off0 = (si%3)*40960
        base = 24
        if off0 >= 65536 - 10240:
            off0 -= 65536; base = 30
        for hq in range(4):
            a.e(f'ds_read_b64_tr_b16 v[{bb+2*hq}:{bb+2*hq+1}], v{base} offset:{off0 + (32*(hq>>1)+16*(hq&1))*160 + 32*t}')
    rlq = f'buffer_load_dwordx2 v[38:39], v37, s[80:83], s35 offen{SC}'
    rlm = f'buffer_load_dwordx4 v[36:39], v32, s[80:83], s34 offen{SC}'
    if src == 'h':
        a.e('v_and_b32 v32, 7, v1')
        a.e('v_lshlrev_b32 v32, 2, v32')
        a.e('s_lshr_b32 s34, s41, 1')
        a.e('s_lshl_b32 s34, s34, 7')
        rl = f'buffer_load_dword v33, v32, s[80:83], s34 offen{SC}'
        a.e(rl)
        a.e('s_waitcnt vmcnt(0)')
        poll_check(a, [33], '1', rl)
        emit(issue_A(0)); emit(issue_A(1))
        a.e('v_lshlrev_b32 v37, 3, v1')
        a.e(f's_mov_b32 s35, {FQ_O}')
        a.e(rlq)
        waits = {0: 9, 1: 18}
    else:
        a.e('s_waitcnt vmcnt(0)')
        poll_check(a, [36, 37, 38, 39], '1', rlm)
        emit(issue_A(0)); emit(issue_B(0)); emit(issue_A(1)); emit(issue_B(1))
        waits = {}
    for si in range(n):
        wv = waits.get(si, 18) if si+1 < n else 0
        if src == 'h' and si == 2: wv = 18
        a.e(f's_waitcnt vmcnt({wv})')
        st_(20 + (0 if src == 'h' else 8) + si)
        if src == 'h':
            if si == 1:
                poll_check(a, [38, 39], '1', rlq)
                k1b_loads(a, w)
            if si == 3:
                k1b_compute(a, w)
            if si == 4:
                a.e('s_barrier')
                if w == 0:
                    a.e('v_mov_b32 v32, 1')
                    a.e('v_mov_b32 v33, 0')
                    a.e(f'buffer_store_dword v32, v33, s[80:83], s49 offen{SC}')
        rd(si, 0); rd(si, 1); rd(si, 2)
        L = (issue_A(si+2) + issue_B(si+2)) if si+2 < n else []
        if src == 'h' and si == 5:
            L = [['v_lshlrev_b32 v32, 4, v1', f's_mov_b32 s34, {FM_O}'], [], [], [], [], [], [], [], [], [], [], [], [], [], [], [], [rlm]]
        ab = A2 + (si % 3)*32
        for t in range(5):
            if t+3 < 5: rd(si, t+3)
            infl = min(4, t+3) - t
            a.e(f's_waitcnt lgkmcnt({4*infl})')
            bb = BF2 + (t % 4)*8
            for kh in range(2):
                for rt in range(4):
                    d = (rt*5 + t)*4
                    A_ = f'v[{ab+(rt*2+kh)*4}:{ab+(rt*2+kh)*4+3}]'
                    B_ = f'v[{bb+kh*4}:{bb+kh*4+3}]'
                    C_ = '0' if (first and si == 0 and kh == 0) else f'a[{d}:{d+3}]'
                    a.e(f'v_mfma_f32_16x16x32_bf16 a[{d}:{d+3}], {B_}, {A_}, {C_}')
                    if rt % 2 == 1 and L: emit([L.pop(0)])
        emit(L)

def k2_epi(a, w):
    st_ = St(a)
    st_(32)
    XB = 176
    RR = [r for r in range(A2, A2+60, 4)]
    a.e(f'v_add_u32 v30, {w*16*1280}, v28')
    for t in range(5):
        a.e(f'buffer_load_dwordx2 v[{XB+2*t}:{XB+2*t+1}], v30, s[88:91], 0 offen offset:{32*t}')
        a.e(f'buffer_load_dwordx2 v[{XB+10+2*t}:{XB+11+2*t}], v29, s[28:31], 0 offen offset:{32*t}')
    a.e('s_barrier')
    for rt in range(4):
        if rt == w: continue
        for t in range(5):
            d = (rt*5+t)*4
            off = w*20480 + (rt*5+t)*1024
            if off < 65536: a.e(f'ds_write_b128 v26, a[{d}:{d+3}] offset:{off}')
            else: a.e(f'ds_write_b128 v27, a[{d}:{d+3}] offset:{off-65536}')
    OWN = 200
    for i in range(20):
        a.e(f'v_accvgpr_read_b32 v{OWN+i}, a{w*20+i}')
    a.e('s_waitcnt lgkmcnt(0)')
    a.e('s_barrier')
    k = 0
    for ws_ in range(4):
        if ws_ == w: continue
        for t in range(5):
            off = ws_*20480 + (w*5+t)*1024
            r0 = RR[k*5+t]
            if off < 65536: a.e(f'ds_read_b128 v[{r0}:{r0+3}], v26 offset:{off}')
            else: a.e(f'ds_read_b128 v[{r0}:{r0+3}], v27 offset:{off-65536}')
        k += 1
    a.e('s_waitcnt vmcnt(0) lgkmcnt(0)')
    for t in range(5):
        d = OWN + 4*t
        for q in range(4):
            a.e(f'v_add_f32 v{RR[t]+q}, v{RR[t]+q}, v{RR[5+t]+q}')
            a.e(f'v_add_f32 v{d+q}, v{d+q}, v{RR[10+t]+q}')
            a.e(f'v_add_f32 v{d+q}, v{d+q}, v{RR[t]+q}')
        for hf in range(2):
            unpack(a, 32, 33, XB+2*t+hf)
            unpack(a, 34, 35, XB+10+2*t+hf)
            a.e(f'v_add_f32 v{d+2*hf}, v{d+2*hf}, v34')
            a.e(f'v_add_f32 v{d+2*hf+1}, v{d+2*hf+1}, v35')
            a.e(f'v_add_f32 v{d+2*hf}, v{d+2*hf}, v32')
            a.e(f'v_add_f32 v{d+2*hf+1}, v{d+2*hf+1}, v33')
            a.e(f'v_cvt_pk_bf16_f32 v{36+hf}, v{d+2*hf}, v{d+2*hf+1}')
        a.e(f'buffer_store_dwordx2 v[36:37], v30, s[36:39], 0 offen offset:{32*t}')
    if STAMP:
        a.e('s_waitcnt vmcnt(0)')
        st_(33); st_.dump()
    a.e('s_branch KF_END')

def wave_switch(a, pre):
    a.e('s_cmp_eq_u32 s40, 1'); a.e(f's_cbranch_scc1 {pre}1')
    a.e('s_cmp_eq_u32 s40, 2'); a.e(f's_cbranch_scc1 {pre}2')
    a.e('s_cmp_eq_u32 s40, 3'); a.e(f's_cbranch_scc1 {pre}3')

def gen_kf():
    a = Asm()
    kernel_head(a, 'kf_kernel')
    a.e('s_cmp_ge_u32 s2, 256')
    a.e('s_cbranch_scc1 KF_END')
    st_ = St(a)
    st_.real(62); st_()
    a.e('s_load_dwordx2 s[64:65], s[0:1], 0')
    a.e('s_load_dwordx2 s[26:27], s[0:1], 8')
    a.e('s_load_dwordx2 s[66:67], s[0:1], 16')
    a.e('s_load_dwordx4 s[28:31], s[0:1], 32')
    a.e('s_load_dwordx8 s[68:75], s[0:1], 48')
    a.e('s_load_dwordx2 s[76:77], s[0:1], 80')
    lane_decomp(a)
    a.e('s_and_b32 s21, s2, 3')
    a.e('s_lshl_b32 s21, s21, 2')
    a.e('s_bfe_u32 s22, s2, 0x20003')
    a.e('s_add_u32 s21, s21, s22')
    a.e('s_lshr_b32 s22, s2, 5')
    a.e('s_waitcnt lgkmcnt(0)')
    a.e('s_mov_b64 s[24:25], s[76:77]')
    srd(a, 80, 76, 77, FLG, 0x30000)
    srd(a, 84, 74, 75, 0, 256)
    srd(a, 88, 64, 65, 0, SZ_ACT)
    p0_loads(a)
    a.e('v_lshlrev_b32 v24, 3, v0')
    a.e(f'v_add_u32 v24, {K1B_L}, v24')
    a.e('v_mov_b32 v26, 0')
    a.e('v_mov_b32 v27, 0')
    a.e('ds_write_b64 v24, v[26:27]')
    a.e('s_bitcmp1_b32 s2, 2')
    a.e('s_cbranch_scc1 K1_H')
    n0 = St.n
    k1_type(a, 'QKV')
    a.label('K1_H')
    St.n = n0
    k1_type(a, 'H')
    a.label('K1_DONE')
    st_(18)
    a.e('s_waitcnt vmcnt(0)')
    a.e('s_barrier')
    lb = newlab('F1')
    a.e('s_cmp_lg_u32 s20, 0')
    a.e(f's_cbranch_scc1 {lb}')
    a.e('v_mov_b32 v24, 1')
    a.e('v_mov_b32 v25, 0')
    a.e(f'buffer_store_dword v24, v25, s[80:83], s48 offen{SC}')
    a.label(lb)
    st_(19)
    a.e('s_mov_b32 s40, s20')
    k2_ids(a)
    a.e('s_lshl_b32 s43, s41, 6')
    a.e('v_lshlrev_b32 v26, 4, v1')
    a.e('v_add_u32 v27, 65536, v26')
    a.e('s_mul_i32 s45, s41, 196608')
    a.e('v_add_u32 v6, s45, v26')
    a.e('s_mul_i32 s45, s41, 81920')
    a.e('v_add_u32 v10, s45, v26')
    for rt in range(1, 4):
        a.e(f'v_add_u32 v{6+rt}, {rt*49152}, v6')
        a.e(f'v_add_u32 v{10+rt}, {rt*20480}, v10')
    a.e('v_add_u32 v30, s43, v3')
    a.e('v_mul_u32_u24 v28, 1280, v30')
    a.e('v_lshl_add_u32 v28, v2, 3, v28')
    a.e('v_add_u32 v28, s44, v28')
    a.e('v_lshlrev_b32 v29, 3, v2')
    a.e('v_add_u32 v29, s44, v29')
    k2_boffs(a, 14, 32)
    a.e('v_lshl_add_u32 v30, v2, 2, v4')
    a.e('v_mul_u32_u24 v30, 160, v30')
    a.e('v_lshl_add_u32 v30, v5, 3, v30')
    a.e('s_mul_i32 s45, s40, 10240')
    a.e('v_add_u32 v24, s45, v30')
    a.e('v_add_u32 v30, 65536, v24')
    k1b_setup(a)
    k2_srds(a)
    wave_switch(a, 'K2_W')
    for w in range(4):
        if w: a.label(f'K2_W{w}')
        k2_seg(a, w, 'h', K2_H[w], True)
        St(a)(26)
        k2_seg(a, w, 'a', K2_A[w], False)
        k2_epi(a, w)
    a.label('KF_END')
    a.e('s_endpgm')
    return a

def desc(name):
    return f'''.amdhsa_kernel {name}
  .amdhsa_next_free_vgpr 336
  .amdhsa_next_free_sgpr 102
  .amdhsa_accum_offset 256
  .amdhsa_group_segment_fixed_size 0
  .amdhsa_kernarg_size 88
  .amdhsa_user_sgpr_count 2
  .amdhsa_user_sgpr_kernarg_segment_ptr 1
  .amdhsa_system_sgpr_workgroup_id_x 1
  .amdhsa_float_denorm_mode_32 3
.end_amdhsa_kernel
'''

if __name__ == '__main__':
    a = gen_kf()
    out = HEADER + f'; @launch kernel=kf_kernel grid=(256,1,1) block=(256,1,1) lds={LDS_TOTAL}\n'
    out += '.amdgcn_target "amdgcn-amd-amdhsa--gfx950"\n.text\n' + a.text()
    out += '.section .rodata,"a"\n.p2align 6\n' + desc('kf_kernel')
    open(os.environ.get('OUT', 'f.s'), 'w').write(out)
```

```python
import sys, os
sys.path.insert(0, 'work')
from gen import *
from gen_k1 import lane_decomp, unpack, C1, C2, KV_PAIRS
from g3 import ln_stats, ln_norm, gelu4, phi4, newlab, poll_check
import g3
X = os.environ.get('KX', '')
STAMP = 'stamp' in X

FLG = 0x1400000
FH_O, FK_O, FP_O, FM_O, STS_O, CSM_O = 0x0, 0x1000, 0x1800, 0x2000, 0x10000, 0x20000
W2F, MF = 0x1500000, 0x1700000
SZ_W2F, SZ_MF = 8*48*5*1024, 8*20*5*1024
AOFF = 98304
TR_L = 73728
KVR_L = 0
CSL = 147456
K1B_L = 148480
ROLE_L = K1B_L + 2944
WO_L = 81920
PQ_L = 98304
LDS_TOTAL = 148480 + 3072
SC = ' sc1'

class St:
    def __init__(self, a): self.a = a
    def __call__(self, n):
        if not STAMP: return
        a = self.a
        a.e('s_memtime s[100:101]')
        a.e('s_waitcnt lgkmcnt(0)')
        a.e(f'v_writelane_b32 v255, s100, {n}')
    def real(self, n):
        if not STAMP: return
        a = self.a
        a.e('s_memrealtime s[100:101]')
        a.e('s_waitcnt lgkmcnt(0)')
        a.e(f'v_writelane_b32 v255, s100, {n}')
    def dump(self):
        if not STAMP: return
        a = self.a
        self.real(63)
        srd(a, 92, 76, 77, 0x3000000, 0x40000)
        a.e('s_lshl_b32 s96, s2, 10')
        a.e('v_lshlrev_b32 v254, 2, v0')
        a.e('v_add_u32 v254, s96, v254')
        a.e('buffer_store_dword v255, v254, s[92:95], 0 offen')

class VT:
    def __init__(self, a): self.a = a; self.q = []
    def op(self, text, tag):
        self.a.e(text); self.q.append(tag)
    def wait(self, *tags):
        last = -1
        for i, t in enumerate(self.q):
            if t in tags: last = i
        n = len(self.q) - 1 - last
        self.a.e(f's_waitcnt vmcnt({min(n, 63)})')
        if n <= 63: self.q = self.q[last+1:]
    def drain(self):
        self.a.e('s_waitcnt vmcnt(0)'); self.q = []
    def copy(self):
        v = VT(self.a); v.q = list(self.q); return v

def wave0(a, body):
    lb = newlab('W0')
    a.e('s_cmp_lg_u32 s20, 0')
    a.e(f's_cbranch_scc1 {lb}')
    body()
    a.label(lb)

ABUF, BF, ACC = 32, 48, 80
BIAS = 176
CSH = 224
PX, PXX, PP = 80, 90, 110
PC = 128

def p0_loads(a, vt):
    a.e('v_lshrrev_b32 v24, 5, v0')
    a.e('v_and_b32 v25, 31, v0')
    a.e('s_lshl_b32 s3, s2, 3')
    a.e('v_add_u32 v24, s3, v24')
    a.e('v_mul_u32_u24 v26, 1280, v24')
    a.e('v_lshl_add_u32 v26, v25, 3, v26')
    for i in range(5):
        vt.op(f'buffer_load_dwordx2 v[{PX+2*i}:{PX+1+2*i}], v26, s[88:91], 0 offen offset:{256*i}', 'px')
    a.e('v_lshlrev_b32 v125, 13, v25')
    a.e('v_lshl_add_u32 v125, v24, 2, v125')
    a.e('v_mov_b32 v126, v25')

def cs_loads(a, vt):
    a.e('s_sub_u32 s3, s51, 216')
    a.e('s_cmp_ge_u32 s51, 216')
    a.e('s_cselect_b32 s3, s3, s51')
    a.e('s_mul_i32 s36, s3, 1214')
    a.e('s_lshr_b32 s36, s36, 16')
    a.e('s_mul_i32 s37, s36, 54')
    a.e('s_sub_u32 s3, s3, s37')
    a.e('s_lshl_b32 s50, s36, 14')
    a.e('s_lshl_b32 s37, s3, 8')
    a.e('s_add_u32 s50, s50, s37')
    a.e(f's_add_u32 s50, s50, {CSM_O}')
    a.e('s_mul_i32 s39, s36, 160')
    a.e('s_cmp_lt_u32 s3, 30')
    a.e('s_cselect_b32 s40, s26, s28')
    a.e('s_cselect_b32 s41, s27, s29')
    a.e('s_movk_i32 s36, 3072')
    a.e('s_cselect_b32 s36, 3840, s36')
    a.e('s_mov_b32 s42, %d' % (640*1536*2))
    a.e('s_cselect_b32 s42, %d, s42' % (640*1920*2))
    a.e('s_cselect_b32 s37, 0, 30')
    a.e('s_mov_b32 s43, 0x00020000')
    a.e('s_sub_u32 s37, s3, s37')
    a.e('s_lshl_b32 s37, s37, 7')
    a.e('s_mul_i32 s38, s20, 40')
    a.e('s_add_u32 s39, s39, s38')
    a.e('v_lshrrev_b32 v26, 3, v1')
    a.e('v_add_u32 v26, s39, v26')
    a.e('v_mul_lo_u32 v26, v26, s36')
    a.e('v_and_b32 v27, 7, v1')
    a.e('v_lshl_add_u32 v26, v27, 4, v26')
    a.e('v_add_u32 v26, s37, v26')
    a.e('s_lshl_b32 s36, s36, 3')
    a.e('s_mov_b32 s37, 0')
    for i in range(5):
        vt.op(f'buffer_load_dwordx4 a[{4*i}:{4*i+3}], v26, s[40:43], s37 offen', 'cs')
        if i < 4: a.e('s_add_u32 s37, s37, s36')
    a.e('v_lshlrev_b32 v253, 5, v27')
    a.e('s_lshl_b32 s39, s20, 8')
    a.e(f's_add_u32 s39, s39, {CSL}')
    a.e('v_add_u32 v253, s39, v253')

def cs_compute(a, A0):
    T0 = A0 + 8
    for i in range(5):
        for c2 in range(4):
            a.e(f'v_accvgpr_read_b32 v{T0+4+c2}, a{4*i+c2}')
        for c2 in range(4):
            if i == 0:
                unpack(a, A0+2*c2, A0+2*c2+1, T0+4+c2)
            else:
                unpack(a, T0+2*(c2&1), T0+1+2*(c2&1), T0+4+c2)
                a.e(f'v_add_f32 v{A0+2*c2}, v{A0+2*c2}, v{T0+2*(c2&1)}')
                a.e(f'v_add_f32 v{A0+2*c2+1}, v{A0+2*c2+1}, v{T0+1+2*(c2&1)}')
    for c in range(8):
        a.e(f'v_add_f32_dpp v{A0+c}, v{A0+c}, v{A0+c} row_ror:8 row_mask:0xf bank_mask:0xf')
    for sw in ('v_permlane16_swap_b32', 'v_permlane32_swap_b32'):
        for c in range(8): a.e(f'v_mov_b32 v{T0+c}, v{A0+c}')
        for c in range(8): a.e(f'{sw} v{A0+c}, v{T0+c}')
        for c in range(8): a.e(f'v_add_f32 v{A0+c}, v{A0+c}, v{T0+c}')
    a.e(f'ds_write_b128 v253, v[{A0}:{A0+3}]')
    a.e(f'ds_write_b128 v253, v[{A0+4}:{A0+7}] offset:16')
    a.e('s_waitcnt lgkmcnt(0)')

def p0_compute(a, vt):
    vt.wait('px')
    for i in range(10):
        a.e(f'v_lshlrev_b32 v{PXX+2*i}, 16, v{PX+i}')
        a.e(f'v_and_b32 v{PXX+2*i+1}, 0xffff0000, v{PX+i}')
    ln_stats(a, PXX, PP, 120, 121, 122)
    ln_norm(a, PXX, PP, 120, 121)
    a.e('v_mul_f32 v123, v120, v121')
    a.e('v_sub_f32 v123, 0, v123')
    a.e('v_mov_b32 v124, v121')
    ln_stats(a, PXX, PP, 120, 121, 122)
    a.e('v_mul_f32 v122, v124, v121')
    a.e('v_sub_f32 v120, v123, v120')
    a.e('v_mul_f32 v120, v120, v121')
    a.e('v_cmp_eq_u32 vcc, 1, v126')
    a.e('v_cndmask_b32 v124, v124, v123, vcc')
    a.e('v_cmp_eq_u32 vcc, 2, v126')
    a.e('v_cndmask_b32 v124, v124, v122, vcc')
    a.e('v_cmp_eq_u32 vcc, 3, v126')
    a.e('v_cndmask_b32 v124, v124, v120, vcc')
    a.e('v_cmp_gt_u32 vcc, 4, v126')
    a.e('s_and_saveexec_b64 s[44:45], vcc')
    vt.op(f'buffer_store_dword v124, v125, s[80:83], s46 offen{SC}', 'st')
    a.e('s_mov_b64 exec, s[44:45]')

RC_O = 0x3000
def role_issue(a):
    a.e('s_getreg_b32 s21, hwreg(HW_REG_XCC_ID, 0, 4)')
    a.e('s_and_b32 s21, s21, 7')
    a.e('v_mov_b32 v20, 31')
    a.e('v_mov_b32 v21, 0')
    def b():
        a.e('s_lshl_b32 s4, s21, 8')
        a.e(f's_add_u32 s4, s4, {RC_O}')
        a.e('s_mov_b64 s[44:45], exec')
        a.e('s_mov_b64 exec, 1')
        a.e('buffer_atomic_inc v20, v21, s[80:83], s4 offen sc0 sc1')
        a.e('s_mov_b64 exec, s[44:45]')
    wave0(a, b)

def role_get(a, nafter):
    def b():
        a.e(f's_waitcnt vmcnt({nafter})')
        a.e('v_readfirstlane_b32 s5, v20')
        a.e('s_min_u32 s5, s5, 31')
        a.e('s_lshl_b32 s6, s5, 3')
        a.e('s_add_u32 s6, s6, s21')
        a.e('v_mov_b32 v20, s6')
        a.e(f'v_mov_b32 v21, {ROLE_L}')
        a.e('ds_write_b32 v21, v20')
        a.e('s_waitcnt lgkmcnt(0)')
    wave0(a, b)
    a.e('s_barrier')
    a.e(f'v_mov_b32 v21, {ROLE_L}')
    a.e('ds_read_b32 v20, v21')
    a.e('s_waitcnt lgkmcnt(0)')
    a.e('s_mov_b32 s51, s2')
    a.e('v_readfirstlane_b32 s2, v20')
    a.e('s_and_b32 s2, s2, 255')

def poll0(a, regs, want, load, sleep=8):
    def b():
        L = newlab('PL'); D = newlab('PD')
        a.e('s_mov_b32 s98, 0')
        a.label(L)
        a.e(load)
        a.e('s_waitcnt vmcnt(0)')
        t = regs[0]
        for r in regs[1:]:
            a.e(f'v_and_b32 v{t}, v{t}, v{r}')
        a.e(f'v_cmp_ne_u32 vcc, {want}, v{t}')
        a.e(f's_cbranch_vccz {D}')
        a.e('s_add_u32 s98, s98, 1')
        a.e('s_cmp_ge_u32 s98, 0x20000')
        a.e(f's_cbranch_scc1 {D}')
        a.e(f's_sleep {sleep}')
        a.e(f's_branch {L}')
        a.label(D)
    wave0(a, b)
    a.e('s_barrier')

def k2_ids(a):
    a.e('s_and_b32 s60, s2, 3')
    a.e('s_lshl_b32 s60, s60, 3')
    a.e('s_bfe_u32 s61, s2, 0x30003')
    a.e('s_add_u32 s60, s60, s61')
    a.e('s_bfe_u32 s61, s2, 0x10002')
    a.e('s_lshl_b32 s61, s61, 2')
    a.e('s_lshr_b32 s62, s2, 6')
    a.e('s_add_u32 s61, s61, s62')

def unit_off(a, dst, t0, i, sbase):
    a.e(f'v_add_u32 v{t0}, {64*i}, v1') if isinstance(i, int) else a.e(f'v_add_u32 v{t0}, {i}, v1')
    a.e(f'v_mul_u32_u24 v{t0+1}, 6554, v{t0}')
    a.e(f'v_lshrrev_b32 v{t0+1}, 16, v{t0+1}')
    a.e(f'v_mul_u32_u24 v{t0+2}, 10, v{t0+1}')
    a.e(f'v_sub_u32 v{t0+2}, v{t0}, v{t0+2}')
    a.e(f'v_mul_u32_u24 v{dst}, 1280, v{t0+1}')
    a.e(f'v_lshl_add_u32 v{dst}, v{t0+2}, 4, v{dst}')
    a.e(f'v_add_u32 v{dst}, {sbase}, v{dst}')

def pf_group(j):
    g = []
    if j % 4 == 0: g.append(f's_add_u32 s57, s56, {j*1024}')
    g.append((f'buffer_load_dwordx4 a[{4*j}:{4*j+3}], v252, s[52:55], s57 offen offset:{(j%4)*1024}{SC}', 'pf'))
    return g

def k1_type(a, typ, vt):
    st_ = St(a)
    NT = 12 if typ == 'H' else 15
    ldb = 3072 if typ == 'H' else 3840
    RB = 32*NT
    SB = 24576 if typ == 'H' else 32768
    ND = 6 if typ == 'H' else 8
    def emit(L):
        for grp in L:
            for x in grp:
                if isinstance(x, tuple): vt.op(*x)
                else: a.e(x)
    if typ == 'H':
        srd(a, 8, 28, 29, 0, 640*1536*2)
        srd(a, 12, 24, 25, H, SZ_H)
        srd(a, 16, 30, 31, 0, 1536*2)
        a.e('s_mul_i32 s35, s22, 384')
    else:
        srd(a, 8, 26, 27, 0, 640*1920*2)
        srd(a, 12, 24, 25, PQ, SZ_ACT)
        srd(a, 16, 24, 25, KVP, SZ_KVP)
        a.e('s_mul_i32 s35, s22, 160')
    a.e('s_lshl_b32 s23, s21, 3')
    a.e('s_lshl_b32 s36, s20, 1')
    a.e('s_add_u32 s23, s23, s36')
    a.e('s_mul_i32 s36, s23, 20480')
    a.e('v_lshrrev_b32 v24, 3, v1')
    a.e('v_mul_u32_u24 v25, 1280, v24')
    a.e('v_add_u32 v25, s36, v25')
    a.e('v_and_b32 v26, 7, v1')
    a.e('v_xor_b32 v26, v26, v2')
    a.e('v_lshl_add_u32 v6, v26, 4, v25')
    a.e('v_xor_b32 v26, 4, v26')
    a.e('v_lshl_add_u32 v7, v26, 4, v25')
    a.e(f'v_add_u32 v7, {8*1280}, v7')
    a.e(f'v_add_u32 v8, {16*1280}, v6')
    a.e(f'v_add_u32 v9, {16*1280}, v7')
    a.e('s_lshl_b32 s47, s20, 12')
    a.e(f's_add_u32 s47, s47, {AOFF}')
    def issue_A(ks):
        st = ks % 3
        return [[f's_mov_b32 s32, {ks*128}', f's_add_u32 m0, s47, {st*16384 + i*1024}',
                 (f'buffer_load_dwordx4 v{6+i}, s[88:91], s32 offen lds', f'r{ks}')] for i in range(4)]
    emit(issue_A(0))
    a.e(f's_mul_i32 s36, s20, {ND*64}')
    a.e(f's_mul_i32 s34, s20, {ND*1024}')
    upr = 2*NT
    magic = {24: 43691, 30: 34953}[upr]
    BO = 10
    def issue_B1(ks, i):
        st = ks % 3
        return [f's_mov_b32 s33, {ks*64*ldb}', f's_add_u32 m0, s34, {st*SB + i*1024}',
                (f'buffer_load_dwordx4 v{BO+i}, s[8:11], s33 offen lds', f'r{ks}')]
    for i in range(ND):
        a.e(f'v_add_u32 v24, s36, v1')
        if i: a.e(f'v_add_u32 v24, {64*i}, v24')
        if typ != 'H' and i >= 6:
            a.e('v_subrev_u32 v25, 128, v24')
            a.e('v_cmp_lt_u32 vcc, 1919, v24')
            a.e('v_cndmask_b32 v24, v24, v25, vcc')
        a.e(f'v_mul_u32_u24 v25, {magic}, v24')
        a.e('v_lshrrev_b32 v25, 20, v25')
        a.e(f'v_mul_u32_u24 v26, {upr}, v25')
        a.e('v_sub_u32 v26, v24, v26')
        a.e('v_bfe_u32 v27, v25, 2, 1')
        a.e('v_bfe_u32 v28, v25, 3, 1')
        a.e('v_xor_b32 v27, v27, v28')
        a.e('v_mul_u32_u24 v27, 12, v27')
        a.e('v_xor_b32 v27, v27, v25')
        a.e(f'v_mul_u32_u24 v{BO+i}, {ldb}, v27')
        if typ == 'H':
            a.e('v_bfe_u32 v28, v25, 1, 2')
            a.e('v_lshlrev_b32 v28, 1, v28')
            a.e('v_xor_b32 v26, v26, v28')
            a.e(f'v_lshl_add_u32 v{BO+i}, v26, 4, v{BO+i}')
        else:
            a.e(f'v_lshl_add_u32 v{BO+i}, v26, 4, v{BO+i}')
            a.e('v_mul_u32_u24 v28, 6554, v26')
            a.e('v_lshrrev_b32 v28, 16, v28')
            a.e('v_mul_u32_u24 v28, 1120, v28')
            a.e(f'v_add_u32 v{BO+i}, v28, v{BO+i}')
        a.e(f'v_add_u32 v{BO+i}, s35, v{BO+i}')
        emit([issue_B1(0, i)])
    def issue_list(ks):
        return issue_A(ks) + [issue_B1(ks, i) for i in range(ND)]
    emit(issue_list(1))
    cs_loads(a, vt)
    if typ == 'H':
        a.e('v_lshlrev_b32 v24, 3, v2')
        a.e('v_add_u32 v24, s35, v24')
        for t in range(NT):
            vt.op(f'buffer_load_dwordx2 v[{CSH+2*t}:{CSH+2*t+1}], v24, s[16:19], 0 offen offset:{32*t}', 'bias')
    a.e('v_mov_b32 v24, 0')
    if typ == 'H':
        a.e('s_lshl_b32 s48, s21, 7')
        a.e('s_lshl_b32 s36, s22, 2')
        a.e('s_add_u32 s48, s48, s36')
        a.e('s_lshl_b32 s49, s21, 3')
        a.e('s_add_u32 s49, s49, s22')
        a.e('s_mov_b32 s63, s49')
        a.e('s_lshl_b32 s49, s49, 2')
        a.e(f's_add_u32 s49, s49, {FM_O}')
    else:
        a.e('s_lshl_b32 s48, s22, 6')
        a.e('s_lshl_b32 s36, s21, 2')
        a.e('s_add_u32 s48, s48, s36')
        a.e(f's_add_u32 s49, s48, {FP_O}')
        a.e(f's_add_u32 s48, s48, {FK_O}')
    vt.op(f'buffer_store_dword v24, v24, s[80:83], s48 offen{SC}', 'st')
    vt.op(f'buffer_store_dword v24, v24, s[80:83], s49 offen{SC}', 'st')
    a.e('v_lshrrev_b32 v24, 1, v2')
    a.e('v_lshlrev_b32 v24, 4, v24')
    a.e('v_and_b32 v25, 1, v2')
    a.e('v_lshl_add_u32 v24, v25, 2, v24')
    a.e('v_add_u32 v24, v24, v4')
    a.e(f'v_mul_u32_u24 v24, {RB}, v24')
    a.e('v_lshl_add_u32 v24, v5, 3, v24')
    if typ == 'H':
        a.e('v_lshrrev_b32 v26, 1, v4')
        a.e('v_lshl_or_b32 v25, v25, 1, v26')
        for m in range(4):
            a.e(f'v_xor_b32 v26, {m}, v25')
            a.e(f'v_subrev_u32 v26, {m}, v26')
            a.e(f'v_lshl_add_u32 v{18+m}, v26, 5, v24')
        nb = 4
    else:
        a.e('v_mov_b32 v18, v24')
        a.e('v_add_u32 v19, 65536, v24')
        nb = 1
    a.e('v_lshrrev_b32 v24, 1, v3')
    a.e('v_xor_b32 v24, v24, v2')
    a.e('v_lshlrev_b32 v24, 4, v24')
    a.e('v_lshl_add_u32 v24, v3, 7, v24')
    a.e('v_add_u32 v22, s47, v24')
    a.e('v_xor_b32 v24, 64, v24')
    a.e('v_add_u32 v23, s47, v24')
    a.e(f's_mov_b32 s46, {STS_O}')
    p0_compute(a, vt)
    k2_ids(a)
    srd(a, 52, 76, 77, W2F, SZ_W2F)
    a.e('s_mul_i32 s56, s61, 245760')
    a.e('s_mul_i32 s57, s20, 61440')
    a.e('s_add_u32 s56, s56, s57')
    a.e('v_lshlrev_b32 v252, 4, v1')
    if typ == 'H':
        vt.wait('bias')
        for t in range(NT):
            unpack(a, BIAS+4*t, BIAS+4*t+1, CSH+2*t)
            unpack(a, BIAS+4*t+2, BIAS+4*t+3, CSH+2*t+1)
        srd(a, 40, 68, 69, 0, 1536*640*2)
        a.e('s_lshr_b32 s36, s63, 3')
        a.e('s_and_b32 s37, s63, 7')
        a.e('s_mul_i32 s38, s36, 122880')
        a.e('s_mul_i32 s39, s37, 160')
        a.e('s_add_u32 s38, s38, s39')
        a.e('s_lshl_b32 s39, s20, 6')
        for q in range(4):
            a.e(f's_add_u32 s44, s39, {256*q}')
            unit_off(a, 240+q, 24, 's44', 's38')
        a.e('s_mul_i32 s44, s37, 245760')
        a.e('s_mul_i32 s45, s36, 15360')
        a.e('s_add_u32 s44, s44, s45')
        a.e('s_lshl_b32 s45, s20, 10')
        a.e('s_add_u32 s58, s44, s45')
        a.e(f's_add_u32 s59, s45, {TR_L}')
        a.e('v_lshl_add_u32 v24, v2, 2, v4')
        a.e('v_mul_u32_u24 v24, 160, v24')
        a.e('v_lshl_add_u32 v24, v5, 3, v24')
        for q in range(4):
            a.e(f's_add_u32 s44, s20, {4*q}')
            a.e('s_mul_i32 s45, s44, 52')
            a.e('s_lshr_b32 s45, s45, 8')
            a.e('s_mul_i32 s36, s45, 5')
            a.e('s_sub_u32 s44, s44, s36')
            a.e('s_mul_i32 s45, s45, 5120')
            a.e('s_lshl_b32 s44, s44, 5')
            a.e('s_add_u32 s44, s44, s45')
            a.e(f's_add_u32 s44, s44, {TR_L}')
            a.e(f'v_add_u32 v{244+q}, s44, v24')
        a.e('v_mov_b32 v248, v252')
        a.e('v_mov_b32 v249, 0x7fffffff')
        a.e('s_cmp_eq_u32 s20, 3')
        a.e('s_cselect_b64 vcc, -1, 0')
        a.e('v_cndmask_b32 v249, v252, v249, vcc')
    def rd1(ks, t, hq):
        st = ks % 3; bb = BF + (t % 4)*8
        off = st*SB + (32*(hq>>1) + 8*(hq&1))*RB + 32*t
        base = 18 + (t % nb)
        if off >= 65536:
            assert nb == 1
            off -= 65536; base = 19
        a.e(f'ds_read_b64_tr_b16 v[{bb+2*hq}:{bb+2*hq+1}], v{base} offset:{off}')
    if typ == 'H':
        SA, SBr = 28, 30
        CP = 224
    else:
        CSQ, CSLN, SA, SBr, RA, RBr = 200, 220, 230, 232, 234, 242
        CP = 200
    f0poll = f'buffer_load_dword v24, v25, s[84:87], 0 offen{SC}'
    F0KS = 6 if typ == 'H' else 3
    for ks in range(10):
        if typ == 'H' and ks == 4: vt.wait('r4', 'tr')
        elif ks == F0KS: vt.wait(f'r{ks}', 'st')
        elif ks == 8: vt.wait('r8', 'f0')
        else: vt.wait(f'r{ks}')
        a.e('s_barrier')
        st_(1+ks)
        if ks == 2:
            def b():
                a.e('v_lshlrev_b32 v24, 2, v1')
                a.e(f'v_add_u32 v25, {CSL}, v24')
                for wv in range(4):
                    a.e(f'ds_read_b32 v{26+wv}, v25 offset:{256*wv}')
                a.e('s_waitcnt lgkmcnt(0)')
                a.e('v_add_f32 v26, v26, v27')
                a.e('v_add_f32 v28, v28, v29')
                a.e('v_add_f32 v26, v26, v28')
                a.e(f'buffer_store_dword v26, v24, s[80:83], s50 offen{SC}')
            wave0(a, b)
        if ks == F0KS:
            def b():
                a.e('s_and_b32 s36, s2, 31')
                a.e('s_lshl_b32 s36, 1, s36')
                a.e('v_mov_b32 v24, s36')
                a.e('s_lshr_b32 s36, s2, 5')
                a.e('s_lshl_b32 s36, s36, 2')
                a.e('v_mov_b32 v25, s36')
                a.e('s_mov_b64 s[44:45], exec')
                a.e('s_mov_b64 exec, 1')
                a.e('buffer_atomic_or v24, v25, s[84:87], 0 offen sc1')
                a.e('s_mov_b64 exec, s[44:45]')
            wave0(a, b)
        L = issue_list(ks+2) if ks+2 < 10 else []
        if typ == 'H' and ks == 2:
            L = [[f's_add_u32 m0, s59, {4096*q}', (f'buffer_load_dwordx4 v{240+q}, s[40:43], 0 offen lds', 'tr')] for q in range(4)] + L
        if typ == 'H' and ks == 4:
            for q in range(4):
                for hq in range(2):
                    a.e(f'ds_read_b64_tr_b16 v[{224+4*q+2*hq}:{225+4*q+2*hq}], v{244+q} offset:{2560*hq}')
            a.e('s_waitcnt lgkmcnt(0)')
            for q in range(4):
                a.e(f's_add_u32 s44, s58, {4096*q}')
                vt.op(f'buffer_store_dwordx4 v[{224+4*q}:{227+4*q}], v{248 if q < 3 else 249}, s[52:55], s44 offen{SC}', 'st')
        if ks == 7:
            L.append(['v_and_b32 v25, 7, v1', 'v_lshlrev_b32 v25, 2, v25', (f0poll, 'f0')])
        if ks == 8:
            poll_check(a, [24], '-1', f0poll)
            a.e('s_lshl_b32 s36, s23, 6')
            a.e('v_lshlrev_b32 v24, 2, v3')
            a.e('v_add_u32 v24, s36, v24')
            so = STS_O + (16384 if typ == 'H' else 0)
            a.e(f's_mov_b32 s37, {so}')
            a.e(f's_mov_b32 s39, {so + 8192}')
            a.e('s_lshl_b32 s40, s20, 6')
            a.e('v_add_u32 v26, s40, v1')
            if typ == 'H':
                a.e('s_mul_i32 s40, s22, 192')
                a.e(f's_add_u32 s40, s40, 1920')
                a.e('v_add_u32 v27, s40, v26')
            else:
                a.e('s_mul_i32 s40, s22, 80')
                a.e('v_mul_u32_u24 v27, 820, v26')
                a.e('v_lshrrev_b32 v27, 16, v27')
                a.e('v_mul_u32_u24 v27, 560, v27')
                a.e('v_add_u32 v27, v27, v26')
                a.e('v_add_u32 v27, s40, v27')
            a.e('v_lshlrev_b32 v27, 2, v27')
            for rg in range(4):
                a.e(f's_mov_b32 s40, {CSM_O + 16384*rg}')
                vt.op(f'buffer_load_dword v{CP+rg}, v27, s[80:83], s40 offen{SC}', 'cp')
            a.e('v_lshlrev_b32 v26, 2, v26')
            a.e(f'v_add_u32 v{CP+4}, {CSL}, v26')
            for rt in range(2):
                vt.op(f'buffer_load_dword v{SA+rt}, v24, s[80:83], s37 offen offset:{64*rt}{SC}', 'sts')
                vt.op(f'buffer_load_dword v{SBr+rt}, v24, s[80:83], s39 offen offset:{64*rt}{SC}', 'sts')
            if typ != 'H':
                a.e('v_lshlrev_b32 v25, 4, v2')
                a.e('v_add_u32 v25, s36, v25')
                for rt in range(2):
                    vt.op(f'buffer_load_dwordx4 v[{RA+4*rt}:{RA+4*rt+3}], v25, s[80:83], s37 offen offset:{64*rt}{SC}', 'sts')
                    vt.op(f'buffer_load_dwordx4 v[{RBr+4*rt}:{RBr+4*rt+3}], v25, s[80:83], s39 offen offset:{64*rt}{SC}', 'sts')
            L = [pf_group(j) for j in range(0, NPF0)]
        if ks == 9:
            L = [pf_group(j) for j in range(NPF0, NPF1)]
        st = ks % 3
        for rt in range(2):
            for kh in range(2):
                r0 = ABUF + (rt*2+kh)*4
                a.e(f'ds_read_b128 v[{r0}:{r0+3}], v{22+kh} offset:{st*16384 + rt*2048}')
        for t in range(3):
            for hq in range(4): rd1(ks, t, hq)
        ab = ABUF
        per = -(-len(L)//NT) if L else 0
        for t in range(NT):
            infl = min(NT-1, t+2) - t
            a.e(f's_waitcnt lgkmcnt({4*infl})')
            bb = BF + (t % 4)*8
            G = [L.pop(0) for _ in range(per) if L]
            n = 0
            for kh in range(2):
                for rt in range(2):
                    d = ACC + (rt*NT + t)*4
                    A_ = f'v[{ab+(rt*2+kh)*4}:{ab+(rt*2+kh)*4+3}]'
                    B_ = f'v[{bb+kh*4}:{bb+kh*4+3}]'
                    C_ = '0' if (ks == 0 and kh == 0) else f'v[{d}:{d+3}]'
                    if typ != 'H' and t >= 5:
                        a.e(f'v_mfma_f32_16x16x32_bf16 v[{d}:{d+3}], {A_}, {B_}, {C_}')
                    else:
                        a.e(f'v_mfma_f32_16x16x32_bf16 v[{d}:{d+3}], {B_}, {A_}, {C_}')
                    if t+3 < NT: rd1(ks, t+3, n)
                    if n in (0, 2) and G: emit([G.pop(0)])
                    n += 1
            emit(G)
            if ks == 9 and t == 4:
                vt.wait('cp')
                a.e(f'v_add_f32 v{CP}, v{CP}, v{CP+1}')
                a.e(f'v_add_f32 v{CP+2}, v{CP+2}, v{CP+3}')
                a.e(f'v_add_f32 v{CP}, v{CP}, v{CP+2}')
        emit(L)
        if ks == 1:
            vt.wait('cs')
            cs_compute(a, 224 if typ == 'H' else 200)
    a.e(f'ds_write_b32 v{CP+4}, v{CP}')
    a.e('s_waitcnt lgkmcnt(0)')
    a.e('s_barrier')
    st_(11)
    a.e('v_lshlrev_b32 v24, 4, v2')
    a.e(f'v_add_u32 v24, {CSL}, v24')
    if typ == 'H':
        CS2 = 56
        for t in range(12):
            cs = CSH + 4*t if t < 7 else CS2 + 4*(t-7)
            a.e(f'ds_read_b128 v[{cs}:{cs+3}], v24 offset:{64*t}')
        a.e('s_mul_i32 s36, s23, 49152')
        a.e('s_mul_i32 s37, s22, 6144')
        a.e('s_add_u32 s36, s36, s37')
        a.e('v_add_u32 v6, s36, v252')
        a.e('v_add_u32 v7, 4096, v6')
        a.e('v_add_u32 v8, 49152, v6')
        a.e('v_add_u32 v9, 53248, v6')
        a.e(f's_mov_b32 s36, {hx(f2u(C1))}')
        a.e(f'v_mov_b32 v26, {hx(f2u(C2))}')
        vt.wait('sts')
        a.e('s_waitcnt lgkmcnt(0)')
        order = [(rt, u) for u in range(6) for rt in range(2)]
        for idx, (rt, u) in enumerate(order):
            o = ABUF + (idx % 4)*4
            for hi in range(2):
                t = 2*u + hi
                cs = CSH + 4*t if t < 7 else CS2 + 4*(t-7)
                gelu4(a, ACC + (rt*NT + t)*4, o+2*hi, 48 + 4*hi, 36, 26, SA+rt, SBr+rt, cs, BIAS+4*t)
            vt.op(f'buffer_store_dwordx4 v[{o}:{o+3}], v{6 + 2*rt + (0 if u < 4 else 1)}, s[12:15], 0 offen offset:{(u%4)*1024}{SC}', 'h')
        st_(12)
        vt.drain()
        a.e('s_barrier')
        def b():
            a.e('v_mov_b32 v24, 1')
            a.e('v_mov_b32 v25, 0')
            a.e(f'buffer_store_dword v24, v25, s[80:83], s48 offen{SC}')
        wave0(a, b)
    else:
        for t in range(5):
            a.e(f'ds_read_b128 v[{CSQ+4*t}:{CSQ+4*t+3}], v24 offset:{64*t}')
        a.e('v_lshlrev_b32 v25, 2, v3')
        a.e(f'v_add_u32 v25, {CSL}, v25')
        for t in range(10):
            a.e(f'ds_read_b32 v{CSLN+t}, v25 offset:{320+64*t}')
        a.e(f's_mov_b32 s36, {hx(f2u(LOG2E))}')
        a.e(f'v_mov_b32 v26, {hx(f2u(1e-6))}')
        vt.wait('sts')
        a.e('s_waitcnt lgkmcnt(0)')
        OP = 32
        for t in range(10):
            for rt in range(2):
                d = ACC + (rt*NT + 5 + t)*4
                p = OP + 4*t + rt*2
                if t < 5:
                    phi4(a, d, p, 10 + 4*rt, 36, 26, [RA+4*rt+q for q in range(4)], [RBr+4*rt+q for q in range(4)], [CSLN+t]*4)
                else:
                    tt = 10 + 4*rt
                    for q in range(4): a.e(f'v_mul_f32 v{tt+q}, v{RBr+4*rt+q}, v{CSLN+t}')
                    for q in range(4): a.e(f'v_fma_f32 v{d+q}, v{d+q}, v{RA+4*rt+q}, v{tt+q}')
                    a.e(f'v_cvt_pk_bf16_f32 v{p}, v{d}, v{d+1}')
                    a.e(f'v_cvt_pk_bf16_f32 v{p+1}, v{d+2}, v{d+3}')
        for i in range(4):
            a.e(f'v_mov_b32 v{72+i}, 0x3f803f80')
        KA = lambda n: 100 + 4*n if n < 10 else 160 + 4*(n-10)
        for n, (i, j) in enumerate(KV_PAIRS):
            a.e(f'v_mfma_f32_16x16x32_bf16 v[{KA(n)}:{KA(n)+3}], v[{OP+4*i}:{OP+4*i+3}], v[{OP+20+4*j}:{OP+20+4*j+3}], 0')
        for i in range(5):
            n = 13+i
            a.e(f'v_mfma_f32_16x16x32_bf16 v[{KA(n)}:{KA(n)+3}], v[{OP+4*i}:{OP+4*i+3}], v[72:75], 0')
        a.e('s_mul_i32 s37, s20, 18432')
        a.e(f'v_add_u32 v23, s37, v252')
        for n in range(18):
            a.e(f'ds_write_b128 v23, v[{KA(n)}:{KA(n)+3}] offset:{KVR_L + 1024*n}')
        a.e('s_waitcnt lgkmcnt(0)')
        a.e('s_barrier')
        st_(12)
        a.e('s_lshl_b32 s38, s20, 10')
        a.e('v_add_u32 v23, s38, v252')
        a.e('s_lshl_b32 s37, s22, 4')
        a.e('s_add_u32 s37, s37, s21')
        a.e('s_mul_i32 s37, s37, 18432')
        a.e('s_add_u32 s37, s37, s38')
        a.e('v_add_u32 v24, s37, v252')
        a.e('v_add_u32 v25, 55296, v23')
        a.e('v_add_u32 v27, 16384, v24')
        a.e('v_mov_b32 v28, 0x7fffffff')
        a.e('s_cmp_ge_u32 s20, 2')
        a.e('s_cselect_b64 vcc, -1, 0')
        a.e('v_cndmask_b32 v27, v27, v28, vcc')
        RS = [100, 116, 160, 176, 32]
        for i in range(5):
            R = RS[i]
            for wv in range(4):
                if wv < 3: a.e(f'ds_read_b128 v[{R+4*wv}:{R+3+4*wv}], v23 offset:{KVR_L + wv*18432 + i*4096}')
                else: a.e(f'ds_read_b128 v[{R+4*wv}:{R+3+4*wv}], v25 offset:{KVR_L + i*4096}')
        for i in range(5):
            R = RS[i]
            a.e(f's_waitcnt lgkmcnt({min(15,4*(4-i))})')
            for q in range(4):
                a.e(f'v_add_f32 v{R+q}, v{R+q}, v{R+4+q}')
                a.e(f'v_add_f32 v{R+8+q}, v{R+8+q}, v{R+12+q}')
                a.e(f'v_add_f32 v{R+q}, v{R+q}, v{R+8+q}')
            if i < 4:
                a.e(f's_mov_b32 s38, {4096*i}')
                vt.op(f'buffer_store_dwordx4 v[{R}:{R+3}], v24, s[16:19], s38 offen{SC}', 'kv')
            else:
                vt.op(f'buffer_store_dwordx4 v[{R}:{R+3}], v27, s[16:19], 0 offen{SC}', 'kv')
        st_(13)
        a.e('s_mul_i32 s37, s23, 20480')
        a.e('s_mul_i32 s38, s22, 5')
        a.e('s_lshr_b32 s38, s38, 1')
        a.e('s_lshl_b32 s38, s38, 10')
        a.e('s_add_u32 s37, s37, s38')
        a.e('v_add_u32 v22, s37, v252')
        a.e('v_add_u32 v23, 20480, v22')
        a.e('s_bitcmp1_b32 s22, 0')
        a.e('s_cbranch_scc1 Q_ODD')
        vt0 = vt
        for par in range(2):
            vt = vt0.copy()
            if par: a.label('Q_ODD')
            groups = [(0,1),(2,3),(4,)] if par == 0 else [(0,),(1,2),(3,4)]
            for rt in range(2):
                for u, gp in enumerate(groups):
                    o = 32 + ((rt*3+u) % 3)*4
                    for t in gp:
                        d = ACC + (rt*NT + t)*4
                        hi = (t + par) & 1
                        phi4(a, d, o+2*hi, 10 + 4*(t%2), 36, 26, [SA+rt]*4, [SBr+rt]*4, [CSQ+4*t+q for q in range(4)])
                    if len(gp) == 2:
                        vt.op(f'buffer_store_dwordx4 v[{o}:{o+3}], v{22+rt}, s[12:15], 0 offen offset:{1024*u}{SC}', 'pq')
                    else:
                        hi = (gp[0] + par) & 1
                        vt.op(f'buffer_store_dwordx2 v[{o+2*hi}:{o+2*hi+1}], v{22+rt}, s[12:15], 0 offen offset:{1024*u+8*hi}{SC}', 'pq')
                if rt == 0: vt.wait('kv')
                else: vt.drain()
                a.e('s_barrier')
                def b():
                    a.e('v_mov_b32 v24, 1')
                    a.e('v_mov_b32 v25, 0')
                    a.e(f'buffer_store_dword v24, v25, s[80:83], s{48+rt} offen{SC}')
                wave0(a, b)
                st_(14+rt)
            if par == 0: a.e('s_branch K1_DONE')
        a.e('s_branch K1_DONE')

NPF0, NPF1 = 15, 30

A2 = 40
AC2 = 168
GR, PQR, ZR, XQ = 40, 72, 92, 112

def k1b(a):
    st_ = St(a)
    vt = VT(a)
    t6, t7, t8, t9, t10, t11, t12, t13 = range(132, 140)
    GA, LA, ZA = 140, 141, 142
    G = 40
    a.e('s_and_b32 s43, s63, 3')
    a.e('s_lshr_b32 s44, s63, 2')
    a.e('s_lshr_b32 s23, s41, 2')
    a.e('s_mul_i32 s23, s23, 294912')
    a.e('s_and_b32 s32, s41, 3')
    a.e('s_mul_i32 s32, s32, 20')
    a.e(f'v_min_u32 v{t6}, 139, v0')
    a.e(f'v_mul_u32_u24 v{t8}, 52429, v{t6}')
    a.e(f'v_lshrrev_b32 v{t8}, 20, v{t8}')
    a.e(f'v_mul_u32_u24 v{t9}, 20, v{t8}')
    a.e(f'v_sub_u32 v{t9}, v{t6}, v{t9}')
    a.e(f'v_bfe_u32 v{t10}, v{t9}, 2, 2')
    a.e(f'v_lshlrev_b32 v{LA}, 4, v{t10}')
    a.e(f'v_lshrrev_b32 v{t10}, 4, v{t9}')
    a.e(f'v_lshl_add_u32 v{LA}, v{t10}, 3, v{LA}')
    a.e(f'v_and_b32 v{t10}, 3, v{t9}')
    a.e(f'v_lshl_add_u32 v{LA}, v{t10}, 1, v{LA}')
    a.e(f'v_lshl_add_u32 v{LA}, v{t8}, 8, v{LA}')
    a.e(f'v_add_u32 v{LA}, {K1B_L}, v{LA}')
    a.e(f'v_lshl_add_u32 v{t8}, v{t8}, 2, s32')
    a.e(f'v_add_u32 v{t9}, s32, v{t9}')
    a.e(f'v_lshrrev_b32 v{t10}, 4, v{t8}')
    a.e(f'v_lshrrev_b32 v{t11}, 4, v{t9}')
    a.e(f'v_lshl_add_u32 v{t10}, v{t10}, 1, v{t11}')
    a.e(f'v_bfe_u32 v{t11}, v{t8}, 2, 2')
    a.e(f'v_and_b32 v{t9}, 15, v{t9}')
    a.e(f'v_lshl_add_u32 v{t11}, v{t11}, 4, v{t9}')
    a.e(f'v_lshlrev_b32 v{GA}, 10, v{t10}')
    a.e(f'v_lshl_add_u32 v{GA}, v{t11}, 4, v{GA}')
    a.e(f'v_add_u32 v{GA}, s23, v{GA}')
    a.e(f'v_subrev_u32 v{t7}, 100, v{t6}')
    a.e(f'v_cmp_lt_u32 vcc, 19, v{t7}')
    a.e(f'v_subrev_u32 v{t8}, 20, v{t7}')
    a.e(f'v_cndmask_b32 v{t8}, v{t7}, v{t8}, vcc')
    a.e(f'v_mov_b32 v{t9}, 294912')
    a.e(f'v_cndmask_b32 v{t9}, 0, v{t9}, vcc')
    a.e('s_mul_i32 s33, s43, 589824')
    a.e(f's_add_u32 s33, s33, {13*1024}')
    a.e(f'v_add_u32 v{t9}, s33, v{t9}')
    a.e(f'v_lshrrev_b32 v{t10}, 2, v{t8}')
    a.e(f'v_lshl_add_u32 v{t9}, v{t10}, 10, v{t9}')
    a.e(f'v_and_b32 v{t10}, 3, v{t8}')
    a.e(f'v_lshl_add_u32 v{t9}, v{t10}, 8, v{t9}')
    a.e(f'v_lshlrev_b32 v{t7}, 4, v{t7}')
    a.e(f'v_add_u32 v{t7}, {K1B_L + 2048}, v{t7}')
    a.e(f'v_mov_b32 v{t10}, {K1B_L + 2688}')
    a.e(f'v_cmp_lt_u32 vcc, 99, v{t6}')
    a.e(f'v_cndmask_b32 v{GA}, v{GA}, v{t9}, vcc')
    a.e(f'v_cndmask_b32 v{LA}, v{LA}, v{t10}, vcc')
    a.e(f'v_cndmask_b32 v{ZA}, v{t10}, v{t7}, vcc')
    srd(a, 52, 76, 77, KVP, SZ_KVP)
    srd(a, 56, 76, 77, PQ, SZ_ACT)
    a.e('s_mul_i32 s34, s41, 5')
    for dt in range(2):
        a.e(f's_add_u32 s35, s34, {4*dt}')
        a.e(f'v_add_u32 v{t6}, s35, v2')
        a.e(f'v_lshrrev_b32 v{t7}, 3, v{t6}')
        a.e(f'v_mul_u32_u24 v{147+dt}, 5120, v{t7}')
        a.e(f'v_and_b32 v{t7}, 3, v{t6}')
        a.e(f'v_lshl_add_u32 v{147+dt}, v{t7}, 8, v{147+dt}')
        a.e(f'v_lshl_add_u32 v{147+dt}, v3, 4, v{147+dt}')
        a.e(f'v_bfe_u32 v{t7}, v{t6}, 2, 1')
        a.e(f'v_lshl_add_u32 v{147+dt}, v{t7}, 3, v{147+dt}')
    a.e(f'v_mov_b32 v{t7}, 0x7fffffff')
    a.e('v_cmp_lt_u32 vcc, 0, v2')
    a.e(f'v_cndmask_b32 v148, v148, v{t7}, vcc')
    a.e('s_lshl_b32 s35, s44, 2')
    a.e('s_add_u32 s35, s35, s20')
    a.e('s_mul_i32 s35, s35, 20480')
    a.e('s_mul_i32 s36, s43, 5120')
    a.e('s_add_u32 s35, s35, s36')
    a.e('v_add_u32 v145, s35, v252')
    a.e('s_mul_i32 s35, s20, 5120')
    a.e(f's_add_u32 s35, s35, {PQ_L}')
    a.e('v_add_u32 v146, s35, v252')
    for s_ in range(2):
        for m in range(5):
            r = 150 + 5*s_ + m
            a.e(f'v_mul_u32_u24 v{t6}, 5, v2')
            a.e(f'v_add_u32 v{t6}, {20*s_ + m}, v{t6}')
            a.e(f'v_lshrrev_b32 v{t7}, 3, v{t6}')
            a.e(f'v_lshlrev_b32 v{r}, 10, v{t7}')
            a.e(f'v_and_b32 v{t7}, 3, v{t6}')
            a.e(f'v_lshl_add_u32 v{r}, v{t7}, 8, v{r}')
            a.e(f'v_bfe_u32 v{t7}, v{t6}, 2, 1')
            a.e(f'v_lshl_add_u32 v{r}, v{t7}, 3, v{r}')
            a.e(f'v_lshl_add_u32 v{r}, v3, 4, v{r}')
            a.e(f'v_add_u32 v{r}, s35, v{r}')
    a.e('v_mul_u32_u24 v160, 80, v2')
    a.e(f'v_add_u32 v160, {K1B_L + 2048}, v160')
    a.e('v_lshlrev_b32 v32, 3, v1')
    a.e(f's_mov_b32 s33, {FK_O}')
    poll0(a, [34, 35], '1', f'buffer_load_dwordx2 v[34:35], v32, s[80:83], s33 offen{SC}', 4)
    st_(24)
    for rb in range(16):
        a.e(f's_mov_b32 s33, {rb*18432}')
        vt.op(f'buffer_load_dwordx4 v[{G+4*rb}:{G+4*rb+3}], v{GA}, s[52:55], s33 offen{SC}', 'g')
    vt.drain()
    for s_ in (8, 4, 2, 1):
        for rb in range(s_):
            for q in range(4):
                a.e(f'v_add_f32 v{G+4*rb+q}, v{G+4*rb+q}, v{G+4*(rb+s_)+q}')
    for q in range(4): a.e(f'v_cvt_pk_bf16_f32 v{G+q}, v{G+q}, v{G+q}')
    for q in range(4): a.e(f'v_lshlrev_b32 v{G+q}, 16, v{G+q}')
    for q in range(4): a.e(f'ds_write_b16_d16_hi v{LA}, v{G+q} offset:{64*q}')
    a.e(f'ds_write_b128 v{ZA}, v[{G}:{G+3}]')
    a.e('s_waitcnt lgkmcnt(0)')
    a.e('v_and_b32 v32, 1, v1')
    a.e('v_lshlrev_b32 v32, 6, v32')
    a.e('s_lshl_b32 s33, s43, 7')
    a.e('s_lshr_b32 s34, s44, 1')
    a.e('s_lshl_b32 s34, s34, 2')
    a.e('s_add_u32 s33, s33, s34')
    a.e(f's_add_u32 s33, s33, {FP_O}')
    poll0(a, [34], '1', f'buffer_load_dword v34, v32, s[80:83], s33 offen{SC}', 4)
    st_(25)
    PF = 60
    for kb in range(5):
        a.e(f's_mov_b32 s33, {(kb//4)*4096}')
        vt.op(f'buffer_load_dwordx4 v[{PF+4*kb}:{PF+4*kb+3}], v145, s[56:59], s33 offen offset:{(kb%4)*1024}{SC}', 'pq')
    QO, PO = 40, 48
    DOS = [80, 84, 88, 92, 96, 100]
    a.e(f'v_lshlrev_b32 v{t7}, 6, v3')
    a.e(f'v_lshl_add_u32 v{t7}, v2, 4, v{t7}')
    a.e(f'v_add_u32 v{t7}, {K1B_L}, v{t7}')
    for dt in range(2):
        a.e(f'ds_read_b128 v[{QO+4*dt}:{QO+4*dt+3}], v{t7} offset:{1024*dt}')
    a.e(f'v_lshl_add_u32 v{t8}, v2, 2, v4')
    a.e(f'v_mul_u32_u24 v{t8}, 160, v{t8}')
    a.e(f'v_lshl_add_u32 v{t8}, v5, 3, v{t8}')
    for k in range(3):
        a.e(f's_add_u32 s35, s20, {4*k}')
        a.e('s_min_u32 s35, s35, 9')
        a.e('s_cmp_ge_u32 s35, 5')
        a.e('s_cselect_b32 s36, 5, 0')
        a.e('s_cselect_b32 s37, 5120, 0')
        a.e('s_cselect_b32 s38, 102400, 0')
        a.e('s_sub_u32 s36, s35, s36')
        a.e('s_lshl_b32 s39, s36, 10')
        a.e(f's_add_u32 s{92+k}, s38, s39')
        a.e('s_lshl_b32 s36, s36, 5')
        a.e('s_add_u32 s36, s36, s37')
        a.e(f's_add_u32 s36, s36, {WO_L}')
        a.e(f'v_add_u32 v{t9}, s36, v{t8}')
        for hq in range(2):
            a.e(f'ds_read_b64_tr_b16 v[{PO+4*k+2*hq}:{PO+4*k+2*hq+1}], v{t9} offset:{2560*hq}')
    a.e('s_mul_i32 s35, s42, 204800')
    for k in range(3): a.e(f's_add_u32 s{92+k}, s{92+k}, s35')
    a.e('s_waitcnt lgkmcnt(0)')
    for k in range(3):
        for dt in range(2):
            d = DOS[2*k+dt]
            a.e(f'v_mfma_f32_16x16x32_bf16 v[{d}:{d+3}], v[{QO+4*dt}:{QO+4*dt+3}], v[{PO+4*k}:{PO+4*k+3}], 0')
    for k in range(3):
        for dt in range(2):
            d = DOS[2*k+dt]
            a.e(f'v_cvt_pk_bf16_f32 v{d}, v{d}, v{d+1}')
            a.e(f'v_cvt_pk_bf16_f32 v{d+1}, v{d+2}, v{d+3}')
            vt.op(f'buffer_store_dwordx2 v[{d}:{d+1}], v{147+dt}, s[16:19], s{92+k} offen{SC}', 'm')
    vt.wait('pq')
    for kb in range(5):
        a.e(f'ds_write_b128 v146, v[{PF+4*kb}:{PF+4*kb+3}] offset:{1024*kb}')
    ZR, XQ, PR = 40, 104, 60
    a.e('s_waitcnt lgkmcnt(0)')
    for s_ in range(2):
        for m in range(5):
            a.e(f'ds_read_b64 v[{PR+10*s_+2*m}:{PR+10*s_+2*m+1}], v{150+5*s_+m}')
    for s_ in range(2):
        for q in range(5):
            a.e(f'ds_read_b128 v[{ZR+4*q}:{ZR+4*q+3}], v160 offset:{320*s_+16*q}')
        a.e('s_waitcnt lgkmcnt(0)')
        for i in range(10):
            unpack(a, XQ+2*i, XQ+2*i+1, PR+10*s_+i)
        a.e(f'v_mul_f32 v{t10}, v{XQ}, v{ZR}')
        a.e(f'v_mul_f32 v{t11}, v{XQ+1}, v{ZR+1}')
        for i in range(2, 20, 2):
            a.e(f'v_fmac_f32 v{t10}, v{XQ+i}, v{ZR+i}')
            a.e(f'v_fmac_f32 v{t11}, v{XQ+i+1}, v{ZR+i+1}')
        a.e(f'v_add_f32 v{t10}, v{t10}, v{t11}')
        rnd1(a, t10)
        a.e(f'v_add_f32 v{t10}, {hx(f2u(1e-6))}, v{t10}')
        rnd1(a, t10)
        a.e(f'v_rcp_f32 v{t10}, v{t10}')
        for i in range(10):
            a.e(f'v_mul_f32 v{XQ+2*i}, v{XQ+2*i}, v{t10}')
            a.e(f'v_mul_f32 v{XQ+2*i+1}, v{XQ+2*i+1}, v{t10}')
            a.e(f'v_cvt_pk_bf16_f32 v{PR+10*s_+i}, v{XQ+2*i}, v{XQ+2*i+1}')
        for m in range(5):
            a.e(f'ds_write_b64 v{150+5*s_+m}, v[{PR+10*s_+2*m}:{PR+10*s_+2*m+1}]')
    a.e('s_waitcnt lgkmcnt(0)')
    for kb in range(5):
        a.e(f'ds_read_b128 v[{104+4*kb}:{107+4*kb}], v146 offset:{1024*kb}')
    for kb in range(5):
        a.e(f's_waitcnt lgkmcnt({4-kb})')
        a.e(f's_mov_b32 s33, {(kb//4)*4096}')
        vt.op(f'buffer_store_dwordx4 v[{104+4*kb}:{107+4*kb}], v145, s[8:11], s33 offen offset:{(kb%4)*1024}{SC}', 'pqs')
    st_(26)
    vt.drain()
    a.e('s_barrier')
    def b():
        a.e('v_mov_b32 v32, 1')
        a.e('v_mov_b32 v33, 0')
        a.e(f'buffer_store_dword v32, v33, s[80:83], s49 offen{SC}')
    wave0(a, b)
    st_(27)

def k2_epi(a, w, vt):
    st_ = St(a)
    XB = 120
    RR = [r for r in range(A2, A2+60, 4)]
    a.e('s_barrier')
    for rt in range(4):
        if rt == w: continue
        for t in range(5):
            d = AC2 + (rt*5+t)*4
            off = w*20480 + (rt*5+t)*1024
            if off < 65536: a.e(f'ds_write_b128 v26, v[{d}:{d+3}] offset:{off}')
            else: a.e(f'ds_write_b128 v27, v[{d}:{d+3}] offset:{off-65536}')
    a.e('s_waitcnt lgkmcnt(0)')
    a.e('s_barrier')
    k = 0
    for ws_ in range(4):
        if ws_ == w: continue
        for t in range(5):
            off = ws_*20480 + (w*5+t)*1024
            r0 = RR[k*5+t]
            if off < 65536: a.e(f'ds_read_b128 v[{r0}:{r0+3}], v26 offset:{off}')
            else: a.e(f'ds_read_b128 v[{r0}:{r0+3}], v27 offset:{off-65536}')
        k += 1
    a.e('s_waitcnt vmcnt(0) lgkmcnt(0)')
    for t in range(5):
        d = AC2 + (w*5+t)*4
        for q in range(4):
            a.e(f'v_add_f32 v{RR[t]+q}, v{RR[t]+q}, v{RR[5+t]+q}')
            a.e(f'v_add_f32 v{d+q}, v{d+q}, v{RR[10+t]+q}')
            a.e(f'v_add_f32 v{d+q}, v{d+q}, v{RR[t]+q}')
        for hf in range(2):
            unpack(a, 32, 33, XB+2*t+hf)
            unpack(a, 34, 35, XB+10+2*t+hf)
            a.e(f'v_add_f32 v{d+2*hf}, v{d+2*hf}, v34')
            a.e(f'v_add_f32 v{d+2*hf+1}, v{d+2*hf+1}, v35')
            a.e(f'v_add_f32 v{d+2*hf}, v{d+2*hf}, v32')
            a.e(f'v_add_f32 v{d+2*hf+1}, v{d+2*hf+1}, v33')
            a.e(f'v_cvt_pk_bf16_f32 v{36+hf}, v{d+2*hf}, v{d+2*hf+1}')
        a.e(f'buffer_store_dwordx2 v[36:37], v30, s[36:39], 0 offen offset:{32*t}')
    if STAMP:
        a.e('s_waitcnt vmcnt(0)')
        st_(33); st_.dump()
    a.e('s_branch KF_END')

def gen_kf():
    a = Asm()
    kernel_head(a, 'kf_kernel')
    a.e('s_cmp_ge_u32 s2, 256')
    a.e('s_cbranch_scc1 KF_END')
    st_ = St(a)
    st_.real(62); st_(0)
    a.e('s_load_dwordx2 s[64:65], s[0:1], 0')
    a.e('s_load_dwordx2 s[26:27], s[0:1], 8')
    a.e('s_load_dwordx2 s[66:67], s[0:1], 16')
    a.e('s_load_dwordx4 s[28:31], s[0:1], 32')
    a.e('s_load_dwordx8 s[68:75], s[0:1], 48')
    a.e('s_load_dwordx2 s[76:77], s[0:1], 80')
    lane_decomp(a)
    a.e('s_waitcnt lgkmcnt(0)')
    a.e('s_mov_b64 s[24:25], s[76:77]')
    srd(a, 80, 76, 77, FLG, 0x30000)
    role_issue(a)
    srd(a, 84, 74, 75, 0, 256)
    srd(a, 88, 64, 65, 0, SZ_ACT)
    vt = VT(a)
    p0_loads(a, vt)
    a.e('v_lshlrev_b32 v24, 3, v0')
    a.e(f'v_add_u32 v24, {K1B_L}, v24')
    a.e('v_mov_b32 v26, 0')
    a.e('v_mov_b32 v27, 0')
    a.e('ds_write_b64 v24, v[26:27]')
    role_get(a, 5)
    st_(16)
    a.e('s_and_b32 s21, s2, 3')
    a.e('s_lshl_b32 s21, s21, 2')
    a.e('s_bfe_u32 s22, s2, 0x20003')
    a.e('s_add_u32 s21, s21, s22')
    a.e('s_lshr_b32 s22, s2, 5')
    a.e('s_bitcmp1_b32 s2, 2')
    a.e('s_cbranch_scc1 K1_H')
    k1_type(a, 'QKV', vt.copy())
    a.label('K1_H')
    k1_type(a, 'H', vt.copy())
    a.label('K1_DONE')
    st_(18)
    vt = VT(a)
    def emit(L):
        for grp in L:
            for x in grp:
                if isinstance(x, tuple): vt.op(*x)
                else: a.e(x)
    emit([pf_group(j) for j in range(NPF1, 60)])
    srd(a, 4, 76, 77, H, SZ_H)
    srd(a, 8, 76, 77, PQS, SZ_ACT)
    srd(a, 16, 76, 77, MF, SZ_MF)
    srd(a, 28, 70, 71, 0, 1280)
    lb = newlab('WO')
    a.e('s_bitcmp0_b32 s2, 2')
    a.e(f's_cbranch_scc1 {lb}')
    a.e('s_and_b32 s41, s63, 31')
    a.e('s_lshr_b32 s42, s63, 5')
    srd(a, 12, 66, 67, 0, SZ_MM)
    a.e('s_mul_i32 s36, s41, 25600')
    a.e('s_mul_i32 s37, s42, 320')
    a.e('s_add_u32 s36, s36, s37')
    for k in range(3):
        a.e(f's_add_u32 s37, s20, {4*k}')
        a.e('s_cmp_ge_u32 s37, 5')
        a.e('s_cselect_b32 s38, 5, 0')
        a.e('s_cselect_b32 s39, 160, 0')
        a.e('s_sub_u32 s38, s37, s38')
        a.e('s_lshl_b32 s38, s38, 6')
        a.e('s_add_u32 s39, s39, s36')
        unit_off(a, 34, 35, 's38', 's39')
        a.e('s_lshl_b32 s37, s37, 10')
        a.e(f's_add_u32 m0, s37, {WO_L}')
        a.e('buffer_load_dwordx4 v34, s[12:15], 0 offen lds')
    k1b(a)
    a.label(lb)
    a.e('v_lshlrev_b32 v26, 4, v1')
    a.e('v_add_u32 v27, 65536, v26')
    a.e('s_mul_i32 s45, s60, 196608')
    a.e('s_mul_i32 s44, s20, 12288')
    a.e('s_add_u32 s45, s45, s44')
    a.e('v_add_u32 v6, s45, v26')
    a.e('s_mul_i32 s45, s60, 81920')
    a.e('s_mul_i32 s44, s20, 5120')
    a.e('s_add_u32 s45, s45, s44')
    a.e('v_add_u32 v10, s45, v26')
    for rt in range(1, 4):
        a.e(f'v_add_u32 v{6+rt}, {rt*49152}, v6')
        a.e(f'v_add_u32 v{10+rt}, {rt*20480}, v10')
    a.e('s_mul_i32 s44, s61, 160')
    a.e('s_lshl_b32 s43, s60, 6')
    a.e('s_lshl_b32 s45, s20, 4')
    a.e('s_add_u32 s43, s43, s45')
    a.e('v_add_u32 v30, s43, v3')
    a.e('v_mul_u32_u24 v30, 1280, v30')
    a.e('v_lshl_add_u32 v30, v2, 3, v30')
    a.e('v_add_u32 v30, s44, v30')
    a.e('v_lshlrev_b32 v29, 3, v2')
    a.e('v_add_u32 v29, s44, v29')
    a.e('s_mul_i32 s45, s61, 102400')
    a.e('s_mul_i32 s44, s20, 25600')
    a.e('s_add_u32 s45, s45, s44')
    a.e('v_add_u32 v14, s45, v26')
    a.e('v_and_b32 v32, 7, v1')
    a.e('v_lshlrev_b32 v32, 2, v32')
    a.e('s_lshr_b32 s34, s60, 1')
    a.e('s_lshl_b32 s34, s34, 7')
    poll0(a, [33], '1', f'buffer_load_dword v33, v32, s[80:83], s34 offen{SC}', 4)
    st_(19)
    def ldA(i):
        b = A2 + (i % 8)*16
        L = []
        for r in range(4):
            L.append([f's_mov_b32 s32, {(i//4)*4096}', (f'buffer_load_dwordx4 v[{b+4*r}:{b+4*r+3}], v{6+r}, s[4:7], s32 offen offset:{(i%4)*1024}{SC}', f'a{i}')])
        return L
    for i in range(8): emit(ldA(i))
    for i in range(12):
        vt.wait(f'a{i}', 'pf')
        if i == 0: st_(20)
        b = A2 + (i % 8)*16
        for t in range(5):
            for r in range(4):
                d = AC2 + (r*5+t)*4
                C_ = '0' if i == 0 else f'v[{d}:{d+3}]'
                a.e(f'v_mfma_f32_16x16x32_bf16 v[{d}:{d+3}], a[{(i*5+t)*4}:{(i*5+t)*4+3}], v[{b+4*r}:{b+4*r+3}], {C_}')
        if i+8 < 12: emit(ldA(i+8))
    st_(22)
    srd(a, 36, 72, 73, 0, SZ_ACT)
    XB = 120
    a.e('v_lshlrev_b32 v32, 3, v1')
    a.e(f's_mov_b32 s34, {FM_O}')
    rlm = f'buffer_load_dwordx2 v[34:35], v32, s[80:83], s34 offen{SC}'
    vt = VT(a)
    for t in range(5):
        vt.op(f'buffer_load_dwordx2 v[{XB+2*t}:{XB+2*t+1}], v30, s[88:91], 0 offen offset:{32*t}', 'x')
        vt.op(f'buffer_load_dwordx2 v[{XB+10+2*t}:{XB+11+2*t}], v29, s[28:31], 0 offen offset:{32*t}', 'x')
    poll0(a, [34, 35], '1', rlm, 8)
    st_(28)
    for i in range(5):
        for r in range(4):
            b = A2 + i*16 + 4*r
            a.e(f's_mov_b32 s32, {(i//4)*4096}')
            vt.op(f'buffer_load_dwordx4 v[{b}:{b+3}], v{10+r}, s[8:11], s32 offen offset:{(i%4)*1024}{SC}', f'a{i}')
        for t in range(5):
            j = i*5+t
            a.e(f's_mov_b32 s32, {(j//4)*4096}')
            vt.op(f'buffer_load_dwordx4 a[{4*j}:{4*j+3}], v14, s[16:19], s32 offen offset:{(j%4)*1024}{SC}', f'a{i}')
    for i in range(5):
        vt.wait(f'a{i}')
        if i == 0: st_(29)
        b = A2 + i*16
        for t in range(5):
            for r in range(4):
                d = AC2 + (r*5+t)*4
                a.e(f'v_mfma_f32_16x16x32_bf16 v[{d}:{d+3}], a[{(i*5+t)*4}:{(i*5+t)*4+3}], v[{b+4*r}:{b+4*r+3}], v[{d}:{d+3}]')
    st_(32)
    a.e('s_cmp_eq_u32 s20, 1'); a.e('s_cbranch_scc1 K2_W1')
    a.e('s_cmp_eq_u32 s20, 2'); a.e('s_cbranch_scc1 K2_W2')
    a.e('s_cmp_eq_u32 s20, 3'); a.e('s_cbranch_scc1 K2_W3')
    for w in range(4):
        if w:
            a.label(f'K2_W{w}')
            a.e('s_nop 7'); a.e('s_nop 7')
        k2_epi(a, w, vt)
    a.label('KF_END')
    a.e('s_endpgm')
    return a

def desc(name):
    return f'''.amdhsa_kernel {name}
  .amdhsa_next_free_vgpr 512
  .amdhsa_next_free_sgpr 102
  .amdhsa_accum_offset 256
  .amdhsa_group_segment_fixed_size 0
  .amdhsa_kernarg_size 88
  .amdhsa_user_sgpr_count 2
  .amdhsa_user_sgpr_kernarg_segment_ptr 1
  .amdhsa_system_sgpr_workgroup_id_x 1
  .amdhsa_float_denorm_mode_32 3
.end_amdhsa_kernel
'''

if __name__ == '__main__':
    a = gen_kf()
    out = HEADER + f'; @launch kernel=kf_kernel grid=(256,1,1) block=(256,1,1) lds={LDS_TOTAL}\n'
    out += '.amdgcn_target "amdgcn-amd-amdhsa--gfx950"\n.text\n' + a.text()
    out += '.section .rodata,"a"\n.p2align 6\n' + desc('kf_kernel')
    open(os.environ.get('OUT', 'f4.s'), 'w').write(out)
```

```python
import sys, os
sys.path.insert(0, 'work')
from gen import *
from gen_k1 import lane_decomp, unpack, C1, C2, KV_PAIRS
from g3 import ln_stats, ln_norm, gelu4, phi4, newlab, poll_check
X = os.environ.get('KX', '')
STAMP = 'stamp' in X
PK = 'nopk' not in X
BADSLOT = 'badslot' in X


from g6_consts import *
class St:
    def __init__(self, a): self.a = a
    def __call__(self, n):
        if not STAMP: return
        a = self.a
        a.e('s_memtime s[100:101]')
        a.e('s_waitcnt lgkmcnt(0)')
        a.e(f'v_writelane_b32 v255, s100, {n}')
    def real(self, n):
        if not STAMP: return
        a = self.a
        a.e('s_memrealtime s[100:101]')
        a.e('s_waitcnt lgkmcnt(0)')
        a.e(f'v_writelane_b32 v255, s100, {n}')
    def dump(self):
        if not STAMP: return
        a = self.a
        self.real(63)
        srd(a, 92, 76, 77, 0x3000000, 0x40000)
        a.e('s_lshl_b32 s96, s2, 10')
        a.e('v_lshlrev_b32 v254, 2, v0')
        a.e('v_add_u32 v254, s96, v254')
        a.e('buffer_store_dword v255, v254, s[92:95], 0 offen')

class VT:
    CNT, MX = 'vmcnt', 63
    def __init__(self, a): self.a = a; self.q = []
    def op(self, text, tag):
        self.a.e(text); self.q.append(tag)
    def wait(self, *tags):
        last = -1
        for i, t in enumerate(self.q):
            if t in tags: last = i
        if last < 0: return
        n = len(self.q) - 1 - last
        self.a.e(f's_waitcnt {self.CNT}({min(n, self.MX)})')
        self.q = self.q[last+1:] if n <= self.MX else self.q[len(self.q)-self.MX:]
    def drain(self):
        self.a.e(f's_waitcnt {self.CNT}(0)'); self.q = []
    def copy(self):
        v = type(self)(self.a); v.q = list(self.q); return v

class LT(VT):
    CNT, MX = 'lgkmcnt', 15

def wave0(a, body):
    lb = newlab('W0')
    a.e('s_cmp_lg_u32 s20, 0')
    a.e(f's_cbranch_scc1 {lb}')
    body()
    a.label(lb)

ABUF, BF, ACC = 32, 64, 104
PX, PXX, PP = 110, 120, 140
CA = 48

def p0_loads(a, vt):
    a.e('v_lshrrev_b32 v24, 5, v0')
    a.e('v_and_b32 v25, 31, v0')
    a.e('s_lshl_b32 s3, s63, 3')
    a.e('s_add_u32 s3, s3, s59')
    a.e('v_add_u32 v24, s3, v24')
    a.e('v_mul_u32_u24 v26, 1280, v24')
    a.e('v_lshl_add_u32 v26, v25, 3, v26')
    for i in range(5):
        vt.op(f'buffer_load_dwordx2 v[{PX+2*i}:{PX+1+2*i}], v26, s[88:91], 0 offen offset:{256*i}', 'px')
    a.e('v_lshlrev_b32 v155, 13, v25')
    a.e('v_lshl_add_u32 v155, v24, 2, v155')
    a.e('v_mov_b32 v156, v25')

def cs_compute(a, A0):
    T0 = A0 + 8
    for i in range(5):
        for c2 in range(4):
            a.e(f'v_accvgpr_read_b32 v{T0+4+c2}, a{4*i+c2}')
        for c2 in range(4):
            if i == 0:
                unpack(a, A0+2*c2, A0+2*c2+1, T0+4+c2)
            else:
                unpack(a, T0+2*(c2&1), T0+1+2*(c2&1), T0+4+c2)
                a.e(f'v_add_f32 v{A0+2*c2}, v{A0+2*c2}, v{T0+2*(c2&1)}')
                a.e(f'v_add_f32 v{A0+2*c2+1}, v{A0+2*c2+1}, v{T0+1+2*(c2&1)}')
    for c in range(8):
        a.e(f'v_add_f32_dpp v{A0+c}, v{A0+c}, v{A0+c} row_ror:8 row_mask:0xf bank_mask:0xf')
    for sw in ('v_permlane16_swap_b32', 'v_permlane32_swap_b32'):
        for c in range(8): a.e(f'v_mov_b32 v{T0+c}, v{A0+c}')
        for c in range(8): a.e(f'{sw} v{A0+c}, v{T0+c}')
        for c in range(8): a.e(f'v_add_f32 v{A0+c}, v{A0+c}, v{T0+c}')
    a.e(f'ds_write_b128 v31, v[{A0}:{A0+3}]')
    a.e(f'ds_write_b128 v31, v[{A0+4}:{A0+7}] offset:16')

def p0_compute(a, vt):
    vt.wait('px')
    for i in range(10):
        a.e(f'v_lshlrev_b32 v{PXX+2*i}, 16, v{PX+i}')
        a.e(f'v_and_b32 v{PXX+2*i+1}, 0xffff0000, v{PX+i}')
    ln_stats(a, PXX, PP, 150, 151, 152)
    ln_norm(a, PXX, PP, 150, 151)
    a.e('v_mul_f32 v153, v150, v151')
    a.e('v_sub_f32 v153, 0, v153')
    a.e('v_mov_b32 v154, v151')
    ln_stats(a, PXX, PP, 150, 151, 152)
    a.e('v_mul_f32 v152, v154, v151')
    a.e('v_sub_f32 v150, v153, v150')
    a.e('v_mul_f32 v150, v150, v151')
    a.e('v_cmp_eq_u32 vcc, 1, v156')
    a.e('v_cndmask_b32 v154, v154, v153, vcc')
    a.e('v_cmp_eq_u32 vcc, 2, v156')
    a.e('v_cndmask_b32 v154, v154, v152, vcc')
    a.e('v_cmp_eq_u32 vcc, 3, v156')
    a.e('v_cndmask_b32 v154, v154, v150, vcc')
    a.e('v_mov_b32 v150, 0x7fffffff')
    a.e('v_cmp_gt_u32 vcc, 4, v156')
    a.e('v_cndmask_b32 v155, v150, v155, vcc')
    a.e(f's_mov_b32 s46, {STS_O}')
    vt.op(f'buffer_store_dword v154, v155, s[80:83], s46 offen{SC}', 'st')

CLAIM = 'buffer_atomic_or v20, v21, s[84:87], s97 offen sc0'
def claim_issue(a):
    a.e('s_lshl_b32 s97, 1, s63')
    a.e('v_mov_b32 v20, s97')
    a.e('v_mov_b32 v21, 0')
    a.e('s_lshl_b32 s97, s62, 2')
    a.e('s_add_u32 s97, s97, 128')
    def b():
        a.e('s_mov_b64 exec, 1')
        a.e(CLAIM)
        a.e('s_mov_b64 exec, -1')
    wave0(a, b)

def claim_check(a):
    def b():
        L = newlab('CL'); D = newlab('CD')
        a.e('s_mov_b32 s98, s63')
        a.label(L)
        a.e('v_readfirstlane_b32 s99, v20')
        a.e('s_bitcmp0_b32 s99, s98')
        a.e(f's_cbranch_scc1 {D}')
        a.e('s_not_b32 s99, s99')
        a.e(f's_cbranch_scc0 {D}')
        a.e('s_ff1_i32_b32 s98, s99')
        a.e('s_lshl_b32 s99, 1, s98')
        a.e('v_mov_b32 v20, s99')
        a.e('v_mov_b32 v21, 0')
        a.e('s_mov_b64 exec, 1')
        a.e(CLAIM)
        a.e('s_mov_b64 exec, -1')
        a.e('s_waitcnt vmcnt(0)')
        a.e(f's_branch {L}')
        a.label(D)
        a.e('v_mov_b32 v20, 0')
        a.e('v_mov_b32 v24, s98')
        a.e(f'v_mov_b32 v25, {ROLE_L}')
        a.e('ds_write_b32 v25, v24')
        a.e('s_waitcnt lgkmcnt(0)')
    wave0(a, b)

def claim_verify(a):
    lb = newlab('CV')
    a.e(f'v_mov_b32 v25, {ROLE_L}')
    a.e('ds_read_b32 v24, v25')
    a.e('s_waitcnt lgkmcnt(0)')
    a.e('v_readfirstlane_b32 s98, v24')
    a.e('s_and_b32 s98, s98, 31')
    a.e('s_cmp_eq_u32 s98, s63')
    a.e(f's_cbranch_scc1 {lb}')
    a.e('s_mov_b32 s63, s98')
    a.e('s_waitcnt vmcnt(0)')
    a.e('s_barrier')
    a.e('s_branch RESTART')
    a.label(lb)

def poll0(a, regs, want, load, sleep=8):
    def b():
        L = newlab('PL'); D = newlab('PD')
        a.e('s_mov_b32 s98, 0')
        a.label(L)
        a.e(load)
        a.e('s_waitcnt vmcnt(0)')
        t = regs[0]
        for r in regs[1:]:
            a.e(f'v_and_b32 v{t}, v{t}, v{r}')
        a.e(f'v_cmp_ne_u32 vcc, {want}, v{t}')
        a.e(f's_cbranch_vccz {D}')
        a.e('s_add_u32 s98, s98, 1')
        a.e('s_cmp_ge_u32 s98, 0x20000')
        a.e(f's_cbranch_scc1 {D}')
        a.e(f's_sleep {sleep}')
        a.e(f's_branch {L}')
        a.label(D)
    wave0(a, b)
    a.e('s_barrier')

def unit_off(a, dst, t0, i, sbase):
    a.e(f'v_add_u32 v{t0}, {64*i}, v1') if isinstance(i, int) else a.e(f'v_add_u32 v{t0}, {i}, v1')
    a.e(f'v_mul_u32_u24 v{t0+1}, 6554, v{t0}')
    a.e(f'v_lshrrev_b32 v{t0+1}, 16, v{t0+1}')
    a.e(f'v_mul_u32_u24 v{t0+2}, 10, v{t0+1}')
    a.e(f'v_sub_u32 v{t0+2}, v{t0}, v{t0+2}')
    a.e(f'v_mul_u32_u24 v{dst}, 1280, v{t0+1}')
    a.e(f'v_lshl_add_u32 v{dst}, v{t0+2}, 4, v{dst}')
    a.e(f'v_add_u32 v{dst}, {sbase}, v{dst}')

def slot_k(a, dst, slot, t):
    a.e(f'v_bfe_u32 v{dst}, v{slot}, 2, 1')
    a.e(f'v_bfe_u32 v{t}, v{slot}, 3, 1')
    a.e(f'v_xor_b32 v{dst}, v{dst}, v{t}')
    a.e(f'v_mul_u32_u24 v{dst}, 12, v{dst}')
    a.e(f'v_xor_b32 v{dst}, v{dst}, v{slot}')

def gelu4pk(a, d, o, t, sC1, vC2, vab, rt, cs, bias):
    for h in (0, 2):
        a.e(f'v_pk_fma_f32 v[{t+h}:{t+h+1}], v[{cs+h}:{cs+h+1}], v[{vab+2}:{vab+3}], v[{bias+h}:{bias+h+1}] op_sel:[0,{rt},0] op_sel_hi:[1,{rt},1]')
    for h in (0, 2):
        a.e(f'v_pk_fma_f32 v[{d+h}:{d+h+1}], v[{d+h}:{d+h+1}], v[{vab}:{vab+1}], v[{t+h}:{t+h+1}] op_sel:[0,{rt},0] op_sel_hi:[1,{rt},1]')
    for h in (0, 2):
        a.e(f'v_pk_mul_f32 v[{t+h}:{t+h+1}], v[{d+h}:{d+h+1}], v[{d+h}:{d+h+1}]')
    for h in (0, 2):
        a.e(f'v_pk_fma_f32 v[{t+h}:{t+h+1}], v[{t+h}:{t+h+1}], v[{vC2}:{vC2+1}], s[{sC1}:{sC1+1}]')
    for h in (0, 2):
        a.e(f'v_pk_mul_f32 v[{t+h}:{t+h+1}], v[{t+h}:{t+h+1}], v[{d+h}:{d+h+1}]')
    for q in range(4): a.e(f'v_exp_f32 v{t+q}, v{t+q}')
    for h in (0, 2):
        a.e(f'v_pk_add_f32 v[{t+h}:{t+h+1}], v[{t+h}:{t+h+1}], 1.0 op_sel_hi:[1,0]')
    for q in range(4): a.e(f'v_rcp_f32 v{t+q}, v{t+q}')
    for h in (0, 2):
        a.e(f'v_pk_mul_f32 v[{d+h}:{d+h+1}], v[{d+h}:{d+h+1}], v[{t+h}:{t+h+1}]')
    a.e(f'v_cvt_pk_bf16_f32 v{o}, v{d}, v{d+1}')
    a.e(f'v_cvt_pk_bf16_f32 v{o+1}, v{d+2}, v{d+3}')

GA, LA = 200, 201
def k1b_prep(a):
    t6, t7, t8, t9, t10, t11 = range(192, 198)
    a.e('s_mul_i32 s23, s22, 294912')
    a.e('s_and_b32 s32, s41, 3')
    a.e('s_mul_i32 s32, s32, 20')
    a.e(f'v_min_u32 v{t6}, 99, v0')
    a.e(f'v_mul_u32_u24 v{t8}, 52429, v{t6}')
    a.e(f'v_lshrrev_b32 v{t8}, 20, v{t8}')
    a.e(f'v_mul_u32_u24 v{t9}, 20, v{t8}')
    a.e(f'v_sub_u32 v{t9}, v{t6}, v{t9}')
    a.e(f'v_bfe_u32 v{t10}, v{t9}, 2, 2')
    a.e(f'v_lshlrev_b32 v{LA}, 4, v{t10}')
    a.e(f'v_lshrrev_b32 v{t10}, 4, v{t9}')
    a.e(f'v_lshl_add_u32 v{LA}, v{t10}, 3, v{LA}')
    a.e(f'v_and_b32 v{t10}, 3, v{t9}')
    a.e(f'v_lshl_add_u32 v{LA}, v{t10}, 1, v{LA}')
    a.e(f'v_lshl_add_u32 v{LA}, v{t8}, 8, v{LA}')
    a.e(f'v_add_u32 v{LA}, {K1B_L}, v{LA}')
    a.e(f'v_lshl_add_u32 v{t8}, v{t8}, 2, s32')
    a.e(f'v_add_u32 v{t9}, s32, v{t9}')
    a.e(f'v_lshrrev_b32 v{t10}, 4, v{t8}')
    a.e(f'v_lshrrev_b32 v{t11}, 4, v{t9}')
    a.e(f'v_lshl_add_u32 v{t10}, v{t10}, 1, v{t11}')
    a.e(f'v_bfe_u32 v{t11}, v{t8}, 2, 2')
    a.e(f'v_and_b32 v{t9}, 15, v{t9}')
    a.e(f'v_lshl_add_u32 v{t11}, v{t11}, 4, v{t9}')
    a.e(f'v_lshlrev_b32 v{GA}, 10, v{t10}')
    a.e(f'v_lshl_add_u32 v{GA}, v{t11}, 4, v{GA}')
    a.e(f'v_add_u32 v{GA}, s23, v{GA}')
    srd(a, 12, 76, 77, MF, SZ_MF)
    a.e('s_mul_i32 s34, s41, 5')
    for dt in range(2):
        a.e(f's_add_u32 s35, s34, {4*dt}')
        a.e(f'v_add_u32 v{t6}, s35, v2')
        a.e(f'v_lshrrev_b32 v{t7}, 3, v{t6}')
        a.e(f'v_mul_u32_u24 v{202+dt}, 5120, v{t7}')
        a.e(f'v_and_b32 v{t7}, 3, v{t6}')
        a.e(f'v_lshl_add_u32 v{202+dt}, v{t7}, 8, v{202+dt}')
        a.e(f'v_lshl_add_u32 v{202+dt}, v3, 4, v{202+dt}')
        a.e(f'v_bfe_u32 v{t7}, v{t6}, 2, 1')
        a.e(f'v_lshl_add_u32 v{202+dt}, v{t7}, 3, v{202+dt}')
    a.e(f'v_mov_b32 v{t7}, 0x7fffffff')
    a.e('v_cmp_lt_u32 vcc, 0, v2')
    a.e(f'v_cndmask_b32 v203, v203, v{t7}, vcc')
    PO = 208
    a.e(f'v_lshl_add_u32 v{t8}, v2, 2, v4')
    a.e(f'v_mul_u32_u24 v{t8}, 160, v{t8}')
    a.e(f'v_lshl_add_u32 v{t8}, v5, 3, v{t8}')
    for k in range(3):
        a.e(f's_add_u32 s35, s20, {4*k}')
        a.e('s_min_u32 s35, s35, 9')
        a.e('s_cmp_ge_u32 s35, 5')
        a.e('s_cselect_b32 s36, 5, 0')
        a.e('s_cselect_b32 s37, 5120, 0')
        a.e('s_cselect_b32 s38, 102400, 0')
        a.e('s_sub_u32 s36, s35, s36')
        a.e('s_lshl_b32 s39, s36, 10')
        a.e(f's_add_u32 s{92+k}, s38, s39')
        a.e('s_lshl_b32 s36, s36, 5')
        a.e('s_add_u32 s36, s36, s37')
        a.e(f's_add_u32 s36, s36, {WO_L}')
        a.e(f'v_add_u32 v{t9}, s36, v{t8}')
        for hq in range(2):
            a.e(f'ds_read_b64_tr_b16 v[{PO+4*k+2*hq}:{PO+4*k+2*hq+1}], v{t9} offset:{2560*hq}')
    a.e('s_mul_i32 s35, s42, 204800')
    for k in range(3): a.e(f's_add_u32 s{92+k}, s{92+k}, s35')
    a.e(f'v_lshlrev_b32 v204, 6, v3')
    a.e(f'v_lshl_add_u32 v204, v2, 4, v204')
    a.e(f'v_add_u32 v204, {K1B_L}, v204')
    a.e('v_lshlrev_b32 v205, 2, v3')
    a.e('s_lshl_b32 s33, s22, 7')
    a.e(f's_add_u32 s33, s33, {FK_O}')
    a.e('s_waitcnt lgkmcnt(0)')

def desc(name):
    return f'''.amdhsa_kernel {name}
  .amdhsa_next_free_vgpr 512
  .amdhsa_next_free_sgpr 102
  .amdhsa_accum_offset 256
  .amdhsa_group_segment_fixed_size 0
  .amdhsa_kernarg_size 88
  .amdhsa_user_sgpr_count 2
  .amdhsa_user_sgpr_kernarg_segment_ptr 1
  .amdhsa_system_sgpr_workgroup_id_x 1
  .amdhsa_float_denorm_mode_32 3
.end_amdhsa_kernel
'''
```

```python
FLG = 0x1400000
FH_O, FK_O, FM_O, FQ_O, STS_O, CSM_O = 0x0, 0x1000, 0x2000, 0x3000, 0x10000, 0x20000
MF = 0x1700000
SZ_MF = 8*20*5*1024
BQ_L = 73728
QST = 12288
AOFF_QH, AOFF_KV = 110592, 61440
import os
WO_L = int(os.environ.get("WO_L", 143360))
SB_KV = 110592
KVR_L = 0
K1B_L = 155648
CSL = 159744
BIL = 161024
ZB_L = 161792
ROLE_L = 162816
LDS_TOTAL = 163072
STG = 35840
SC = ' sc1'
```

```python
from g6_base import *
PFW = 'pfw' in X
CPF = 'nocpf' not in X
PXF = 'pxl' not in X
PFON = 'nopf' not in X
CSK = int(os.environ.get('CSK', 1))
PFS = eval(os.environ.get('PFS', '{0:3, 1:5, 3:7, 5:9}'))
W2S = eval(os.environ.get('W2S', '(8,8)'))
CSS = int(os.environ.get('CSS', -1))
F0C = int(os.environ.get('F0C', 8))
def cs_loads(a, vt):
    a.e('s_lshl_b32 s3, s63, 3')
    a.e('s_add_u32 s3, s3, s62')
    a.e('s_min_u32 s3, s3, 215')
    a.e('s_and_b32 s37, s3, 3')
    a.e('s_lshr_b32 s36, s3, 2')
    a.e('s_lshl_b32 s36, s36, 6')
    a.e('s_lshl_b32 s50, s37, 14')
    a.e('s_lshl_b32 s38, s36, 2')
    a.e('s_add_u32 s50, s50, s38')
    a.e(f's_add_u32 s50, s50, {CSM_O}')
    a.e('s_cmp_ge_u32 s36, 1920')
    a.e('s_cselect_b32 s52, s28, s26')
    a.e('s_cselect_b32 s53, s29, s27')
    a.e(f's_mov_b32 s54, {640*1920*2}')
    a.e(f's_cselect_b32 s54, {640*1536*2}, s54')
    a.e('s_mov_b32 s55, 0x00020000')
    a.e('s_movk_i32 s51, 3840')
    a.e('s_cselect_b32 s51, 3072, s51')
    a.e('s_cselect_b32 s38, 1920, 0')
    a.e('s_sub_u32 s36, s36, s38')
    a.e('s_mul_i32 s39, s37, 160')
    a.e('s_mul_i32 s38, s20, 40')
    a.e('s_add_u32 s39, s39, s38')
    a.e('s_lshl_b32 s36, s36, 1')
    a.e('v_lshrrev_b32 v26, 3, v1')
    a.e('v_add_u32 v26, s39, v26')
    a.e('v_mul_u32_u24 v26, s51, v26')
    a.e('v_and_b32 v27, 7, v1')
    a.e('v_lshl_add_u32 v26, v27, 4, v26')
    a.e('v_add_u32 v103, s36, v26')
    a.e('v_lshlrev_b32 v31, 5, v27')
    a.e('s_lshl_b32 s39, s20, 8')
    a.e(f's_add_u32 s39, s39, {CSL}')
    a.e('v_add_u32 v31, s39, v31')
    return [([f's_mul_i32 s37, s51, {8*i}'], f'buffer_load_dwordx4 a[{4*i}:{4*i+3}], v103, s[52:55], s37 offen', 'cs') for i in range(5)]

def stg_setup(a, WA):
    a.e('s_mul_i32 s36, s20, 491520')
    a.e('s_mul_i32 s37, s61, 160')
    a.e('s_add_u32 s36, s36, s37')
    for i in range(5):
        unit_off(a, WA+i, 24, i, 's36')
        if i % 4: a.e(f'v_subrev_u32 v{WA+i}, {1024*(i%4)}, v{WA+i}')
    a.e(f's_mul_i32 s56, s20, {STG}')
    a.e(f'v_lshl_add_u32 v24, v2, 2, v4')
    a.e(f'v_mul_u32_u24 v24, 160, v24')
    a.e(f'v_lshl_add_u32 v24, v5, 3, v24')
    a.e(f'v_add_u32 v{WA+5}, s56, v24')

def stg_items(WA, kbs, tag):
    L = []
    for kb in kbs:
        for i in range(5):
            pre = []
            if i == 0: pre = [f's_mov_b32 s51, {kb*40960}', f's_add_u32 m0, s56, {(kb%7)*5120}']
            if i == 4: pre = [f's_add_u32 m0, s56, {(kb%7)*5120 + 4096}']
            L.append((pre, f'buffer_load_dwordx4 v{WA+i}, s[52:55], s51 offen offset:{1024*(i%4)} lds', tag))
    return L

def stg_reads(a, WA, kbs):
    for kb in kbs:
        for t in range(5):
            for hq in range(2):
                r = (kb*5+t)*4 + 2*hq
                a.e(f'ds_read_b64_tr_b16 a[{r}:{r+1}], v{WA+5} offset:{(kb%7)*5120 + 32*t + 2560*hq}')

PO2, ZR = 120, 144
def k1_type(a, typ):
    st_ = St(a)
    vt = VT(a); lt = LT(a)
    QH = typ == 'QH'
    NT = 17 if QH else 10
    AOFF = AOFF_QH if QH else AOFF_KV
    def emit(L):
        for pre, ld, tag in L:
            for x in pre: a.e(x)
            if ld: vt.op(ld, tag)
    if PXF: p0_loads(a, vt)
    st_(34)
    srd(a, 8, 26, 27, 0, 640*1920*2)
    if QH:
        srd(a, 40, 28, 29, 0, 640*1536*2)
        srd(a, 12, 24, 25, H, SZ_H)
        srd(a, 16, 30, 31, 0, 1536*2)
    else:
        srd(a, 16, 24, 25, KVP, SZ_KVP)
    a.e('s_lshl_b32 s23, s21, 3')
    a.e('s_lshl_b32 s36, s20, 1')
    a.e('s_add_u32 s23, s23, s36')
    a.e('s_mul_i32 s36, s23, 20480')
    a.e('v_lshrrev_b32 v24, 3, v1')
    a.e('v_mul_u32_u24 v25, 1280, v24')
    a.e('v_add_u32 v25, s36, v25')
    a.e('v_and_b32 v26, 7, v1')
    a.e('v_xor_b32 v26, v26, v2')
    a.e('v_lshl_add_u32 v6, v26, 4, v25')
    a.e('v_xor_b32 v26, 4, v26')
    a.e('v_lshl_add_u32 v7, v26, 4, v25')
    a.e(f'v_add_u32 v9, {24*1280 - 3072}, v7')
    a.e(f'v_add_u32 v7, {8*1280 - 1024}, v7')
    a.e(f'v_add_u32 v8, {16*1280 - 2048}, v6')
    a.e('s_lshl_b32 s47, s20, 12')
    a.e(f's_add_u32 s47, s47, {AOFF}')
    def issue_A(ks):
        st = ks % 3
        return [([f's_mov_b32 s32, {ks*128}', f's_add_u32 m0, s47, {st*16384}'] if i == 0 else [],
                 f'buffer_load_dwordx4 v{6+i}, s[88:91], s32 offen offset:{1024*i} lds', f'r{ks}') for i in range(4)]
    st_(35)
    emit(issue_A(0))
    st_(36)
    BO = 10
    if QH:
        NB = 9
        a.e('s_mul_i32 s35, s22, 384')
        a.e(f's_mul_i32 s36, s20, {6*64}')
        a.e(f's_mul_i32 s34, s20, {6*1024}')
        a.e('s_mul_i32 s44, s20, 3072')
        a.e(f's_add_u32 s44, s44, {BQ_L}')
        def issue_B1(ks, i):
            st = ks % 3
            if i < 6:
                pre = [f's_mov_b32 s33, {ks*64*3072}', f's_add_u32 m0, s34, {st*24576}'] if i == 0 else []
                if i == 4: pre = [f's_add_u32 m0, s34, {st*24576 + 4096}']
                return (pre, f'buffer_load_dwordx4 v{BO+i}, s[40:43], s33 offen offset:{1024*(i%4)} lds', f'r{ks}')
            j = i - 6
            pre = [f's_mov_b32 s33, {ks*64*3840}', f's_add_u32 m0, s44, {st*QST}'] if j == 0 else []
            return (pre, f'buffer_load_dwordx4 v{BO+i}, s[8:11], s33 offen offset:{1024*j} lds', f'r{ks}')
        for i in range(6):
            a.e(f'v_add_u32 v24, s36, v1')
            if i: a.e(f'v_add_u32 v24, {64*i}, v24')
            a.e(f'v_mul_u32_u24 v25, 43691, v24')
            a.e('v_lshrrev_b32 v25, 20, v25')
            a.e(f'v_mul_u32_u24 v26, 24, v25')
            a.e('v_sub_u32 v26, v24, v26')
            slot_k(a, 27, 25, 28)
            a.e(f'v_mul_u32_u24 v{BO+i}, 3072, v27')
            a.e('v_bfe_u32 v28, v25, 1, 2')
            a.e('v_lshlrev_b32 v28, 1, v28')
            a.e('v_xor_b32 v26, v26, v28')
            a.e(f'v_lshl_add_u32 v{BO+i}, v26, 4, v{BO+i}')
            a.e(f'v_add_u32 v{BO+i}, s35, v{BO+i}')
            if i % 4: a.e(f'v_subrev_u32 v{BO+i}, {1024*(i%4)}, v{BO+i}')
            emit([issue_B1(0, i)])
        a.e('s_mul_i32 s36, s22, 160')
        a.e('s_mul_i32 s37, s20, 192')
        for j in range(3):
            i = 6 + j
            a.e(f'v_add_u32 v24, s37, v1')
            if j: a.e(f'v_add_u32 v24, {64*j}, v24')
            a.e('v_mul_u32_u24 v25, 6554, v24')
            a.e('v_lshrrev_b32 v25, 16, v25')
            a.e('v_mul_u32_u24 v26, 10, v25')
            a.e('v_sub_u32 v26, v24, v26')
            slot_k(a, 27, 25, 28)
            a.e(f'v_mul_u32_u24 v{BO+i}, 3840, v27')
            a.e(f'v_lshl_add_u32 v{BO+i}, v26, 4, v{BO+i}')
            a.e(f'v_add_u32 v{BO+i}, s36, v{BO+i}')
            if j:
                a.e(f'v_subrev_u32 v{BO+i}, {1024*j}, v{BO+i}')
                a.e('v_mov_b32 v25, 0x7f000000')
                a.e('v_cmp_lt_u32 vcc, 639, v24')
                a.e(f'v_cndmask_b32 v{BO+i}, v{BO+i}, v25, vcc')
            emit([issue_B1(0, i)])
    else:
        NB = 5
        a.e('s_mul_i32 s34, s20, 5120')
        def issue_B1(ks, i):
            st = ks % 3
            pre = [f's_mov_b32 s33, {ks*64*3840}', f's_add_u32 m0, s34, {st*20480}'] if i == 0 else []
            if i == 4: pre = [f's_add_u32 m0, s34, {st*20480 + 4096}']
            return (pre, f'buffer_load_dwordx4 v{BO+i}, s[8:11], s33 offen offset:{1024*(i%4)} lds', f'r{ks}')
        a.e('s_mul_i32 s36, s22, 160')
        a.e('s_add_u32 s36, s36, 1280')
        a.e('s_mul_i32 s37, s20, 320')
        for i in range(5):
            a.e(f'v_add_u32 v24, s37, v1')
            if i: a.e(f'v_add_u32 v24, {64*i}, v24')
            a.e('v_mul_u32_u24 v25, 6554, v24')
            a.e('v_lshrrev_b32 v25, 16, v25')
            a.e('v_mul_u32_u24 v26, 10, v25')
            a.e('v_sub_u32 v26, v24, v26')
            a.e('v_lshrrev_b32 v29, 6, v25')
            a.e('v_and_b32 v25, 63, v25')
            slot_k(a, 27, 25, 28)
            a.e(f'v_mul_u32_u24 v{BO+i}, 3840, v27')
            a.e(f'v_lshl_add_u32 v{BO+i}, v26, 4, v{BO+i}')
            a.e('v_mul_u32_u24 v29, 1280, v29')
            a.e(f'v_add3_u32 v{BO+i}, s36, v{BO+i}, v29')
            if i % 4: a.e(f'v_subrev_u32 v{BO+i}, {1024*(i%4)}, v{BO+i}')
            emit([issue_B1(0, i)])
    def issue_list(ks):
        return issue_A(ks) + [issue_B1(ks, i) for i in range(NB)]
    st_(15)
    if not PXF: p0_loads(a, vt)
    emit(issue_list(1))
    st_(37)
    a.e('s_and_b32 s36, s63, 15')
    a.e('s_lshl_b32 s36, s36, 2')
    a.e('s_add_u32 s36, s36, s20')
    a.e(f's_cmp_ge_u32 s36, {48 if QH else 60}')
    a.e('s_cselect_b32 s37, 0x7f000000, 0')
    a.e('s_lshl_b32 s36, s36, 13')
    a.e('s_or_b32 s36, s36, s37')
    a.e('v_lshlrev_b32 v29, 7, v1')
    a.e('v_add_u32 v29, s36, v29')
    def pf_item(k):
        return ([f's_mov_b32 s48, {k*(196608 if QH else 245760)}'],
                f'buffer_load_dword v19, v29, s[{40 if QH else 8}:{43 if QH else 11}], s48 offen', 'pf')
    if PFON and -1 in PFS: emit([pf_item(PFS[-1])])
    CSI = cs_loads(a, vt)
    if QH:
        a.e('v_min_u32 v242, 95, v0')
        a.e('v_lshlrev_b32 v242, 2, v242')
        CSI.append(([], 'buffer_load_dword v240, v242, s[16:19], s35 offen', 'cs'))
        a.e('v_lshlrev_b32 v24, 1, v242')
        a.e(f'v_add_u32 v241, {BIL}, v24')
    if CSS < 0: emit(CSI)
    st_(17)
    if QH:
        a.e('s_lshl_b32 s57, s21, 7')
        a.e('s_lshl_b32 s36, s22, 4')
        a.e('s_add_u32 s57, s57, s36')
        a.e('s_lshl_b32 s36, s20, 2')
        a.e('s_add_u32 s57, s57, s36')
        a.e(f's_add_u32 s58, s57, {FQ_O}')
    else:
        a.e('s_lshl_b32 s57, s22, 7')
        a.e('s_lshl_b32 s36, s21, 2')
        a.e('s_add_u32 s57, s57, s36')
        a.e(f's_add_u32 s57, s57, {FK_O}')
        a.e('s_lshl_b32 s41, s22, 2')
        a.e('s_and_b32 s36, s21, 3')
        a.e('s_add_u32 s41, s41, s36')
        a.e('s_lshr_b32 s42, s21, 2')
        a.e('s_lshl_b32 s58, s42, 7')
        a.e('s_lshl_b32 s36, s41, 2')
        a.e('s_add_u32 s58, s58, s36')
        a.e(f's_add_u32 s58, s58, {FM_O}')
    a.e('v_lshrrev_b32 v24, 1, v2')
    a.e('v_lshlrev_b32 v24, 4, v24')
    a.e('v_and_b32 v25, 1, v2')
    a.e('v_lshl_add_u32 v24, v25, 2, v24')
    a.e('v_add_u32 v24, v24, v4')
    a.e('v_mul_u32_u24 v28, 160, v24')
    a.e('v_lshl_add_u32 v28, v5, 3, v28')
    if QH:
        a.e(f'v_add_u32 v28, {BQ_L}, v28')
        a.e(f'v_mul_u32_u24 v24, 384, v24')
        a.e('v_lshl_add_u32 v24, v5, 3, v24')
        a.e('v_lshrrev_b32 v26, 1, v4')
        a.e('v_lshl_or_b32 v25, v25, 1, v26')
        for m in range(4):
            a.e(f'v_xor_b32 v26, {m}, v25')
            a.e(f'v_subrev_u32 v26, {m}, v26')
            a.e(f'v_lshl_add_u32 v{96+m}, v26, 5, v24')
    a.e('v_lshrrev_b32 v24, 1, v3')
    a.e('v_xor_b32 v24, v24, v2')
    a.e('v_lshlrev_b32 v24, 4, v24')
    a.e('v_lshl_add_u32 v24, v3, 7, v24')
    a.e('v_add_u32 v22, s47, v24')
    a.e('v_xor_b32 v24, 64, v24')
    a.e('v_add_u32 v23, s47, v24')
    a.e('v_lshlrev_b32 v30, 4, v1')
    if not QH:
        a.e('v_lshlrev_b32 v24, 3, v0')
        a.e(f'v_add_u32 v24, {K1B_L}, v24')
        a.e('v_mov_b32 v26, 0')
        a.e('v_mov_b32 v27, 0')
        a.e('ds_write_b64 v24, v[26:27]')
        srd(a, 4, 66, 67, 0, SZ_MM)
        a.e('s_mul_i32 s36, s41, 25600')
        a.e('s_mul_i32 s37, s42, 320')
        a.e('s_add_u32 s36, s36, s37')
        for k in range(3):
            a.e(f's_add_u32 s37, s20, {4*k}')
            a.e('s_cmp_ge_u32 s37, 5')
            a.e('s_cselect_b32 s38, 5, 0')
            a.e('s_cselect_b32 s39, 160, 0')
            a.e('s_sub_u32 s38, s37, s38')
            a.e('s_lshl_b32 s38, s38, 6')
            a.e('s_add_u32 s39, s39, s36')
            unit_off(a, 226+k, 24, 's38', 's39')
            a.e('s_lshl_b32 s37, s37, 10')
            a.e(f's_add_u32 s{94+k}, s37, {WO_L}')
    st_(21)
    if STAMP:
        vt.wait('px'); st_(30)
    p0_compute(a, vt)
    st_(31)
    def rd1(ks, t, hq):
        st = ks % 3; bb = BF + ((ks*NT + t) % 4)*8
        ro = 32*(hq>>1) + 8*(hq&1)
        if QH and t < 12:
            off = st*24576 + ro*384 + 32*t; base = 96 + (t % 4)
            if off >= 65536: raise Exception('off')
        elif QH:
            off = st*QST + ro*160 + 32*(t-12); base = 28
        else:
            off = st*20480 + (t//5)*10240 + ro*160 + 32*(t%5); base = 28
        lt.op(f'ds_read_b64_tr_b16 v[{bb+2*hq}:{bb+2*hq+1}], v{base} offset:{off}', f'b{ks}_{t}')
    def rdA(ks, i):
        rt, kh = i >> 1, i & 1
        r0 = ABUF + (ks & 1)*16 + i*4
        lt.op(f'ds_read_b128 v[{r0}:{r0+3}], v{22+kh} offset:{(ks%3)*16384 + rt*2048}', f'b{ks}_0')
    if QH:
        SAB, SRB = 240, 244
        CPR = [248, 250, 252, 100]
    else:
        CSLN, RA, RBr = 190, 200, 208
        CPR = [230, 232, 234, 236]
    CPA = 102
    f0poll = f'buffer_load_dword v103, v101, s[84:87], 0 offen{SC}'
    F0KS = CSK + int(os.environ.get('F0D', 1))
    vt.wait('r0')
    st_(23)
    claim_check(a)
    a.e('s_barrier')
    st_(1)
    claim_verify(a)
    a.e('s_lshl_b32 s2, s63, 3')
    a.e('s_add_u32 s2, s2, s62')
    for i in range(4): rdA(0, i)
    for t in range(3):
        for hq in range(4): rd1(0, t, hq)
    a.e('v_mov_b32 v24, 0')
    vt.op(f'buffer_store_dword v24, v24, s[80:83], s57 offen{SC}', 'st')
    vt.op(f'buffer_store_dword v24, v24, s[80:83], s58 offen{SC}', 'st')
    for ks in range(10):
        if ks == CSK+1:
            CA = 32 + 16*(CSK&1)
            a.e('v_lshlrev_b32 v24, 2, v1')
            a.e(f'v_add_u32 v25, {CSL}, v24')
            for wv in range(4):
                lt.op(f'ds_read_b32 v{CA+wv}, v25 offset:{256*wv}', 'ca')
            lt.wait('ca')
            a.e(f'v_add_f32 v{CA}, v{CA}, v{CA+1}')
            a.e(f'v_add_f32 v{CA+2}, v{CA+2}, v{CA+3}')
            a.e(f'v_add_f32 v{CA}, v{CA}, v{CA+2}')
            vt.op(f'buffer_store_dword v{CA}, v24, s[80:83], s50 offen{SC}', 'st')
        if ks == F0KS+1:
            def b():
                a.e('s_and_b32 s36, s2, 31')
                a.e('s_lshl_b32 s36, 1, s36')
                a.e('v_mov_b32 v24, s36')
                a.e('s_lshr_b32 s36, s2, 5')
                a.e('s_lshl_b32 s36, s36, 2')
                a.e('v_mov_b32 v25, s36')
                a.e('s_mov_b64 exec, 1')
                a.e('buffer_atomic_or v24, v25, s[84:87], 0 offen sc1')
                a.e('s_mov_b64 exec, -1')
            wave0(a, b)
        L = issue_list(ks+2) if ks < 8 else []
        if not QH and ks == 1:
            L += [([f's_mov_b32 m0, s{94+k}'], f'buffer_load_dwordx4 v{226+k}, s[4:7], 0 offen lds', 'wo') for k in range(3)]
        if ks == CSS: L += CSI
        if PFON and ks in PFS: L.append(pf_item(PFS[ks]))
        if ks == W2S[0]:
            srd(a, 52, 68, 69, 0, 1536*640*2)
            a.e('s_lshl_b32 s36, s63, 2')
            a.e('s_add_u32 s36, s36, s20')
            a.e('s_lshl_b32 s36, s36, 14')
            a.e('v_lshlrev_b32 v29, 7, v1')
            a.e('v_add_u32 v29, s36, v29')
            L.append(([], 'buffer_load_dword v19, v29, s[52:55], 0 offen', 'pf'))
        if ks == W2S[1]:
            L.append((['s_movk_i32 s48, 0x2000'], 'buffer_load_dword v19, v29, s[52:55], s48 offen', 'pf'))
        if ks == F0C-1:
            L.insert(0, (['v_and_b32 v101, 7, v1', 'v_lshlrev_b32 v101, 2, v101'], f0poll, 'f0'))
        if ks == F0C:
            vt.wait('f0')
            poll_check(a, [103], '-1', f0poll)
            a.e('s_lshl_b32 s36, s23, 6')
            a.e(f'v_min_u32 v26, {NT*8-1}, v0')
            a.e('v_lshlrev_b32 v26, 1, v26')
            if QH:
                a.e('s_mul_i32 s37, s22, 192')
                a.e('s_add_u32 s37, s37, 1920')
                a.e('s_mul_i32 s38, s22, 80')
                a.e('s_sub_u32 s38, s38, 192')
                a.e('v_mov_b32 v27, s37')
                a.e('v_mov_b32 v25, s38')
                a.e('v_cmp_lt_u32 vcc, 191, v26')
                a.e('v_cndmask_b32 v27, v27, v25, vcc')
            else:
                a.e('s_mul_i32 s37, s22, 80')
                a.e('s_add_u32 s38, s37, 1200')
                a.e('s_add_u32 s37, s37, 640')
                a.e('v_mov_b32 v27, s37')
                a.e('v_mov_b32 v25, s38')
                a.e('v_cmp_lt_u32 vcc, 79, v26')
                a.e('v_cndmask_b32 v27, v27, v25, vcc')
            a.e('v_add_lshl_u32 v27, v27, v26, 2')
            for rg in range(4):
                a.e(f's_mov_b32 s37, {CSM_O + 16384*rg}')
                vt.op(f'buffer_load_dwordx2 v[{CPR[rg]}:{CPR[rg]+1}], v27, s[80:83], s37 offen{SC}', 'cp')
            a.e('v_lshlrev_b32 v26, 2, v26')
            a.e(f'v_add_u32 v{CPA}, {CSL}, v26')
            if QH:
                a.e('v_lshlrev_b32 v24, 2, v3')
                a.e('v_add_u32 v24, s36, v24')
                for k_, base in enumerate((SRB, SRB+2, SAB, SAB+2)):
                    a.e(f's_mov_b32 s37, {STS_O + 8192*k_}')
                    for rt in range(2):
                        vt.op(f'buffer_load_dword v{base+rt}, v24, s[80:83], s37 offen offset:{64*rt}{SC}', 'sts')
            else:
                a.e('v_lshlrev_b32 v25, 4, v2')
                a.e('v_add_u32 v25, s36, v25')
                a.e(f's_mov_b32 s37, {STS_O}')
                a.e(f's_mov_b32 s39, {STS_O + 8192}')
                for rt in range(2):
                    vt.op(f'buffer_load_dwordx4 v[{RA+4*rt}:{RA+4*rt+3}], v25, s[80:83], s37 offen offset:{64*rt}{SC}', 'sts')
                    vt.op(f'buffer_load_dwordx4 v[{RBr+4*rt}:{RBr+4*rt+3}], v25, s[80:83], s39 offen offset:{64*rt}{SC}', 'sts')
        ab = ABUF + (ks & 1)*16
        NI = NT - 2
        per = -(-len(L)//NI) if L else 0
        for t in range(NT):
            R = []
            if t + 3 < NT: R = [(lambda hq=hq: rd1(ks, t+3, hq)) for hq in range(4)]
            if t == NT-2 and ks < 9:
                if ks == CSK:
                    vt.wait('cs')
                    cs_compute(a, 32 + 16*((CSK+1)&1))
                    if QH:
                        unpack(a, 242, 243, 240)
                        a.e('ds_write_b64 v241, v[242:243]')
                lt.drain()
                tags = [f'r{ks+1}']
                if ks == F0KS: tags.append('st')
                vt.wait(*tags)
                a.e('s_barrier')
                st_(2+ks)
                R = [(lambda i=i: (rdA(ks+1, i), rd1(ks+1, 0, i))) for i in range(4)]
            elif t == NT-1 and ks < 9:
                R = [(lambda i=i: (rd1(ks+1, 1, i), rd1(ks+1, 2, i))) for i in range(4)]
            lt.wait(f'b{ks}_{t}')
            bb = BF + ((ks*NT + t) % 4)*8
            G = [L.pop(0) for _ in range(per) if L]
            n = 0
            for kh in range(2):
                for rt in range(2):
                    d = ACC + (rt*NT + t)*4
                    A_ = f'v[{ab+(rt*2+kh)*4}:{ab+(rt*2+kh)*4+3}]'
                    B_ = f'v[{bb+kh*4}:{bb+kh*4+3}]'
                    C_ = '0' if (ks == 0 and kh == 0) else f'v[{d}:{d+3}]'
                    it = G.pop(0) if (n in (0, 2) and G) else None
                    if it:
                        for x in it[0]: a.e(x)
                    if QH: a.e(f'v_mfma_f32_16x16x32_bf16 v[{d}:{d+3}], {B_}, {A_}, {C_}')
                    else:  a.e(f'v_mfma_f32_16x16x32_bf16 v[{d}:{d+3}], {A_}, {B_}, {C_}')
                    if R: R[n]()
                    if it: vt.op(it[1], it[2])
                    n += 1
            emit(G)
            if ks == 9 and t == 4:
                vt.wait('cp')
                for h in range(2):
                    a.e(f'v_add_f32 v{CPR[0]+h}, v{CPR[0]+h}, v{CPR[1]+h}')
                    a.e(f'v_add_f32 v{CPR[2]+h}, v{CPR[2]+h}, v{CPR[3]+h}')
                    a.e(f'v_add_f32 v{CPR[0]+h}, v{CPR[0]+h}, v{CPR[2]+h}')
                lt.op(f'ds_write_b64 v{CPA}, v[{CPR[0]}:{CPR[0]+1}]', 'w')
        assert not L
    lt.drain()
    a.e('s_barrier')
    st_(11)
    if QH:
        WA = 10
        stg_setup(a, WA)
        SL = stg_items(WA, range(7), 'wA')
        emit(SL[:5]); SL = SL[5:]
        a.e('v_lshlrev_b32 v24, 4, v2')
        a.e(f'v_add_u32 v24, {CSL}, v24')
        CB = [32, 48]
        def rd_cb(u):
            c = CB[u & 1]
            for hi in range(2):
                lt.op(f'ds_read_b128 v[{c+8*hi}:{c+8*hi+3}], v24 offset:{64*(2*u+hi)}', f'c{u}')
                lt.op(f'ds_read_b128 v[{c+8*hi+4}:{c+8*hi+7}], v24 offset:{BIL - CSL + 64*(2*u+hi)}', f'c{u}')
        rd_cb(0)
        a.e('s_mul_i32 s36, s23, 49152')
        a.e('s_mul_i32 s37, s22, 6144')
        a.e('s_add_u32 s36, s36, s37')
        a.e('v_add_u32 v6, s36, v30')
        a.e('v_add_u32 v7, 4096, v6')
        a.e('v_add_u32 v8, 49152, v6')
        a.e('v_add_u32 v9, 53248, v6')
        a.e(f's_mov_b32 s36, {hx(f2u(C1))}')
        a.e(f's_mov_b32 s37, {hx(f2u(C1))}')
        a.e(f'v_mov_b32 v26, {hx(f2u(C2))}')
        a.e(f'v_mov_b32 v27, {hx(f2u(C2))}')
        vt.wait('sts')
        for u in range(6):
            if u < 5: rd_cb(u+1)
            if u == 4:
                assert not SL
                vt.wait('wA')
                stg_reads(a, WA, range(7))
                lt.drain()
                st_(24)
                SL = stg_items(WA, range(7, 12), 'wB')
            lt.wait(f'c{u}')
            c = CB[u & 1]
            for rt in range(2):
                o = 64 + ((2*u+rt) % 4)*4
                for hi in range(2):
                    t = 2*u + hi
                    d = ACC + (rt*NT + t)*4
                    gelu4pk(a, d, o+2*hi, 80 + 4*hi, 36, 26, SAB, rt, c+8*hi, c+8*hi+4)
                    k_ = 4 if u >= 4 else 3
                    emit(SL[:k_]); SL = SL[k_:]
                vt.op(f'buffer_store_dwordx4 v[{o}:{o+3}], v{6 + 2*rt + (0 if u < 4 else 1)}, s[12:15], 0 offen offset:{(u%4)*1024}', 'h')
        assert not SL
        st_(12)
        CSQ = 32
        for t in range(5):
            lt.op(f'ds_read_b128 v[{CSQ+4*t}:{CSQ+4*t+3}], v24 offset:{768+64*t}', 'cq')
        a.e(f's_mov_b32 s36, {hx(f2u(LOG2E))}')
        a.e(f'v_mov_b32 v26, {hx(f2u(1e-6))}')
        lt.drain()
        a.e('s_bitcmp1_b32 s22, 0')
        a.e('s_cbranch_scc1 Q_ODD')
        for par in range(2):
            if par: a.label('Q_ODD')
            miss = 10 if par == 0 else 0
            for rt in range(2):
                for t in range(5):
                    d = ACC + (rt*NT + 12 + t)*4
                    phi4(a, d, PO2+12*rt+2*(t+par), 16 + 4*(t%2), 36, 26, [SRB+rt]*4, [SRB+2+rt]*4, [CSQ+4*t+q for q in range(4)])
                a.e(f'v_mov_b32 v{PO2+12*rt+miss}, 0')
                a.e(f'v_mov_b32 v{PO2+12*rt+miss+1}, 0')
            if par == 0: a.e('s_branch Q_DONE')
        a.label('Q_DONE')
        st_(13)
        vt.wait('h')
        a.e('v_mov_b32 v24, 1')
        a.e('v_mov_b32 v25, 0')
        vt.op(f'buffer_store_dword v24, v25, s[80:83], s57 offen', 'fl')
        st_(14)
        vt.wait('wB')
        stg_reads(a, WA, range(7, 12))
        k2(a, vt, True)
    else:
        a.e('v_lshlrev_b32 v25, 2, v3')
        a.e(f'v_add_u32 v25, {CSL}, v25')
        for t in range(10):
            a.e(f'ds_read_b32 v{CSLN+t}, v25 offset:{64*t}')
        a.e(f's_mov_b32 s36, {hx(f2u(LOG2E))}')
        a.e(f'v_mov_b32 v26, {hx(f2u(1e-6))}')
        vt.wait('sts')
        a.e('s_waitcnt lgkmcnt(0)')
        OP = 32
        for t in range(10):
            for rt in range(2):
                d = ACC + (rt*NT + t)*4
                p = OP + 4*t + rt*2
                if t < 5:
                    phi4(a, d, p, 10 + 4*rt, 36, 26, [RA+4*rt+q for q in range(4)], [RBr+4*rt+q for q in range(4)], [CSLN+t]*4)
                else:
                    tt = 10 + 4*rt
                    for q in range(4): a.e(f'v_mul_f32 v{tt+q}, v{RBr+4*rt+q}, v{CSLN+t}')
                    for q in range(4): a.e(f'v_fma_f32 v{d+q}, v{d+q}, v{RA+4*rt+q}, v{tt+q}')
                    a.e(f'v_cvt_pk_bf16_f32 v{p}, v{d}, v{d+1}')
                    a.e(f'v_cvt_pk_bf16_f32 v{p+1}, v{d+2}, v{d+3}')
        for i in range(4):
            a.e(f'v_mov_b32 v{72+i}, 0x3f803f80')
        KA = lambda n: 104 + 4*n
        for n, (i, j) in enumerate(KV_PAIRS):
            a.e(f'v_mfma_f32_16x16x32_bf16 v[{KA(n)}:{KA(n)+3}], v[{OP+4*i}:{OP+4*i+3}], v[{OP+20+4*j}:{OP+20+4*j+3}], 0')
        for i in range(5):
            n = 13+i
            a.e(f'v_mfma_f32_16x16x32_bf16 v[{KA(n)}:{KA(n)+3}], v[{OP+4*i}:{OP+4*i+3}], v[72:75], 0')
        a.e('s_mul_i32 s37, s20, 18432')
        a.e(f'v_add_u32 v23, s37, v30')
        for n in range(18):
            a.e(f'ds_write_b128 v23, v[{KA(n)}:{KA(n)+3}] offset:{KVR_L + 1024*n}')
        a.e('s_waitcnt lgkmcnt(0)')
        a.e('s_barrier')
        st_(12)
        a.e('s_lshl_b32 s38, s20, 10')
        a.e('v_add_u32 v23, s38, v30')
        a.e('s_lshl_b32 s37, s22, 4')
        a.e('s_add_u32 s37, s37, s21')
        a.e('s_mul_i32 s37, s37, 18432')
        a.e('s_add_u32 s37, s37, s38')
        a.e('v_add_u32 v24, s37, v30')
        a.e('v_add_u32 v25, 55296, v23')
        a.e('v_add_u32 v27, 16384, v24')
        a.e('v_mov_b32 v28, 0x7fffffff')
        a.e('s_cmp_ge_u32 s20, 2')
        a.e('s_cselect_b64 vcc, -1, 0')
        a.e('v_cndmask_b32 v27, v27, v28, vcc')
        RS = [104, 120, 136, 152, 168]
        for i in range(5):
            R = RS[i]
            for wv in range(4):
                if wv < 3: a.e(f'ds_read_b128 v[{R+4*wv}:{R+3+4*wv}], v23 offset:{KVR_L + wv*18432 + i*4096}')
                else: a.e(f'ds_read_b128 v[{R+4*wv}:{R+3+4*wv}], v25 offset:{KVR_L + i*4096}')
        for i in range(5):
            R = RS[i]
            a.e(f's_waitcnt lgkmcnt({min(15,4*(4-i))})')
            for q in range(4):
                a.e(f'v_add_f32 v{R+q}, v{R+q}, v{R+4+q}')
                a.e(f'v_add_f32 v{R+8+q}, v{R+8+q}, v{R+12+q}')
                a.e(f'v_add_f32 v{R+q}, v{R+q}, v{R+8+q}')
            if i < 4:
                a.e(f's_mov_b32 s38, {4096*i}')
                vt.op(f'buffer_store_dwordx4 v[{R}:{R+3}], v24, s[16:19], s38 offen{SC}', 'kv')
            else:
                vt.op(f'buffer_store_dwordx4 v[{R}:{R+3}], v27, s[16:19], 0 offen{SC}', 'kv')
        st_(13)
        k1b_prep(a)
        WA = 226
        stg_setup(a, WA)
        vt.drain()
        a.e('s_barrier')
        def b():
            a.e('v_mov_b32 v24, 1')
            a.e('v_mov_b32 v25, 0')
            a.e(f'buffer_store_dword v24, v25, s[80:83], s57 offen{SC}')
        wave0(a, b)
        st_(14)
        vt = k1b(a, WA)
        k2(a, vt, False)

def k1b(a, WA):
    st_ = St(a)
    vt = VT(a)
    def emit(L):
        for pre, ld, tag in L:
            for x in pre: a.e(x)
            if ld: vt.op(ld, tag)
    G = 40
    PO = 208
    poll0(a, [34], '1', f'buffer_load_dword v34, v205, s[80:83], s33 offen{SC}', 4)
    st_(24)
    for rb in range(16):
        a.e(f's_mov_b32 s33, {rb*18432}')
        vt.op(f'buffer_load_dwordx4 v[{G+4*rb}:{G+4*rb+3}], v{GA}, s[16:19], s33 offen{SC}', 'g')
    emit(stg_items(WA, range(7), 'wA'))
    vt.wait('g')
    st_(25)
    for s_ in (8, 4, 2, 1):
        for rb in range(s_):
            for h in (0, 2):
                a.e(f'v_pk_add_f32 v[{G+4*rb+h}:{G+4*rb+h+1}], v[{G+4*rb+h}:{G+4*rb+h+1}], v[{G+4*(rb+s_)+h}:{G+4*(rb+s_)+h+1}]')
    for q in range(4): a.e(f'v_cvt_pk_bf16_f32 v{G+q}, v{G+q}, v{G+q}')
    for q in range(4): a.e(f'ds_write_b16 v{LA}, v{G+q} offset:{64*q}')
    a.e('s_waitcnt lgkmcnt(0)')
    a.e('s_barrier')
    QO = 40
    DOS = [80, 84, 88, 92, 96, 100]
    for dt in range(2):
        a.e(f'ds_read_b128 v[{QO+4*dt}:{QO+4*dt+3}], v204 offset:{1024*dt}')
    a.e('s_waitcnt lgkmcnt(0)')
    for k in range(3):
        for dt in range(2):
            d = DOS[2*k+dt]
            a.e(f'v_mfma_f32_16x16x32_bf16 v[{d}:{d+3}], v[{QO+4*dt}:{QO+4*dt+3}], v[{PO+4*k}:{PO+4*k+3}], 0')
    for k in range(3):
        for dt in range(2):
            d = DOS[2*k+dt]
            a.e(f'v_cvt_pk_bf16_f32 v{d}, v{d}, v{d+1}')
            a.e(f'v_cvt_pk_bf16_f32 v{d+1}, v{d+2}, v{d+3}')
            vt.op(f'buffer_store_dwordx2 v[{d}:{d+1}], v{202+dt}, s[12:15], s{92+k} offen{SC}', 'm')
    st_(26)
    vt.wait('wA')
    stg_reads(a, WA, range(7))
    vt.drain()
    a.e('s_barrier')
    def b():
        a.e('v_mov_b32 v32, 1')
        a.e('v_mov_b32 v33, 0')
        a.e(f'buffer_store_dword v32, v33, s[80:83], s58 offen{SC}')
    wave0(a, b)
    st_(27)
    a.e('s_waitcnt lgkmcnt(0)')
    emit(stg_items(WA, range(7, 12), 'wB'))
    vt.drain()
    stg_reads(a, WA, range(7, 12))
    return vt

A2 = 40
AC2 = 168
XB = 148
NS = 5
def k2_epi(a, w, tn):
    st_ = St(a)
    RR = [r for r in range(88, 148, 4)]
    a.e('s_barrier')
    for rt in range(4):
        if rt == w: continue
        for t in range(5):
            d = AC2 + (rt*5+t)*4
            off = w*20480 + (rt*5+t)*1024
            if off < 65536: a.e(f'ds_write_b128 v26, v[{d}:{d+3}] offset:{off}')
            else: a.e(f'ds_write_b128 v27, v[{d}:{d+3}] offset:{off-65536}')
    a.e('s_waitcnt lgkmcnt(0)')
    a.e('s_barrier')
    k = 0
    for ws_ in range(4):
        if ws_ == w: continue
        for t in range(5):
            off = ws_*20480 + (w*5+t)*1024
            r0 = RR[k*5+t]
            if off < 65536: a.e(f'ds_read_b128 v[{r0}:{r0+3}], v26 offset:{off}')
            else: a.e(f'ds_read_b128 v[{r0}:{r0+3}], v27 offset:{off-65536}')
        k += 1
    a.e('s_waitcnt vmcnt(0) lgkmcnt(0)')
    for t in range(5):
        d = AC2 + (w*5+t)*4
        for q in range(4):
            a.e(f'v_add_f32 v{RR[t]+q}, v{RR[t]+q}, v{RR[5+t]+q}')
            a.e(f'v_add_f32 v{d+q}, v{d+q}, v{RR[10+t]+q}')
            a.e(f'v_add_f32 v{d+q}, v{d+q}, v{RR[t]+q}')
        for hf in range(2):
            unpack(a, 32, 33, XB+2*t+hf)
            unpack(a, 34, 35, XB+10+2*t+hf)
            a.e(f'v_add_f32 v{d+2*hf}, v{d+2*hf}, v34')
            a.e(f'v_add_f32 v{d+2*hf+1}, v{d+2*hf+1}, v35')
            a.e(f'v_add_f32 v{d+2*hf}, v{d+2*hf}, v32')
            a.e(f'v_add_f32 v{d+2*hf+1}, v{d+2*hf+1}, v33')
            a.e(f'v_cvt_pk_bf16_f32 v{36+hf}, v{d+2*hf}, v{d+2*hf+1}')
        a.e(f'buffer_store_dwordx2 v[36:37], v28, s[36:39], 0 offen offset:{32*t}')
    if STAMP:
        a.e('s_waitcnt vmcnt(0)')
        st_(33); st_.dump()
    a.e('s_branch KF_END')

S_FK, S_ZN, S_FQ, S_FM, S_CQ = 1, 5, 7, 7, 10
def k2(a, vt, QH):
    st_ = St(a)
    tn = 'Q' if QH else 'V'
    st_(18)
    srd(a, 4, 76, 77, H, SZ_H)
    srd(a, 8, 76, 77, PQS, SZ_ACT)
    srd(a, 16, 76, 77, MF, SZ_MF)
    srd(a, 28, 70, 71, 0, 1280)
    srd(a, 36, 72, 73, 0, SZ_ACT)
    a.e('s_lshr_b32 s34, s60, 1')
    a.e('s_lshl_b32 s34, s34, 7')
    a.e('s_lshl_b32 s33, s20, 5')
    a.e('s_add_u32 s34, s34, s33')
    a.e('s_and_b32 s33, s60, 1')
    a.e('s_lshl_b32 s33, s33, 3')
    a.e('s_add_u32 s34, s34, s33')
    a.e('v_bfe_u32 v35, v1, 1, 1')
    a.e('v_lshlrev_b32 v35, 4, v35')
    a.e('v_and_b32 v33, 1, v1')
    a.e('v_lshl_add_u32 v35, v33, 2, v35')
    a.e('v_add_u32 v35, s34, v35')
    fhpoll = f'buffer_load_dword v33, v35, s[80:83], 0 offen{SC}'
    vt.op(fhpoll, 'fh')
    for k in range(6): a.e(f's_mov_b32 s{40+k}, {4096*(k+1)}')
    a.e(f's_mov_b32 s46, {FQ_O}')
    fqpoll = f'buffer_load_dword v33, v35, s[80:83], s46 offen{SC}'
    so = lambda k: '0' if k == 0 else f's{39+k}'
    a.e('v_lshlrev_b32 v26, 4, v1')
    a.e('v_add_u32 v27, 65536, v26')
    a.e('s_mul_i32 s33, s60, 196608')
    a.e('s_mul_i32 s32, s20, 12288')
    a.e('s_add_u32 s33, s33, s32')
    a.e('v_add_u32 v6, s33, v26')
    a.e('s_mul_i32 s33, s60, 81920')
    a.e('s_mul_i32 s32, s20, 5120')
    a.e('s_add_u32 s33, s33, s32')
    a.e('v_add_u32 v10, s33, v26')
    for rt in range(1, 4):
        a.e(f'v_add_u32 v{6+rt}, {rt*49152}, v6')
        a.e(f'v_add_u32 v{10+rt}, {rt*20480}, v10')
    a.e('s_mul_i32 s32, s61, 160')
    a.e('s_lshl_b32 s33, s60, 6')
    a.e('s_lshl_b32 s34, s20, 4')
    a.e('s_add_u32 s33, s33, s34')
    a.e('v_add_u32 v28, s33, v3')
    a.e('v_mul_u32_u24 v28, 1280, v28')
    a.e('v_lshl_add_u32 v28, v2, 3, v28')
    a.e('v_add_u32 v28, s32, v28')
    a.e('v_lshlrev_b32 v29, 3, v2')
    a.e('v_add_u32 v29, s32, v29')
    a.e('s_mul_i32 s33, s61, 102400')
    a.e('s_mul_i32 s32, s20, 25600')
    a.e('s_add_u32 s33, s33, s32')
    a.e('v_add_u32 v14, s33, v26')
    a.e('v_and_b32 v32, 7, v1')
    a.e('v_lshlrev_b32 v32, 2, v32')
    a.e('s_lshr_b32 s35, s61, 1')
    a.e('s_lshl_b32 s35, s35, 7')
    a.e('s_lshl_b32 s32, s20, 5')
    a.e('s_add_u32 s35, s35, s32')
    a.e(f's_add_u32 s35, s35, {FM_O}')
    fmpoll = f'buffer_load_dword v34, v32, s[80:83], s35 offen{SC}'
    if QH:
        srd(a, 12, 76, 77, KVP, SZ_KVP)
        a.e('v_lshlrev_b32 v21, 2, v3')
        a.e('s_lshl_b32 s56, s22, 7')
        a.e(f's_add_u32 s56, s56, {FK_O}')
        fkpoll = f'buffer_load_dword v25, v21, s[80:83], s56 offen{SC}'
        vt.op(fkpoll, 'fk')
        a.e('v_mul_u32_u24 v18, 52, v1')
        a.e('v_lshrrev_b32 v18, 10, v18')
        a.e('v_mul_u32_u24 v19, 20, v18')
        a.e('v_sub_u32 v19, v1, v19')
        a.e('v_mul_u32_u24 v16, 18432, v18')
        a.e('v_lshl_add_u32 v16, v19, 8, v16')
        a.e('s_mul_i32 s32, s22, 294912')
        a.e(f's_add_u32 s32, s32, {13*1024}')
        a.e('v_add_u32 v16, s32, v16')
        a.e('v_mov_b32 v19, 0x7fffffff')
        a.e('v_cmp_lt_u32 vcc, 2, v18')
        a.e('v_cndmask_b32 v16, v16, v19, vcc')
        a.e('v_cmp_lt_u32 vcc, 0, v18')
        a.e('v_cndmask_b32 v17, v16, v19, vcc')
        a.e('s_lshl_b32 s32, s20, 8')
        a.e(f's_add_u32 s32, s32, {ZB_L}')
        a.e('v_min_u32 v18, 20, v1')
        a.e('v_lshl_add_u32 v18, v18, 3, s32')
        a.e('v_lshl_add_u32 v15, v2, 3, s32')
        a.e('v_lshlrev_b32 v19, 2, v1')
        a.e('v_add_u32 v20, 160, v19')
        a.e('v_add_u32 v19, 80, v19')
        a.e(f'v_mov_b32 v24, {hx(f2u(1e-6))}')
        a.e('s_mul_i32 s32, s23, 20480')
        a.e('s_mul_i32 s33, s22, 5')
        a.e('s_lshr_b32 s33, s33, 1')
        a.e('s_lshl_b32 s33, s33, 10')
        a.e('s_add_u32 s32, s32, s33')
        a.e('v_add_u32 v22, s32, v26')
        a.e('v_add_u32 v23, 20480, v22')
        a.e('v_cmp_gt_u32 s[92:93], 1, v2')
        a.e('v_cmp_gt_u32 s[94:95], 2, v2')
        a.e('v_cmp_gt_u32 s[96:97], 3, v2')
    vt.wait('fh')
    poll_check(a, [33], '1', fhpoll)
    st_(19)
    def ldA(i):
        b = A2 + (i % NS)*16
        L = []
        for r in range(4):
            if i < 12:
                L.append((f'buffer_load_dwordx4 v[{b+4*r}:{b+4*r+3}], v{6+r}, s[4:7], {so(i//4)} offen offset:{(i%4)*1024}{SC}', f'a{i}'))
            else:
                j = i - 12
                L.append((f'buffer_load_dwordx4 v[{b+4*r}:{b+4*r+3}], v{10+r}, s[8:11], {so(j//4)} offen offset:{(j%4)*1024}{SC}', f'a{i}'))
        return L
    def ldM(i):
        L = []
        for t in range(5):
            j = i*5+t
            L.append((f'buffer_load_dwordx4 a[{4*j}:{4*j+3}], v14, s[16:19], {so(j//4)} offen offset:{(j%4)*1024}{SC}', f'm{12+i}'))
        return L
    for i in range(NS):
        for x in ldA(i): vt.op(*x)
    a.e('s_waitcnt lgkmcnt(0)')
    L = []
    for i in range(17):
        vt.wait(f'a{i}', f'm{i}')
        if i == 0: st_(20)
        if i == 12: st_(22)
        if QH and i == S_FK:
            vt.wait('fk')
            poll_check(a, [25], '1', fkpoll)
            st_(29)
            for j in range(6):
                a.e(f's_mov_b32 s32, {j*55296}')
                vt.op(f'buffer_load_dwordx4 v[{ZR+4*j}:{ZR+4*j+3}], v{16 if j < 5 else 17}, s[12:15], s32 offen{SC}', 'z')
        if QH and i == S_ZN:
            vt.wait('z')
            st_(25)
            for s_, d_ in ((3,0),(4,1),(5,2),(1,0),(2,0)):
                for h in (0, 2):
                    a.e(f'v_pk_add_f32 v[{ZR+4*d_+h}:{ZR+4*d_+h+1}], v[{ZR+4*d_+h}:{ZR+4*d_+h+1}], v[{ZR+4*s_+h}:{ZR+4*s_+h+1}]')
            for q in range(4):
                a.e(f'ds_bpermute_b32 v{ZR+4+q}, v19, v{ZR+q}')
                a.e(f'ds_bpermute_b32 v{ZR+8+q}, v20, v{ZR+q}')
            a.e('s_waitcnt lgkmcnt(0)')
            for q in range(4):
                a.e(f'v_add_f32 v{ZR+q}, v{ZR+q}, v{ZR+4+q}')
                a.e(f'v_add_f32 v{ZR+q}, v{ZR+q}, v{ZR+8+q}')
            a.e(f'v_cvt_pk_bf16_f32 v{ZR}, v{ZR}, v{ZR+1}')
            a.e(f'v_cvt_pk_bf16_f32 v{ZR+1}, v{ZR+2}, v{ZR+3}')
            a.e(f'ds_write_b64 v18, v[{ZR}:{ZR+1}]')
            a.e('s_waitcnt lgkmcnt(0)')
            a.e('s_bitcmp1_b32 s22, 0')
            a.e('s_cbranch_scc1 N_ODD')
            vt0 = vt
            ZF, DN = ZR+4, ZR+16
            for par in range(2):
                vt = vt0.copy()
                if par: a.label('N_ODD')
                pos = lambda t: 2*(t + par)
                miss = 10 if par == 0 else 0
                for t in range(5):
                    a.e(f'ds_read_b64 v[{ZF+pos(t)}:{ZF+pos(t)+1}], v15 offset:{32*t}')
                a.e(f'v_mov_b32 v{ZF+miss}, 0')
                a.e(f'v_mov_b32 v{ZF+miss+1}, 0')
                a.e('s_waitcnt lgkmcnt(0)')
                for t in range(5):
                    a.e(f'v_add_u32 v30, {4*t}, v2')
                    a.e('v_mul_u32_u24 v30, 52, v30')
                    a.e('v_lshrrev_b32 v30, 8, v30')
                    a.e('v_cmp_eq_u32 vcc, v30, v5')
                    a.e(f'v_cndmask_b32 v{ZF+pos(t)}, 0, v{ZF+pos(t)}, vcc')
                    a.e(f'v_cndmask_b32 v{ZF+pos(t)+1}, 0, v{ZF+pos(t)+1}, vcc')
                for rt in range(2):
                    for u in range(3):
                        C_ = '0' if u == 0 else f'v[{DN+4*rt}:{DN+4*rt+3}]'
                        a.e(f'v_mfma_f32_16x16x32_bf16 v[{DN+4*rt}:{DN+4*rt+3}], v[{ZF+4*u}:{ZF+4*u+3}], v[{PO2+12*rt+4*u}:{PO2+12*rt+4*u+3}], {C_}')
                for rt in range(2):
                    D = DN + 4*rt
                    for q in range(4): a.e(f'v_cvt_pk_bf16_f32 v{D+q}, v{D+q}, v{D+q}')
                    for q in range(4): a.e(f'v_lshlrev_b32 v{D+q}, 16, v{D+q}')
                    for q in range(4): a.e(f'v_add_f32 v{D+q}, v24, v{D+q}')
                    for q in range(4): a.e(f'v_cvt_pk_bf16_f32 v{D+q}, v{D+q}, v{D+q}')
                    for q in range(4): a.e(f'v_lshlrev_b32 v{D+q}, 16, v{D+q}')
                    for q in range(4): a.e(f'v_rcp_f32 v{D+q}, v{D+q}')
                    a.e(f'v_cndmask_b32 v30, v{D+1}, v{D}, s[92:93]')
                    a.e(f'v_cndmask_b32 v31, v{D+2}, v{D+1}, s[94:95]')
                    a.e(f'v_cndmask_b32 v38, v{D+3}, v{D+2}, s[96:97]')
                    sel = [D, 30, 31, 38, D+3]
                    for t in range(5):
                        p = PO2 + 12*rt + pos(t)
                        tt = 248 + 4*(t % 2) if not STAMP else (248 if t % 2 == 0 else ZR)
                        unpack(a, tt, tt+1, p)
                        unpack(a, tt+2, tt+3, p+1)
                        for q in range(4): a.e(f'v_mul_f32 v{tt+q}, v{tt+q}, v{sel[t]}')
                        a.e(f'v_cvt_pk_bf16_f32 v{p}, v{tt}, v{tt+1}')
                        a.e(f'v_cvt_pk_bf16_f32 v{p+1}, v{tt+2}, v{tt+3}')
                    for u in range(3):
                        o = PO2 + 12*rt + 4*u
                        if 4*u <= miss < 4*u + 4:
                            hi = 1 if par else 0
                            vt.op(f'buffer_store_dwordx2 v[{o+2*hi}:{o+2*hi+1}], v{22+rt}, s[8:11], 0 offen offset:{1024*u+8*hi}', 'pq')
                        else:
                            vt.op(f'buffer_store_dwordx4 v[{o}:{o+3}], v{22+rt}, s[8:11], 0 offen offset:{1024*u}', 'pq')
                if par == 0: a.e('s_branch N_DONE')
            a.label('N_DONE')
            a.e('s_nop 7')
            st_(26)
        if QH and i == S_FQ:
            vt.wait('pq')
            a.e('v_mov_b32 v30, 1')
            a.e('v_mov_b32 v31, 0')
            vt.op(f'buffer_store_dword v30, v31, s[80:83], s58 offen', 'fl')
            st_(27)
        if i == S_FM-2: L.append((fmpoll, 'fm'))
        if i == S_FM:
            vt.wait('fm')
            poll_check(a, [34], '1', fmpoll)
            st_(28)
            for k in range(5): L += ldM(k)
        if i == S_CQ-1: L.insert(0, (fqpoll, 'fq'))
        if i == S_CQ:
            vt.wait('fq')
            poll_check(a, [33], '1', fqpoll)
            st_(17 if False else 21)
            for j in range(12, i+NS): L = ldA(j) + L
        if i == 11:
            for t in range(5):
                L.append((f'buffer_load_dwordx2 v[{XB+2*t}:{XB+2*t+1}], v28, s[88:91], 0 offen offset:{32*t}', 'x'))
                L.append((f'buffer_load_dwordx2 v[{XB+10+2*t}:{XB+11+2*t}], v29, s[28:31], 0 offen offset:{32*t}', 'x'))
        b = A2 + (i % NS)*16
        bi = i if i < 12 else i - 12
        for t in range(5):
            for r in range(4):
                d = AC2 + (r*5+t)*4
                C_ = '0' if i == 0 else f'v[{d}:{d+3}]'
                a.e(f'v_mfma_f32_16x16x32_bf16 v[{d}:{d+3}], a[{(bi*5+t)*4}:{(bi*5+t)*4+3}], v[{b+4*r}:{b+4*r+3}], {C_}')
                if L: vt.op(*L.pop(0))
        if i >= 11:
            for x in L: vt.op(*x)
            L = []
        j = i + NS
        if j < 12 or (i >= S_CQ and j < 17): L = ldA(j) + L
    assert not L
    st_(32)
    a.e(f's_cmp_eq_u32 s20, 1'); a.e(f's_cbranch_scc1 K2{tn}_W1')
    a.e(f's_cmp_eq_u32 s20, 2'); a.e(f's_cbranch_scc1 K2{tn}_W2')
    a.e(f's_cmp_eq_u32 s20, 3'); a.e(f's_cbranch_scc1 K2{tn}_W3')
    for w in range(4):
        if w:
            a.label(f'K2{tn}_W{w}')
            a.e('s_nop 7'); a.e('s_nop 7')
        k2_epi(a, w, tn)

def gen_kf():
    a = Asm()
    kernel_head(a, 'kf_kernel')
    a.e('s_cmp_ge_u32 s2, 256')
    a.e('s_cbranch_scc1 KF_END')
    st_ = St(a)
    st_.real(62); st_(0)
    a.e('s_getpc_b64 s[4:5]')
    a.label('KPC')
    a.e('s_lshr_b32 s63, s2, 3')
    a.e('s_mov_b32 s6, KF_END-KPC')
    a.e('s_mov_b32 s7, 0x00020000')
    if CPF:
        a.e('s_bitcmp1_b32 s63, 4')
        a.e('s_cselect_b32 s3, K1_QH-KPC, 0')
        a.e('v_lshlrev_b32 v6, 7, v0')
        a.e('s_add_u32 s8, s3, 0x8000')
        a.e('buffer_load_dword v19, v6, s[4:7], s3 offen')
        a.e('buffer_load_dword v19, v6, s[4:7], s8 offen')
    a.e('s_load_dwordx2 s[64:65], s[0:1], 0')
    a.e('s_load_dwordx2 s[26:27], s[0:1], 8')
    a.e('s_load_dwordx2 s[66:67], s[0:1], 16')
    a.e('s_load_dwordx4 s[28:31], s[0:1], 32')
    a.e('s_load_dwordx8 s[68:75], s[0:1], 48')
    a.e('s_load_dwordx2 s[76:77], s[0:1], 80')
    a.e('s_getreg_b32 s62, hwreg(HW_REG_XCC_ID, 0, 3)')
    if BADSLOT: a.e('s_and_b32 s63, s63, 0x15')
    lane_decomp(a)
    a.e('s_lshl_b32 s59, s62, 8')
    a.e('s_waitcnt lgkmcnt(0)')
    a.e('s_mov_b64 s[24:25], s[76:77]')
    srd(a, 84, 74, 75, 0, 256)
    srd(a, 88, 64, 65, 0, SZ_ACT)
    claim_issue(a)
    srd(a, 80, 76, 77, FLG, 0x30000)
    a.label('RESTART')
    st_(16)
    a.e('s_lshl_b32 s21, s62, 1')
    a.e('s_and_b32 s3, s63, 1')
    a.e('s_add_u32 s21, s21, s3')
    a.e('s_bfe_u32 s22, s63, 0x30001')
    a.e('s_lshl_b32 s60, s62, 2')
    a.e('s_and_b32 s3, s63, 3')
    a.e('s_add_u32 s60, s60, s3')
    a.e('s_lshr_b32 s61, s63, 2')
    a.e('s_bitcmp1_b32 s63, 4')
    a.e('s_cbranch_scc1 K1_QH')
    k1_type(a, 'KV')
    a.label('K1_QH')
    k1_type(a, 'QH')
    a.label('KF_END')
    a.e('s_endpgm')
    return a

if __name__ == '__main__':
    a = gen_kf()
    out = HEADER + f'; @launch kernel=kf_kernel grid=(256,1,1) block=(256,1,1) lds={LDS_TOTAL}\n; G6\n'
    out += '.amdgcn_target "amdgcn-amd-amdhsa--gfx950"\n.text\n' + a.text()
    out += '.section .rodata,"a"\n.p2align 6\n' + desc('kf_kernel')
    open(os.environ.get('OUT', 'f6.s'), 'w').write(out)
```

```python
from g6_base import *
PFW = 'pfw' in X
CPF = 'nocpf' not in X
PXF = 'pxl' not in X
PFON = 'pfon' in X
CSK = int(os.environ.get('CSK', 1))
PFS = eval(os.environ.get('PFS', '{0:3, 1:5, 3:7, 5:9}'))
W2S = eval(os.environ.get('W2S', '(8,8)'))
CSS = int(os.environ.get('CSS', -1))
F0C = int(os.environ.get('F0C', 8))
def cs_loads(a, pc, SR, so, ld, va, ab):
    a.e('s_and_b32 s3, s63, 15')
    a.e('s_lshl_b32 s3, s3, 3')
    a.e('s_add_u32 s3, s3, s62')
    if pc:
        a.e('s_add_u32 s3, s3, 128')
        a.e('s_min_u32 s3, s3, 215')
    a.e('s_and_b32 s37, s3, 3')
    a.e('s_lshr_b32 s36, s3, 2')
    a.e('s_lshl_b32 s36, s36, 6')
    a.e(f's_lshl_b32 s{so}, s37, 14')
    a.e('s_lshl_b32 s38, s36, 2')
    a.e(f's_add_u32 s{so}, s{so}, s38')
    a.e(f's_add_u32 s{so}, s{so}, {CSM_O}')
    a.e('s_cmp_ge_u32 s36, 1920')
    a.e(f's_cselect_b32 s{SR}, s28, s26')
    a.e(f's_cselect_b32 s{SR+1}, s29, s27')
    a.e(f's_mov_b32 s{SR+2}, {640*1920*2}')
    a.e(f's_cselect_b32 s{SR+2}, {640*1536*2}, s{SR+2}')
    a.e(f's_mov_b32 s{SR+3}, 0x00020000')
    a.e(f's_movk_i32 s{ld}, 3840')
    a.e(f's_cselect_b32 s{ld}, 3072, s{ld}')
    a.e('s_cselect_b32 s38, 1920, 0')
    a.e('s_sub_u32 s36, s36, s38')
    a.e('s_mul_i32 s39, s37, 160')
    a.e('s_mul_i32 s38, s20, 40')
    a.e('s_add_u32 s39, s39, s38')
    a.e('s_lshl_b32 s36, s36, 1')
    a.e('v_lshrrev_b32 v26, 3, v1')
    a.e('v_add_u32 v26, s39, v26')
    a.e(f'v_mul_u32_u24 v26, s{ld}, v26')
    a.e('v_and_b32 v27, 7, v1')
    a.e('v_lshl_add_u32 v26, v27, 4, v26')
    a.e(f'v_add_u32 v{va}, s36, v26')
    if not pc:
        a.e('v_lshlrev_b32 v31, 5, v27')
        a.e('s_lshl_b32 s39, s20, 8')
        a.e(f's_add_u32 s39, s39, {CSL}')
        a.e('v_add_u32 v31, s39, v31')
    return [([f's_mul_i32 s37, s{ld}, {8*i}'], f'buffer_load_dwordx4 a[{ab+4*i}:{ab+4*i+3}], v{va}, s[{SR}:{SR+3}], s37 offen', f'cs{pc}') for i in range(5)]

def cs_compute2(a, A0, ab):
    T0 = A0 + 8
    for i in range(5):
        for c2 in range(4):
            a.e(f'v_accvgpr_read_b32 v{T0+4+c2}, a{ab+4*i+c2}')
        for c2 in range(4):
            if i == 0:
                unpack(a, A0+2*c2, A0+2*c2+1, T0+4+c2)
            else:
                unpack(a, T0+2*(c2&1), T0+1+2*(c2&1), T0+4+c2)
                a.e(f'v_add_f32 v{A0+2*c2}, v{A0+2*c2}, v{T0+2*(c2&1)}')
                a.e(f'v_add_f32 v{A0+2*c2+1}, v{A0+2*c2+1}, v{T0+1+2*(c2&1)}')
    for c in range(8):
        a.e(f'v_add_f32_dpp v{A0+c}, v{A0+c}, v{A0+c} row_ror:8 row_mask:0xf bank_mask:0xf')
    for sw in ('v_permlane16_swap_b32', 'v_permlane32_swap_b32'):
        for c in range(8): a.e(f'v_mov_b32 v{T0+c}, v{A0+c}')
        for c in range(8): a.e(f'{sw} v{A0+c}, v{T0+c}')
        for c in range(8): a.e(f'v_add_f32 v{A0+c}, v{A0+c}, v{T0+c}')
    a.e(f'ds_write_b128 v31, v[{A0}:{A0+3}]')
    a.e(f'ds_write_b128 v31, v[{A0+4}:{A0+7}] offset:16')

ONES, RSA, GRA = 48, 52, 60
def stat1(a, S1, S2, r, B, T):
    a.e(f'v_mul_f32 v{S1}, {hx(f2u(1.0/640))}, v{S1}')
    a.e(f'v_mul_f32 v{S2}, {hx(f2u(1.0/640))}, v{S2}')
    a.e(f'v_fma_f32 v{S2}, -v{S1}, v{S1}, v{S2}')
    a.e(f'v_max_f32 v{S2}, 0, v{S2}')
    a.e(f'v_cvt_pk_bf16_f32 v{T}, v{S1}, v{S2}')
    a.e(f'v_and_b32 v{r}, 0xffff0000, v{T}')
    a.e(f'v_lshlrev_b32 v{T}, 16, v{T}')
    a.e(f'v_add_f32 v{r}, {hx(f2u(1e-5))}, v{r}')
    rnd1(a, r)
    a.e(f'v_sqrt_f32 v{r}, v{r}')
    rnd1(a, r)
    a.e(f'v_rcp_f32 v{r}, v{r}')
    a.e(f'v_mul_f32 v{B}, -v{T}, v{r}')
def stat2(a, S1, S2, r, B, T, va, vb):
    a.e(f'v_sub_f32 v{S1}, v{S1}, v{T}')
    a.e(f'v_mul_f32 v{S1}, v{S1}, v{r}')
    a.e(f'v_mul_f32 v{S2}, v{S2}, v{r}')
    a.e(f'v_mul_f32 v{S2}, v{S2}, v{r}')
    a.e(f'v_cvt_pk_bf16_f32 v{T}, v{S1}, v{S2}')
    a.e(f'v_and_b32 v{S2}, 0xffff0000, v{T}')
    a.e(f'v_lshlrev_b32 v{T}, 16, v{T}')
    a.e(f'v_add_f32 v{S2}, {hx(f2u(1e-5))}, v{S2}')
    rnd1(a, S2)
    a.e(f'v_sqrt_f32 v{S2}, v{S2}')
    rnd1(a, S2)
    a.e(f'v_rcp_f32 v{S2}, v{S2}')
    a.e(f'v_sub_f32 v{T}, v{B}, v{T}')
    a.e(f'v_mul_f32 v{va}, v{r}, v{S2}')
    a.e(f'v_mul_f32 v{vb}, v{T}, v{S2}')
def diag_sel(a, dst, ar, T):
    for q in range(4): a.e(f'v_accvgpr_read_b32 v{T+q}, a{ar+q}')
    a.e(f'v_cndmask_b32 v{dst}, v{T}, v{T+1}, s[92:93]')
    a.e(f'v_cndmask_b32 v{dst}, v{dst}, v{T+2}, s[94:95]')
    a.e(f'v_cndmask_b32 v{dst}, v{dst}, v{T+3}, s[96:97]')

def stg_setup(a, WA):
    a.e('s_mul_i32 s36, s20, 491520')
    a.e('s_mul_i32 s37, s61, 160')
    a.e('s_add_u32 s36, s36, s37')
    for i in range(5):
        unit_off(a, WA+i, 24, i, 's36')
        if i % 4: a.e(f'v_subrev_u32 v{WA+i}, {1024*(i%4)}, v{WA+i}')
    a.e(f's_mul_i32 s56, s20, {STG}')
    a.e(f'v_lshl_add_u32 v24, v2, 2, v4')
    a.e(f'v_mul_u32_u24 v24, 160, v24')
    a.e(f'v_lshl_add_u32 v24, v5, 3, v24')
    a.e(f'v_add_u32 v{WA+5}, s56, v24')

def stg_items(WA, kbs, tag):
    L = []
    for kb in kbs:
        for i in range(5):
            pre = []
            if i == 0: pre = [f's_mov_b32 s51, {kb*40960}', f's_add_u32 m0, s56, {(kb%7)*5120}']
            if i == 4: pre = [f's_add_u32 m0, s56, {(kb%7)*5120 + 4096}']
            L.append((pre, f'buffer_load_dwordx4 v{WA+i}, s[52:55], s51 offen offset:{1024*(i%4)} lds', tag))
    return L

def stg_reads(a, WA, kbs):
    for kb in kbs:
        for t in range(5):
            for hq in range(2):
                r = (kb*5+t)*4 + 2*hq
                a.e(f'ds_read_b64_tr_b16 a[{r}:{r+1}], v{WA+5} offset:{(kb%7)*5120 + 32*t + 2560*hq}')

PO2, ZR = 120, 144
CSA = 68
def skip_block(a, pre, body):
    lb = newlab('SK')
    for x in pre: a.e(x)
    a.e(f's_cbranch_scc1 {lb}')
    n0 = len(a.lines)
    mark = a.hist[-1]
    body()
    i = len(a.hist) - 1
    while i >= 0 and a.hist[i] is not mark:
        a.hist[i].states = 0; i -= 1
    a.lines.append(lb + ':')
def k1_type(a, typ):
    st_ = St(a)
    vt = VT(a); lt = LT(a)
    QH = typ == 'QH'
    NT = 17 if QH else 10
    AOFF = AOFF_QH if QH else AOFF_KV
    def emit(L):
        for pre, ld, tag in L:
            for x in pre: a.e(x)
            if ld: vt.op(ld, tag)
    st_(34)
    srd(a, 8, 26, 27, 0, 640*1920*2)
    if QH:
        srd(a, 40, 28, 29, 0, 640*1536*2)
        srd(a, 12, 24, 25, H, SZ_H)
        srd(a, 16, 30, 31, 0, 1536*2)
    else:
        srd(a, 16, 24, 25, KVP, SZ_KVP)
    a.e('s_lshl_b32 s23, s21, 3')
    a.e('s_lshl_b32 s36, s20, 1')
    a.e('s_add_u32 s23, s23, s36')
    a.e('s_mul_i32 s36, s23, 20480')
    a.e('v_lshrrev_b32 v24, 3, v1')
    a.e('v_mul_u32_u24 v25, 1280, v24')
    a.e('v_add_u32 v25, s36, v25')
    a.e('v_and_b32 v26, 7, v1')
    a.e('v_xor_b32 v26, v26, v2')
    a.e('v_lshl_add_u32 v6, v26, 4, v25')
    a.e('v_xor_b32 v26, 4, v26')
    a.e('v_lshl_add_u32 v7, v26, 4, v25')
    a.e(f'v_add_u32 v9, {24*1280 - 3072}, v7')
    a.e(f'v_add_u32 v7, {8*1280 - 1024}, v7')
    a.e(f'v_add_u32 v8, {16*1280 - 2048}, v6')
    a.e('s_lshl_b32 s47, s20, 12')
    a.e(f's_add_u32 s47, s47, {AOFF}')
    def issue_A(ks):
        st = ks % 3
        return [([f's_mov_b32 s32, {ks*128}', f's_add_u32 m0, s47, {st*16384}'] if i == 0 else [],
                 f'buffer_load_dwordx4 v{6+i}, s[88:91], s32 offen offset:{1024*i} lds', f'r{ks}') for i in range(4)]
    st_(35)
    emit(issue_A(0))
    st_(36)
    BO = 10
    if QH:
        NB = 9
        a.e('s_mul_i32 s35, s22, 384')
        a.e(f's_mul_i32 s36, s20, {6*64}')
        a.e(f's_mul_i32 s34, s20, {6*1024}')
        a.e('s_mul_i32 s44, s20, 3072')
        a.e(f's_add_u32 s44, s44, {BQ_L}')
        def issue_B1(ks, i):
            st = ks % 3
            if i < 6:
                pre = [f's_mov_b32 s33, {ks*64*3072}', f's_add_u32 m0, s34, {st*24576}'] if i == 0 else []
                if i == 4: pre = [f's_add_u32 m0, s34, {st*24576 + 4096}']
                return (pre, f'buffer_load_dwordx4 v{BO+i}, s[40:43], s33 offen offset:{1024*(i%4)} lds', f'r{ks}')
            j = i - 6
            pre = [f's_mov_b32 s33, {ks*64*3840}', f's_add_u32 m0, s44, {st*QST}'] if j == 0 else []
            return (pre, f'buffer_load_dwordx4 v{BO+i}, s[8:11], s33 offen offset:{1024*j} lds', f'r{ks}')
        for i in range(6):
            a.e(f'v_add_u32 v24, s36, v1')
            if i: a.e(f'v_add_u32 v24, {64*i}, v24')
            a.e(f'v_mul_u32_u24 v25, 43691, v24')
            a.e('v_lshrrev_b32 v25, 20, v25')
            a.e(f'v_mul_u32_u24 v26, 24, v25')
            a.e('v_sub_u32 v26, v24, v26')
            slot_k(a, 27, 25, 28)
            a.e(f'v_mul_u32_u24 v{BO+i}, 3072, v27')
            a.e('v_bfe_u32 v28, v25, 1, 2')
            a.e('v_lshlrev_b32 v28, 1, v28')
            a.e('v_xor_b32 v26, v26, v28')
            a.e(f'v_lshl_add_u32 v{BO+i}, v26, 4, v{BO+i}')
            a.e(f'v_add_u32 v{BO+i}, s35, v{BO+i}')
            if i % 4: a.e(f'v_subrev_u32 v{BO+i}, {1024*(i%4)}, v{BO+i}')
            emit([issue_B1(0, i)])
        a.e('s_mul_i32 s36, s22, 160')
        a.e('s_mul_i32 s37, s20, 192')
        for j in range(3):
            i = 6 + j
            a.e(f'v_add_u32 v24, s37, v1')
            if j: a.e(f'v_add_u32 v24, {64*j}, v24')
            a.e('v_mul_u32_u24 v25, 6554, v24')
            a.e('v_lshrrev_b32 v25, 16, v25')
            a.e('v_mul_u32_u24 v26, 10, v25')
            a.e('v_sub_u32 v26, v24, v26')
            slot_k(a, 27, 25, 28)
            a.e(f'v_mul_u32_u24 v{BO+i}, 3840, v27')
            a.e(f'v_lshl_add_u32 v{BO+i}, v26, 4, v{BO+i}')
            a.e(f'v_add_u32 v{BO+i}, s36, v{BO+i}')
            if j:
                a.e(f'v_subrev_u32 v{BO+i}, {1024*j}, v{BO+i}')
                a.e('v_mov_b32 v25, 0x7f000000')
                a.e('v_cmp_lt_u32 vcc, 639, v24')
                a.e(f'v_cndmask_b32 v{BO+i}, v{BO+i}, v25, vcc')
            emit([issue_B1(0, i)])
    else:
        NB = 5
        a.e('s_mul_i32 s34, s20, 5120')
        def issue_B1(ks, i):
            st = ks % 3
            pre = [f's_mov_b32 s33, {ks*64*3840}', f's_add_u32 m0, s34, {st*20480}'] if i == 0 else []
            if i == 4: pre = [f's_add_u32 m0, s34, {st*20480 + 4096}']
            return (pre, f'buffer_load_dwordx4 v{BO+i}, s[8:11], s33 offen offset:{1024*(i%4)} lds', f'r{ks}')
        a.e('s_mul_i32 s36, s22, 160')
        a.e('s_add_u32 s36, s36, 1280')
        a.e('s_mul_i32 s37, s20, 320')
        for i in range(5):
            a.e(f'v_add_u32 v24, s37, v1')
            if i: a.e(f'v_add_u32 v24, {64*i}, v24')
            a.e('v_mul_u32_u24 v25, 6554, v24')
            a.e('v_lshrrev_b32 v25, 16, v25')
            a.e('v_mul_u32_u24 v26, 10, v25')
            a.e('v_sub_u32 v26, v24, v26')
            a.e('v_lshrrev_b32 v29, 6, v25')
            a.e('v_and_b32 v25, 63, v25')
            slot_k(a, 27, 25, 28)
            a.e(f'v_mul_u32_u24 v{BO+i}, 3840, v27')
            a.e(f'v_lshl_add_u32 v{BO+i}, v26, 4, v{BO+i}')
            a.e('v_mul_u32_u24 v29, 1280, v29')
            a.e(f'v_add3_u32 v{BO+i}, s36, v{BO+i}, v29')
            if i % 4: a.e(f'v_subrev_u32 v{BO+i}, {1024*(i%4)}, v{BO+i}')
            emit([issue_B1(0, i)])
    def issue_list(ks):
        return issue_A(ks) + [issue_B1(ks, i) for i in range(NB)]
    st_(15)
    emit(issue_list(1))
    st_(37)
    a.e('s_and_b32 s36, s63, 15')
    a.e('s_lshl_b32 s36, s36, 2')
    a.e('s_add_u32 s36, s36, s20')
    a.e(f's_cmp_ge_u32 s36, {48 if QH else 60}')
    a.e('s_cselect_b32 s37, 0x7f000000, 0')
    a.e('s_lshl_b32 s36, s36, 13')
    a.e('s_or_b32 s36, s36, s37')
    a.e('v_lshlrev_b32 v29, 7, v1')
    a.e('v_add_u32 v29, s36, v29')
    def pf_item(k):
        return ([f's_mov_b32 s48, {k*(196608 if QH else 245760)}'],
                f'buffer_load_dword v19, v29, s[{40 if QH else 8}:{43 if QH else 11}], s48 offen', 'pf')
    if PFON and -1 in PFS: emit([pf_item(PFS[-1])])
    if QH:
        a.e('v_min_u32 v242, 95, v0')
        a.e('v_lshlrev_b32 v242, 2, v242')
        emit([([], 'buffer_load_dword v240, v242, s[16:19], s35 offen', 'cs0')])
        a.e('v_lshlrev_b32 v24, 1, v242')
        a.e(f'v_add_u32 v241, {BIL}, v24')
    for q in range(4): a.e(f'v_accvgpr_write_b32 a{ONES+q}, v96') if q else (a.e('v_mov_b32 v96, 0x3f803f80'), a.e(f'v_accvgpr_write_b32 a{ONES}, v96'))
    st_(17)
    if QH:
        a.e('s_lshl_b32 s57, s21, 7')
        a.e('s_lshl_b32 s36, s22, 4')
        a.e('s_add_u32 s57, s57, s36')
        a.e('s_lshl_b32 s36, s20, 2')
        a.e('s_add_u32 s57, s57, s36')
        a.e(f's_add_u32 s58, s57, {FQ_O}')
    else:
        a.e('s_lshl_b32 s57, s22, 7')
        a.e('s_lshl_b32 s36, s21, 2')
        a.e('s_add_u32 s57, s57, s36')
        a.e(f's_add_u32 s57, s57, {FK_O}')
        a.e('s_lshl_b32 s41, s22, 2')
        a.e('s_and_b32 s36, s21, 3')
        a.e('s_add_u32 s41, s41, s36')
        a.e('s_lshr_b32 s42, s21, 2')
        a.e('s_lshl_b32 s58, s42, 7')
        a.e('s_lshl_b32 s36, s41, 2')
        a.e('s_add_u32 s58, s58, s36')
        a.e(f's_add_u32 s58, s58, {FM_O}')
    a.e('v_lshrrev_b32 v24, 1, v2')
    a.e('v_lshlrev_b32 v24, 4, v24')
    a.e('v_and_b32 v25, 1, v2')
    a.e('v_lshl_add_u32 v24, v25, 2, v24')
    a.e('v_add_u32 v24, v24, v4')
    a.e('v_mul_u32_u24 v28, 160, v24')
    a.e('v_lshl_add_u32 v28, v5, 3, v28')
    if QH:
        a.e(f'v_add_u32 v28, {BQ_L}, v28')
        a.e(f'v_mul_u32_u24 v24, 384, v24')
        a.e('v_lshl_add_u32 v24, v5, 3, v24')
        a.e('v_lshrrev_b32 v26, 1, v4')
        a.e('v_lshl_or_b32 v25, v25, 1, v26')
        for m in range(4):
            a.e(f'v_xor_b32 v26, {m}, v25')
            a.e(f'v_subrev_u32 v26, {m}, v26')
            a.e(f'v_lshl_add_u32 v{96+m}, v26, 5, v24')
    a.e('v_lshrrev_b32 v24, 1, v3')
    a.e('v_xor_b32 v24, v24, v2')
    a.e('v_lshlrev_b32 v24, 4, v24')
    a.e('v_lshl_add_u32 v24, v3, 7, v24')
    a.e('v_add_u32 v22, s47, v24')
    a.e('v_xor_b32 v24, 64, v24')
    a.e('v_add_u32 v23, s47, v24')
    a.e('v_lshlrev_b32 v30, 4, v1')
    if not QH:
        a.e('v_lshlrev_b32 v24, 3, v0')
        a.e(f'v_add_u32 v24, {K1B_L}, v24')
        a.e('v_mov_b32 v26, 0')
        a.e('v_mov_b32 v27, 0')
        a.e('ds_write_b64 v24, v[26:27]')
        srd(a, 4, 66, 67, 0, SZ_MM)
        a.e('s_mul_i32 s36, s41, 25600')
        a.e('s_mul_i32 s37, s42, 320')
        a.e('s_add_u32 s36, s36, s37')
        for k in range(3):
            a.e(f's_add_u32 s37, s20, {4*k}')
            a.e('s_cmp_ge_u32 s37, 5')
            a.e('s_cselect_b32 s38, 5, 0')
            a.e('s_cselect_b32 s39, 160, 0')
            a.e('s_sub_u32 s38, s37, s38')
            a.e('s_lshl_b32 s38, s38, 6')
            a.e('s_add_u32 s39, s39, s36')
            unit_off(a, 226+k, 24, 's38', 's39')
            a.e('s_lshl_b32 s37, s37, 10')
            a.e(f's_add_u32 s{94+k}, s37, {WO_L}')
    st_(31)
    def rd1(ks, t, hq):
        st = ks % 3; bb = BF + ((ks*NT + t) % 4)*8
        ro = 32*(hq>>1) + 8*(hq&1)
        if QH and t < 12:
            off = st*24576 + ro*384 + 32*t; base = 96 + (t % 4)
            if off >= 65536: raise Exception('off')
        elif QH:
            off = st*QST + ro*160 + 32*(t-12); base = 28
        else:
            off = st*20480 + (t//5)*10240 + ro*160 + 32*(t%5); base = 28
        lt.op(f'ds_read_b64_tr_b16 v[{bb+2*hq}:{bb+2*hq+1}], v{base} offset:{off}', f'b{ks}_{t}')
    def rdA(ks, i):
        rt, kh = i >> 1, i & 1
        r0 = ABUF + (ks & 1)*16 + i*4
        lt.op(f'ds_read_b128 v[{r0}:{r0+3}], v{22+kh} offset:{(ks%3)*16384 + rt*2048}', f'b{ks}_0')
    if QH:
        SAB, SRB = 240, 244
        CPR = [248, 250, 252, 100]
    else:
        CSLN, RA, RBr = 190, 200, 208
        CPR = [230, 232, 234, 236]
    CPA = 102
    f0poll = f'buffer_load_dword v103, v101, s[84:87], 0 offen{SC}'
    zpoll = f'buffer_load_dword v21, off, s[84:87], s45 sc1'
    F0KS = 0
    vt.wait('r0')
    st_(23)
    claim_check(a)
    a.e('s_barrier')
    st_(1)
    claim_verify(a)
    a.e('s_lshl_b32 s2, s63, 3')
    a.e('s_add_u32 s2, s2, s62')
    for i in range(4): rdA(0, i)
    for t in range(3):
        for hq in range(4): rd1(0, t, hq)
    a.e('v_mov_b32 v24, 0')
    vt.op(f'buffer_store_dword v24, v24, s[80:83], s57 offen{SC}', 'st')
    vt.op(f'buffer_store_dword v24, v24, s[80:83], s58 offen{SC}', 'st')
    for ks in range(10):
        if ks == F0KS+1:
            def b():
                if QH:
                    a.e('s_and_b32 s36, s63, 15')
                    a.e('s_lshl_b32 s36, 1, s36')
                    a.e('v_mov_b32 v24, s36')
                    a.e('s_lshl_b32 s36, s62, 2')
                    a.e('s_add_u32 s36, s36, 160')
                    a.e('v_mov_b32 v25, s36')
                    a.e('s_mov_b64 exec, 1')
                    a.e('buffer_atomic_or v24, v25, s[84:87], 0 offen')
                    a.e('s_mov_b64 exec, -1')
                else:
                    a.e('v_mov_b32 v24, 1')
                    a.e('v_mov_b32 v25, s2')
                    a.e('s_mov_b64 exec, 1')
                    a.e('buffer_store_byte v24, v25, s[84:87], 0 offen sc1')
                    a.e('s_mov_b64 exec, -1')
            wave0(a, b)
        L = issue_list(ks+2) if ks < 8 else []
        if not QH and ks == 1:
            L += [([f's_mov_b32 m0, s{94+k}'], f'buffer_load_dwordx4 v{226+k}, s[4:7], 0 offen lds', 'wo') for k in range(3)]
        if PFON and ks in PFS: L.append(pf_item(PFS[ks]))
        if ks == W2S[0]:
            srd(a, 52, 68, 69, 0, 1536*640*2)
            a.e('s_lshl_b32 s36, s63, 2')
            a.e('s_add_u32 s36, s36, s20')
            a.e('s_lshl_b32 s36, s36, 14')
            a.e('v_lshlrev_b32 v29, 7, v1')
            a.e('v_add_u32 v29, s36, v29')
            L.append(([], 'buffer_load_dword v19, v29, s[52:55], 0 offen', 'pf'))
        if ks == W2S[1]:
            L.append((['s_movk_i32 s48, 0x2000'], 'buffer_load_dword v19, v29, s[52:55], s48 offen', 'pf'))
        if ks == F0C:
            L.insert(0, (['v_and_b32 v101, 31, v1', 'v_lshlrev_b32 v101, 2, v101', 's_lshl_b32 s45, s62, 2', 's_add_u32 s45, s45, 160'], f0poll, 'f0'))
            L.insert(1, ([], zpoll, 'f0'))
        if ks == 9:
            a.e('s_lshl_b32 s36, s20, 6')
            a.e(f's_add_u32 s36, s36, {CSL}')
            if QH: a.e(f'v_lshl_add_u32 v{CPA}, v2, 4, s36')
            else:  a.e(f'v_lshl_add_u32 v{CPA}, v3, 2, s36')
        ab = ABUF + (ks & 1)*16
        NI = NT - 2
        per = -(-len(L)//NI) if L else 0
        for t in range(NT):
            R = []
            if t + 3 < NT: R = [(lambda hq=hq: rd1(ks, t+3, hq)) for hq in range(4)]
            if t == NT-2 and ks < 9:
                if ks == CSK and QH:
                    vt.wait('cs0')
                    unpack(a, 242, 243, 240)
                    a.e('ds_write_b64 v241, v[242:243]')
                lt.drain()
                tags = [f'r{ks+1}']
                if ks == F0KS: tags.append('st')
                if ks == F0C: tags.append('f0')
                vt.wait(*tags)
                if ks == F0C:
                    def b():
                        Lp = newlab('PL'); D = newlab('PD')
                        a.e('s_mov_b32 s98, 0')
                        a.label(Lp)
                        a.e('v_xor_b32 v21, 0xffff, v21')
                        a.e('v_xor_b32 v103, 0x01010101, v103')
                        a.e('v_or_b32 v103, v103, v21')
                        a.e('v_cmp_ne_u32 vcc, 0, v103')
                        a.e(f's_cbranch_vccz {D}')
                        a.e('s_add_u32 s98, s98, 1')
                        a.e('s_cmp_ge_u32 s98, 0x40000')
                        a.e(f's_cbranch_scc1 {D}')
                        a.e('s_sleep 6')
                        a.e(f0poll)
                        a.e(zpoll)
                        a.e('s_waitcnt vmcnt(0)')
                        a.e(f's_branch {Lp}')
                        a.label(D)
                    wave0(a, b)
                a.e('s_barrier')
                st_(2+ks)
                R = [(lambda i=i: (rdA(ks+1, i), rd1(ks+1, 0, i))) for i in range(4)]
            elif t == NT-1 and ks < 9:
                R = [(lambda i=i: (rd1(ks+1, 1, i), rd1(ks+1, 2, i))) for i in range(4)]
            lt.wait(f'b{ks}_{t}')
            bb = BF + ((ks*NT + t) % 4)*8
            G = [L.pop(0) for _ in range(per) if L]
            n = 0
            for kh in range(2):
                for rt in range(2):
                    d = ACC + (rt*NT + t)*4
                    A_ = f'v[{ab+(rt*2+kh)*4}:{ab+(rt*2+kh)*4+3}]'
                    B_ = f'v[{bb+kh*4}:{bb+kh*4+3}]'
                    C_ = '0' if (ks == 0 and kh == 0) else f'v[{d}:{d+3}]'
                    it = G.pop(0) if (n in (0, 2) and G) else None
                    if it:
                        for x in it[0]: a.e(x)
                    if QH: a.e(f'v_mfma_f32_16x16x32_bf16 v[{d}:{d+3}], {B_}, {A_}, {C_}')
                    else:  a.e(f'v_mfma_f32_16x16x32_bf16 v[{d}:{d+3}], {A_}, {B_}, {C_}')
                    if R: R[n]()
                    if it: vt.op(it[1], it[2])
                    n += 1
            emit(G)
            if 1 <= t <= 8:
                e_ = t - 1
                rt, kh, gr = e_ & 1, (e_ >> 2) & 1, (e_ >> 1) & 1
                A_ = f'v[{ab+(rt*2+kh)*4}:{ab+(rt*2+kh)*4+3}]'
                d = (GRA if gr else RSA) + 4*rt
                C_ = '0' if (ks == 0 and kh == 0) else f'a[{d}:{d+3}]'
                O_ = f'a[{ONES}:{ONES+3}]'
                if gr: a.e(f'v_mfma_f32_16x16x32_bf16 a[{d}:{d+3}], {A_}, {A_}, {C_}')
                elif QH: a.e(f'v_mfma_f32_16x16x32_bf16 a[{d}:{d+3}], {O_}, {A_}, {C_}')
                else: a.e(f'v_mfma_f32_16x16x32_bf16 a[{d}:{d+3}], {A_}, {O_}, {C_}')
            def csb():
                d = CSA + 4*(t >> 2)
                O_ = f'a[{ONES}:{ONES+3}]'
                for kh in range(2):
                    B_ = f'v[{bb+kh*4}:{bb+kh*4+3}]'
                    C_ = '0' if (ks == 0 and kh == 0) else f'a[{d}:{d+3}]'
                    if QH: a.e(f'v_mfma_f32_16x16x32_bf16 a[{d}:{d+3}], {B_}, {O_}, {C_}')
                    else:  a.e(f'v_mfma_f32_16x16x32_bf16 a[{d}:{d+3}], {O_}, {B_}, {C_}')
            skip_block(a, [f's_cmp_lg_u32 s20, {t & 3}'], csb)
        assert not L
    a.e('s_nop 7')
    if QH:
        a.e('s_mov_b32 exec_lo, 0x00010001')
        a.e('s_mov_b32 exec_hi, 0x00010001')
        for i in range(5): lt.op(f'ds_write_b128 v{CPA}, a[{CSA+4*i}:{CSA+4*i+3}] offset:{256*i}', 'w')
    else:
        a.e('s_mov_b64 exec, 0xffff')
        for i in range(3): lt.op(f'ds_write_b32 v{CPA}, a{CSA+4*i} offset:{256*i}', 'w')
    a.e('s_mov_b64 exec, -1')
    lt.drain()
    a.e('s_barrier')
    st_(11)
    if QH:
        WA = 10
        stg_setup(a, WA)
        SL = stg_items(WA, range(7), 'wA')
        emit(SL[:5]); SL = SL[5:]
        a.e('v_cmp_eq_u32 s[92:93], 1, v5')
        a.e('v_cmp_eq_u32 s[94:95], 2, v5')
        a.e('v_cmp_eq_u32 s[96:97], 3, v5')
        a.e('v_lshlrev_b32 v25, 2, v3')
        a.e('v_lshl_add_u32 v25, v4, 6, v25')
        for rt in range(2):
            diag_sel(a, 64+rt, GRA+4*rt, 68+4*rt)
            lt.op(f'ds_bpermute_b32 v{66+rt}, v25, v{64+rt}', 'bp')
            a.e(f'v_accvgpr_read_b32 v{64+rt}, a{RSA+4*rt}')
        lt.wait('bp')
        for rt in range(2):
            stat1(a, 64+rt, 66+rt, SRB+rt, SRB+2+rt, 68+rt)
            stat2(a, 64+rt, 66+rt, SRB+rt, SRB+2+rt, 68+rt, SAB+rt, SAB+2+rt)
        a.e('v_lshlrev_b32 v24, 4, v2')
        a.e(f'v_add_u32 v24, {CSL}, v24')
        CB = [32, 48]
        def rd_cb(u):
            c = CB[u & 1]
            for hi in range(2):
                lt.op(f'ds_read_b128 v[{c+8*hi}:{c+8*hi+3}], v24 offset:{64*(2*u+hi)}', f'c{u}')
                lt.op(f'ds_read_b128 v[{c+8*hi+4}:{c+8*hi+7}], v24 offset:{BIL - CSL + 64*(2*u+hi)}', f'c{u}')
        rd_cb(0)
        a.e('s_mul_i32 s36, s23, 49152')
        a.e('s_mul_i32 s37, s22, 6144')
        a.e('s_add_u32 s36, s36, s37')
        a.e('v_add_u32 v6, s36, v30')
        a.e('v_add_u32 v7, 4096, v6')
        a.e('v_add_u32 v8, 49152, v6')
        a.e('v_add_u32 v9, 53248, v6')
        a.e(f's_mov_b32 s36, {hx(f2u(C1))}')
        a.e(f's_mov_b32 s37, {hx(f2u(C1))}')
        a.e(f'v_mov_b32 v26, {hx(f2u(C2))}')
        a.e(f'v_mov_b32 v27, {hx(f2u(C2))}')
        for u in range(6):
            if u < 5: rd_cb(u+1)
            if u == 4:
                assert not SL
                vt.wait('wA')
                stg_reads(a, WA, range(7))
                lt.drain()
                st_(24)
                SL = stg_items(WA, range(7, 12), 'wB')
            lt.wait(f'c{u}')
            c = CB[u & 1]
            for rt in range(2):
                o = 64 + ((2*u+rt) % 4)*4
                for hi in range(2):
                    t = 2*u + hi
                    d = ACC + (rt*NT + t)*4
                    gelu4pk(a, d, o+2*hi, 80 + 4*hi, 36, 26, SAB, rt, c+8*hi, c+8*hi+4)
                    k_ = 4 if u >= 4 else 3
                    emit(SL[:k_]); SL = SL[k_:]
                vt.op(f'buffer_store_dwordx4 v[{o}:{o+3}], v{6 + 2*rt + (0 if u < 4 else 1)}, s[12:15], 0 offen offset:{(u%4)*1024}', 'h')
        assert not SL
        st_(12)
        CSQ = 32
        for t in range(5):
            lt.op(f'ds_read_b128 v[{CSQ+4*t}:{CSQ+4*t+3}], v24 offset:{768+64*t}', 'cq')
        a.e(f's_mov_b32 s36, {hx(f2u(LOG2E))}')
        a.e(f'v_mov_b32 v26, {hx(f2u(1e-6))}')
        lt.drain()
        a.e('s_bitcmp1_b32 s22, 0')
        a.e('s_cbranch_scc1 Q_ODD')
        for par in range(2):
            if par: a.label('Q_ODD')
            miss = 10 if par == 0 else 0
            for rt in range(2):
                for t in range(5):
                    d = ACC + (rt*NT + 12 + t)*4
                    phi4(a, d, PO2+12*rt+2*(t+par), 16 + 4*(t%2), 36, 26, [SRB+rt]*4, [SRB+2+rt]*4, [CSQ+4*t+q for q in range(4)])
                a.e(f'v_mov_b32 v{PO2+12*rt+miss}, 0')
                a.e(f'v_mov_b32 v{PO2+12*rt+miss+1}, 0')
            if par == 0: a.e('s_branch Q_DONE')
        a.label('Q_DONE')
        st_(13)
        vt.wait('h')
        a.e('v_mov_b32 v24, 1')
        a.e('v_mov_b32 v25, 0')
        vt.op(f'buffer_store_dword v24, v25, s[80:83], s57 offen', 'fl')
        st_(14)
        vt.wait('wB')
        stg_reads(a, WA, range(7, 12))
        k2(a, vt, True)
    else:
        a.e('v_lshlrev_b32 v25, 2, v3')
        a.e(f'v_add_u32 v25, {CSL}, v25')
        for t in range(10):
            a.e(f'ds_read_b32 v{CSLN+t}, v25 offset:{64*t}')
        a.e(f's_mov_b32 s36, {hx(f2u(LOG2E))}')
        a.e('v_cmp_eq_u32 s[92:93], 1, v5')
        a.e('v_cmp_eq_u32 s[94:95], 2, v5')
        a.e('v_cmp_eq_u32 s[96:97], 3, v5')
        a.e('v_mul_u32_u24 v24, 80, v2')
        for rt in range(2):
            diag_sel(a, 64+rt, RSA+4*rt, 72+4*rt)
            diag_sel(a, 66+rt, GRA+4*rt, 80+4*rt)
        for rt in range(2):
            stat1(a, 64+rt, 66+rt, 68+rt, 70+rt, 72+rt)
            for q in range(4):
                a.e(f'ds_bpermute_b32 v{RA+4*rt+q}, v24, v{68+rt} offset:{4*q}')
                a.e(f'ds_bpermute_b32 v{RBr+4*rt+q}, v24, v{70+rt} offset:{4*q}')
        a.e(f'v_mov_b32 v26, {hx(f2u(1e-6))}')
        a.e('s_waitcnt lgkmcnt(0)')
        OP = 32
        for t in range(10):
            for rt in range(2):
                d = ACC + (rt*NT + t)*4
                p = OP + 4*t + rt*2
                if t < 5:
                    phi4(a, d, p, 10 + 4*rt, 36, 26, [RA+4*rt+q for q in range(4)], [RBr+4*rt+q for q in range(4)], [CSLN+t]*4)
                else:
                    tt = 10 + 4*rt
                    for q in range(4): a.e(f'v_mul_f32 v{tt+q}, v{RBr+4*rt+q}, v{CSLN+t}')
                    for q in range(4): a.e(f'v_fma_f32 v{d+q}, v{d+q}, v{RA+4*rt+q}, v{tt+q}')
                    a.e(f'v_cvt_pk_bf16_f32 v{p}, v{d}, v{d+1}')
                    a.e(f'v_cvt_pk_bf16_f32 v{p+1}, v{d+2}, v{d+3}')
        for i in range(4):
            a.e(f'v_mov_b32 v{72+i}, 0x3f803f80')
        KA = lambda n: 104 + 4*n
        for n, (i, j) in enumerate(KV_PAIRS):
            a.e(f'v_mfma_f32_16x16x32_bf16 v[{KA(n)}:{KA(n)+3}], v[{OP+4*i}:{OP+4*i+3}], v[{OP+20+4*j}:{OP+20+4*j+3}], 0')
        for i in range(5):
            n = 13+i
            a.e(f'v_mfma_f32_16x16x32_bf16 v[{KA(n)}:{KA(n)+3}], v[{OP+4*i}:{OP+4*i+3}], v[72:75], 0')
        a.e('s_mul_i32 s37, s20, 18432')
        a.e(f'v_add_u32 v23, s37, v30')
        for n in range(18):
            a.e(f'ds_write_b128 v23, v[{KA(n)}:{KA(n)+3}] offset:{KVR_L + 1024*n}')
        a.e('s_waitcnt lgkmcnt(0)')
        a.e('s_barrier')
        st_(12)
        a.e('s_lshl_b32 s38, s20, 10')
        a.e('v_add_u32 v23, s38, v30')
        a.e('s_lshl_b32 s37, s22, 4')
        a.e('s_add_u32 s37, s37, s21')
        a.e('s_mul_i32 s37, s37, 18432')
        a.e('s_add_u32 s37, s37, s38')
        a.e('v_add_u32 v24, s37, v30')
        a.e('v_add_u32 v25, 55296, v23')
        a.e('v_add_u32 v27, 16384, v24')
        a.e('v_mov_b32 v28, 0x7fffffff')
        a.e('s_cmp_ge_u32 s20, 2')
        a.e('s_cselect_b64 vcc, -1, 0')
        a.e('v_cndmask_b32 v27, v27, v28, vcc')
        RS = [104, 120, 136, 152, 168]
        for i in range(5):
            R = RS[i]
            for wv in range(4):
                if wv < 3: a.e(f'ds_read_b128 v[{R+4*wv}:{R+3+4*wv}], v23 offset:{KVR_L + wv*18432 + i*4096}')
                else: a.e(f'ds_read_b128 v[{R+4*wv}:{R+3+4*wv}], v25 offset:{KVR_L + i*4096}')
        for i in range(5):
            R = RS[i]
            a.e(f's_waitcnt lgkmcnt({min(15,4*(4-i))})')
            for q in range(4):
                a.e(f'v_add_f32 v{R+q}, v{R+q}, v{R+4+q}')
                a.e(f'v_add_f32 v{R+8+q}, v{R+8+q}, v{R+12+q}')
                a.e(f'v_add_f32 v{R+q}, v{R+q}, v{R+8+q}')
            if i < 4:
                a.e(f's_mov_b32 s38, {4096*i}')
                vt.op(f'buffer_store_dwordx4 v[{R}:{R+3}], v24, s[16:19], s38 offen{SC}', 'kv')
            else:
                vt.op(f'buffer_store_dwordx4 v[{R}:{R+3}], v27, s[16:19], 0 offen{SC}', 'kv')
        st_(13)
        k1b_prep(a)
        WA = 226
        stg_setup(a, WA)
        vt.drain()
        a.e('s_barrier')
        def b():
            a.e('v_mov_b32 v24, 1')
            a.e('v_mov_b32 v25, 0')
            a.e(f'buffer_store_dword v24, v25, s[80:83], s57 offen{SC}')
        wave0(a, b)
        st_(14)
        vt = k1b(a, WA)
        k2(a, vt, False)

def k1b(a, WA):
    st_ = St(a)
    vt = VT(a)
    def emit(L):
        for pre, ld, tag in L:
            for x in pre: a.e(x)
            if ld: vt.op(ld, tag)
    G = 40
    PO = 208
    poll0(a, [34], '1', f'buffer_load_dword v34, v205, s[80:83], s33 offen{SC}', 4)
    st_(24)
    for rb in range(16):
        a.e(f's_mov_b32 s33, {rb*18432}')
        vt.op(f'buffer_load_dwordx4 v[{G+4*rb}:{G+4*rb+3}], v{GA}, s[16:19], s33 offen{SC}', 'g')
    emit(stg_items(WA, range(7), 'wA'))
    vt.wait('g')
    st_(25)
    for s_ in (8, 4, 2, 1):
        for rb in range(s_):
            for h in (0, 2):
                a.e(f'v_pk_add_f32 v[{G+4*rb+h}:{G+4*rb+h+1}], v[{G+4*rb+h}:{G+4*rb+h+1}], v[{G+4*(rb+s_)+h}:{G+4*(rb+s_)+h+1}]')
    for q in range(4): a.e(f'v_cvt_pk_bf16_f32 v{G+q}, v{G+q}, v{G+q}')
    for q in range(4): a.e(f'ds_write_b16 v{LA}, v{G+q} offset:{64*q}')
    a.e('s_waitcnt lgkmcnt(0)')
    a.e('s_barrier')
    QO = 40
    DOS = [80, 84, 88, 92, 96, 100]
    for dt in range(2):
        a.e(f'ds_read_b128 v[{QO+4*dt}:{QO+4*dt+3}], v204 offset:{1024*dt}')
    a.e('s_waitcnt lgkmcnt(0)')
    for k in range(3):
        for dt in range(2):
            d = DOS[2*k+dt]
            a.e(f'v_mfma_f32_16x16x32_bf16 v[{d}:{d+3}], v[{QO+4*dt}:{QO+4*dt+3}], v[{PO+4*k}:{PO+4*k+3}], 0')
    for k in range(3):
        for dt in range(2):
            d = DOS[2*k+dt]
            a.e(f'v_cvt_pk_bf16_f32 v{d}, v{d}, v{d+1}')
            a.e(f'v_cvt_pk_bf16_f32 v{d+1}, v{d+2}, v{d+3}')
            vt.op(f'buffer_store_dwordx2 v[{d}:{d+1}], v{202+dt}, s[12:15], s{92+k} offen{SC}', 'm')
    st_(26)
    vt.wait('wA')
    stg_reads(a, WA, range(7))
    vt.drain()
    a.e('s_barrier')
    def b():
        a.e('v_mov_b32 v32, 1')
        a.e('v_mov_b32 v33, 0')
        a.e(f'buffer_store_dword v32, v33, s[80:83], s58 offen{SC}')
    wave0(a, b)
    st_(27)
    a.e('s_waitcnt lgkmcnt(0)')
    emit(stg_items(WA, range(7, 12), 'wB'))
    vt.drain()
    stg_reads(a, WA, range(7, 12))
    return vt

A2 = 40
AC2 = 168
XB = 148
NS = 5
def k2_epi(a, w, tn):
    st_ = St(a)
    RR = [r for r in range(88, 148, 4)]
    a.e('s_barrier')
    for rt in range(4):
        if rt == w: continue
        for t in range(5):
            d = AC2 + (rt*5+t)*4
            off = w*20480 + (rt*5+t)*1024
            if off < 65536: a.e(f'ds_write_b128 v26, v[{d}:{d+3}] offset:{off}')
            else: a.e(f'ds_write_b128 v27, v[{d}:{d+3}] offset:{off-65536}')
    a.e('s_waitcnt lgkmcnt(0)')
    a.e('s_barrier')
    k = 0
    for ws_ in range(4):
        if ws_ == w: continue
        for t in range(5):
            off = ws_*20480 + (w*5+t)*1024
            r0 = RR[k*5+t]
            if off < 65536: a.e(f'ds_read_b128 v[{r0}:{r0+3}], v26 offset:{off}')
            else: a.e(f'ds_read_b128 v[{r0}:{r0+3}], v27 offset:{off-65536}')
        k += 1
    a.e('s_waitcnt vmcnt(0) lgkmcnt(0)')
    for t in range(5):
        d = AC2 + (w*5+t)*4
        for q in range(4):
            a.e(f'v_add_f32 v{RR[t]+q}, v{RR[t]+q}, v{RR[5+t]+q}')
            a.e(f'v_add_f32 v{d+q}, v{d+q}, v{RR[10+t]+q}')
            a.e(f'v_add_f32 v{d+q}, v{d+q}, v{RR[t]+q}')
        for hf in range(2):
            unpack(a, 32, 33, XB+2*t+hf)
            unpack(a, 34, 35, XB+10+2*t+hf)
            a.e(f'v_add_f32 v{d+2*hf}, v{d+2*hf}, v34')
            a.e(f'v_add_f32 v{d+2*hf+1}, v{d+2*hf+1}, v35')
            a.e(f'v_add_f32 v{d+2*hf}, v{d+2*hf}, v32')
            a.e(f'v_add_f32 v{d+2*hf+1}, v{d+2*hf+1}, v33')
            a.e(f'v_cvt_pk_bf16_f32 v{36+hf}, v{d+2*hf}, v{d+2*hf+1}')
        a.e(f'buffer_store_dwordx2 v[36:37], v28, s[36:39], 0 offen offset:{32*t}')
    if STAMP:
        a.e('s_waitcnt vmcnt(0)')
        st_(33); st_.dump()
    a.e('s_branch KF_END')

S_FK, S_ZN, S_FQ, S_FM, S_CQ = 1, 5, 7, 7, 10
def k2(a, vt, QH):
    st_ = St(a)
    tn = 'Q' if QH else 'V'
    st_(18)
    srd(a, 4, 76, 77, H, SZ_H)
    srd(a, 8, 76, 77, PQS, SZ_ACT)
    srd(a, 16, 76, 77, MF, SZ_MF)
    srd(a, 28, 70, 71, 0, 1280)
    srd(a, 36, 72, 73, 0, SZ_ACT)
    a.e('s_lshr_b32 s34, s60, 1')
    a.e('s_lshl_b32 s34, s34, 7')
    a.e('s_lshl_b32 s33, s20, 5')
    a.e('s_add_u32 s34, s34, s33')
    a.e('s_and_b32 s33, s60, 1')
    a.e('s_lshl_b32 s33, s33, 3')
    a.e('s_add_u32 s34, s34, s33')
    a.e('v_bfe_u32 v35, v1, 1, 1')
    a.e('v_lshlrev_b32 v35, 4, v35')
    a.e('v_and_b32 v33, 1, v1')
    a.e('v_lshl_add_u32 v35, v33, 2, v35')
    a.e('v_add_u32 v35, s34, v35')
    fhpoll = f'buffer_load_dword v33, v35, s[80:83], 0 offen{SC}'
    vt.op(fhpoll, 'fh')
    for k in range(6): a.e(f's_mov_b32 s{40+k}, {4096*(k+1)}')
    a.e(f's_mov_b32 s46, {FQ_O}')
    fqpoll = f'buffer_load_dword v33, v35, s[80:83], s46 offen{SC}'
    so = lambda k: '0' if k == 0 else f's{39+k}'
    a.e('v_lshlrev_b32 v26, 4, v1')
    a.e('v_add_u32 v27, 65536, v26')
    a.e('s_mul_i32 s33, s60, 196608')
    a.e('s_mul_i32 s32, s20, 12288')
    a.e('s_add_u32 s33, s33, s32')
    a.e('v_add_u32 v6, s33, v26')
    a.e('s_mul_i32 s33, s60, 81920')
    a.e('s_mul_i32 s32, s20, 5120')
    a.e('s_add_u32 s33, s33, s32')
    a.e('v_add_u32 v10, s33, v26')
    for rt in range(1, 4):
        a.e(f'v_add_u32 v{6+rt}, {rt*49152}, v6')
        a.e(f'v_add_u32 v{10+rt}, {rt*20480}, v10')
    a.e('s_mul_i32 s32, s61, 160')
    a.e('s_lshl_b32 s33, s60, 6')
    a.e('s_lshl_b32 s34, s20, 4')
    a.e('s_add_u32 s33, s33, s34')
    a.e('v_add_u32 v28, s33, v3')
    a.e('v_mul_u32_u24 v28, 1280, v28')
    a.e('v_lshl_add_u32 v28, v2, 3, v28')
    a.e('v_add_u32 v28, s32, v28')
    a.e('v_lshlrev_b32 v29, 3, v2')
    a.e('v_add_u32 v29, s32, v29')
    a.e('s_mul_i32 s33, s61, 102400')
    a.e('s_mul_i32 s32, s20, 25600')
    a.e('s_add_u32 s33, s33, s32')
    a.e('v_add_u32 v14, s33, v26')
    a.e('v_and_b32 v32, 7, v1')
    a.e('v_lshlrev_b32 v32, 2, v32')
    a.e('s_lshr_b32 s35, s61, 1')
    a.e('s_lshl_b32 s35, s35, 7')
    a.e('s_lshl_b32 s32, s20, 5')
    a.e('s_add_u32 s35, s35, s32')
    a.e(f's_add_u32 s35, s35, {FM_O}')
    fmpoll = f'buffer_load_dword v34, v32, s[80:83], s35 offen{SC}'
    if QH:
        srd(a, 12, 76, 77, KVP, SZ_KVP)
        a.e('v_lshlrev_b32 v21, 2, v3')
        a.e('s_lshl_b32 s56, s22, 7')
        a.e(f's_add_u32 s56, s56, {FK_O}')
        fkpoll = f'buffer_load_dword v25, v21, s[80:83], s56 offen{SC}'
        vt.op(fkpoll, 'fk')
        a.e('v_mul_u32_u24 v18, 52, v1')
        a.e('v_lshrrev_b32 v18, 10, v18')
        a.e('v_mul_u32_u24 v19, 20, v18')
        a.e('v_sub_u32 v19, v1, v19')
        a.e('v_mul_u32_u24 v16, 18432, v18')
        a.e('v_lshl_add_u32 v16, v19, 8, v16')
        a.e('s_mul_i32 s32, s22, 294912')
        a.e(f's_add_u32 s32, s32, {13*1024}')
        a.e('v_add_u32 v16, s32, v16')
        a.e('v_mov_b32 v19, 0x7fffffff')
        a.e('v_cmp_lt_u32 vcc, 2, v18')
        a.e('v_cndmask_b32 v16, v16, v19, vcc')
        a.e('v_cmp_lt_u32 vcc, 0, v18')
        a.e('v_cndmask_b32 v17, v16, v19, vcc')
        a.e('s_lshl_b32 s32, s20, 8')
        a.e(f's_add_u32 s32, s32, {ZB_L}')
        a.e('v_min_u32 v18, 20, v1')
        a.e('v_lshl_add_u32 v18, v18, 3, s32')
        a.e('v_lshl_add_u32 v15, v2, 3, s32')
        a.e('v_lshlrev_b32 v19, 2, v1')
        a.e('v_add_u32 v20, 160, v19')
        a.e('v_add_u32 v19, 80, v19')
        a.e(f'v_mov_b32 v24, {hx(f2u(1e-6))}')
        a.e('s_mul_i32 s32, s23, 20480')
        a.e('s_mul_i32 s33, s22, 5')
        a.e('s_lshr_b32 s33, s33, 1')
        a.e('s_lshl_b32 s33, s33, 10')
        a.e('s_add_u32 s32, s32, s33')
        a.e('v_add_u32 v22, s32, v26')
        a.e('v_add_u32 v23, 20480, v22')
        a.e('v_cmp_gt_u32 s[92:93], 1, v2')
        a.e('v_cmp_gt_u32 s[94:95], 2, v2')
        a.e('v_cmp_gt_u32 s[96:97], 3, v2')
    vt.wait('fh')
    poll_check(a, [33], '1', fhpoll)
    st_(19)
    def ldA(i):
        b = A2 + (i % NS)*16
        L = []
        for r in range(4):
            if i < 12:
                L.append((f'buffer_load_dwordx4 v[{b+4*r}:{b+4*r+3}], v{6+r}, s[4:7], {so(i//4)} offen offset:{(i%4)*1024}{SC}', f'a{i}'))
            else:
                j = i - 12
                L.append((f'buffer_load_dwordx4 v[{b+4*r}:{b+4*r+3}], v{10+r}, s[8:11], {so(j//4)} offen offset:{(j%4)*1024}{SC}', f'a{i}'))
        return L
    def ldM(i):
        L = []
        for t in range(5):
            j = i*5+t
            L.append((f'buffer_load_dwordx4 a[{4*j}:{4*j+3}], v14, s[16:19], {so(j//4)} offen offset:{(j%4)*1024}{SC}', f'm{12+i}'))
        return L
    for i in range(NS):
        for x in ldA(i): vt.op(*x)
    a.e('s_waitcnt lgkmcnt(0)')
    L = []
    for i in range(17):
        vt.wait(f'a{i}', f'm{i}')
        if i == 0: st_(20)
        if i == 12: st_(22)
        if QH and i == S_FK:
            vt.wait('fk')
            poll_check(a, [25], '1', fkpoll)
            st_(29)
            for j in range(6):
                a.e(f's_mov_b32 s32, {j*55296}')
                vt.op(f'buffer_load_dwordx4 v[{ZR+4*j}:{ZR+4*j+3}], v{16 if j < 5 else 17}, s[12:15], s32 offen{SC}', 'z')
        if QH and i == S_ZN:
            vt.wait('z')
            st_(25)
            for s_, d_ in ((3,0),(4,1),(5,2),(1,0),(2,0)):
                for h in (0, 2):
                    a.e(f'v_pk_add_f32 v[{ZR+4*d_+h}:{ZR+4*d_+h+1}], v[{ZR+4*d_+h}:{ZR+4*d_+h+1}], v[{ZR+4*s_+h}:{ZR+4*s_+h+1}]')
            for q in range(4):
                a.e(f'ds_bpermute_b32 v{ZR+4+q}, v19, v{ZR+q}')
                a.e(f'ds_bpermute_b32 v{ZR+8+q}, v20, v{ZR+q}')
            a.e('s_waitcnt lgkmcnt(0)')
            for q in range(4):
                a.e(f'v_add_f32 v{ZR+q}, v{ZR+q}, v{ZR+4+q}')
                a.e(f'v_add_f32 v{ZR+q}, v{ZR+q}, v{ZR+8+q}')
            a.e(f'v_cvt_pk_bf16_f32 v{ZR}, v{ZR}, v{ZR+1}')
            a.e(f'v_cvt_pk_bf16_f32 v{ZR+1}, v{ZR+2}, v{ZR+3}')
            a.e(f'ds_write_b64 v18, v[{ZR}:{ZR+1}]')
            if 'dbg' in X:
                srd(a, 48, 76, 77, 0x3100000, 0x1000000)
                a.e('s_lshl_b32 s32, s2, 2'); a.e('s_add_u32 s32, s32, s20'); a.e('s_lshl_b32 s32, s32, 13')
                a.e('v_lshlrev_b32 v30, 2, v1')
                for r in range(26):
                    vt.op(f'buffer_store_dword v{PO2+r}, v30, s[48:51], s32 offen offset:{256*(r%16)}', 'dbg')
                    if r == 15: a.e('s_add_u32 s32, s32, 4096')
            a.e('s_waitcnt lgkmcnt(0)')
            a.e('s_bitcmp1_b32 s22, 0')
            a.e('s_cbranch_scc1 N_ODD')
            vt0 = vt
            ZF, DN = ZR+4, ZR+16
            for par in range(2):
                vt = vt0.copy()
                if par: a.label('N_ODD')
                pos = lambda t: 2*(t + par)
                miss = 10 if par == 0 else 0
                for t in range(5):
                    a.e(f'ds_read_b64 v[{ZF+pos(t)}:{ZF+pos(t)+1}], v15 offset:{32*t}')
                a.e(f'v_mov_b32 v{ZF+miss}, 0')
                a.e(f'v_mov_b32 v{ZF+miss+1}, 0')
                a.e('s_waitcnt lgkmcnt(0)')
                for t in range(5):
                    a.e(f'v_add_u32 v30, {4*t}, v2')
                    a.e('v_mul_u32_u24 v30, 52, v30')
                    a.e('v_lshrrev_b32 v30, 8, v30')
                    a.e('v_cmp_eq_u32 vcc, v30, v5')
                    a.e(f'v_cndmask_b32 v{ZF+pos(t)}, 0, v{ZF+pos(t)}, vcc')
                    a.e(f'v_cndmask_b32 v{ZF+pos(t)+1}, 0, v{ZF+pos(t)+1}, vcc')
                for rt in range(2):
                    for u in range(3):
                        C_ = '0' if u == 0 else f'v[{DN+4*rt}:{DN+4*rt+3}]'
                        a.e(f'v_mfma_f32_16x16x32_bf16 v[{DN+4*rt}:{DN+4*rt+3}], v[{ZF+4*u}:{ZF+4*u+3}], v[{PO2+12*rt+4*u}:{PO2+12*rt+4*u+3}], {C_}')
                for rt in range(2):
                    D = DN + 4*rt
                    for q in range(4): a.e(f'v_cvt_pk_bf16_f32 v{D+q}, v{D+q}, v{D+q}')
                    for q in range(4): a.e(f'v_lshlrev_b32 v{D+q}, 16, v{D+q}')
                    for q in range(4): a.e(f'v_add_f32 v{D+q}, v24, v{D+q}')
                    for q in range(4): a.e(f'v_cvt_pk_bf16_f32 v{D+q}, v{D+q}, v{D+q}')
                    for q in range(4): a.e(f'v_lshlrev_b32 v{D+q}, 16, v{D+q}')
                    for q in range(4): a.e(f'v_rcp_f32 v{D+q}, v{D+q}')
                    a.e(f'v_cndmask_b32 v30, v{D+1}, v{D}, s[92:93]')
                    a.e(f'v_cndmask_b32 v31, v{D+2}, v{D+1}, s[94:95]')
                    a.e(f'v_cndmask_b32 v38, v{D+3}, v{D+2}, s[96:97]')
                    sel = [D, 30, 31, 38, D+3]
                    for t in range(5):
                        p = PO2 + 12*rt + pos(t)
                        tt = 248 + 4*(t % 2) if not STAMP else (248 if t % 2 == 0 else ZR)
                        unpack(a, tt, tt+1, p)
                        unpack(a, tt+2, tt+3, p+1)
                        for q in range(4): a.e(f'v_mul_f32 v{tt+q}, v{tt+q}, v{sel[t]}')
                        a.e(f'v_cvt_pk_bf16_f32 v{p}, v{tt}, v{tt+1}')
                        a.e(f'v_cvt_pk_bf16_f32 v{p+1}, v{tt+2}, v{tt+3}')
                    for u in range(3):
                        o = PO2 + 12*rt + 4*u
                        if 4*u <= miss < 4*u + 4:
                            hi = 1 if par else 0
                            vt.op(f'buffer_store_dwordx2 v[{o+2*hi}:{o+2*hi+1}], v{22+rt}, s[8:11], 0 offen offset:{1024*u+8*hi}', 'pq')
                        else:
                            vt.op(f'buffer_store_dwordx4 v[{o}:{o+3}], v{22+rt}, s[8:11], 0 offen offset:{1024*u}', 'pq')
                if par == 0: a.e('s_branch N_DONE')
            a.label('N_DONE')
            a.e('s_nop 7')
            st_(26)
        if QH and i == S_FQ:
            vt.wait('pq')
            a.e('v_mov_b32 v30, 1')
            a.e('v_mov_b32 v31, 0')
            vt.op(f'buffer_store_dword v30, v31, s[80:83], s58 offen', 'fl')
            st_(27)
        if i == S_FM-2: L.append((fmpoll, 'fm'))
        if i == S_FM:
            vt.wait('fm')
            poll_check(a, [34], '1', fmpoll)
            st_(28)
            for k in range(5): L += ldM(k)
        if i == S_CQ-1: L.insert(0, (fqpoll, 'fq'))
        if i == S_CQ:
            vt.wait('fq')
            poll_check(a, [33], '1', fqpoll)
            st_(17 if False else 21)
            for j in range(12, i+NS): L = ldA(j) + L
        if i == 11:
            for t in range(5):
                L.append((f'buffer_load_dwordx2 v[{XB+2*t}:{XB+2*t+1}], v28, s[88:91], 0 offen offset:{32*t}', 'x'))
                L.append((f'buffer_load_dwordx2 v[{XB+10+2*t}:{XB+11+2*t}], v29, s[28:31], 0 offen offset:{32*t}', 'x'))
        b = A2 + (i % NS)*16
        bi = i if i < 12 else i - 12
        for t in range(5):
            for r in range(4):
                d = AC2 + (r*5+t)*4
                C_ = '0' if i == 0 else f'v[{d}:{d+3}]'
                a.e(f'v_mfma_f32_16x16x32_bf16 v[{d}:{d+3}], a[{(bi*5+t)*4}:{(bi*5+t)*4+3}], v[{b+4*r}:{b+4*r+3}], {C_}')
                if L: vt.op(*L.pop(0))
        if i >= 11:
            for x in L: vt.op(*x)
            L = []
        j = i + NS
        if j < 12 or (i >= S_CQ and j < 17): L = ldA(j) + L
    assert not L
    st_(32)
    a.e(f's_cmp_eq_u32 s20, 1'); a.e(f's_cbranch_scc1 K2{tn}_W1')
    a.e(f's_cmp_eq_u32 s20, 2'); a.e(f's_cbranch_scc1 K2{tn}_W2')
    a.e(f's_cmp_eq_u32 s20, 3'); a.e(f's_cbranch_scc1 K2{tn}_W3')
    for w in range(4):
        if w:
            a.label(f'K2{tn}_W{w}')
            a.e('s_nop 7'); a.e('s_nop 7')
        k2_epi(a, w, tn)

def gen_kf():
    a = Asm()
    kernel_head(a, 'kf_kernel')
    a.e('s_cmp_ge_u32 s2, 256')
    a.e('s_cbranch_scc1 KF_END')
    st_ = St(a)
    st_.real(62); st_(0)
    a.e('s_getpc_b64 s[4:5]')
    a.label('KPC')
    a.e('s_lshr_b32 s63, s2, 3')
    a.e('s_mov_b32 s6, KF_END-KPC')
    a.e('s_mov_b32 s7, 0x00020000')
    if CPF:
        a.e('s_bitcmp1_b32 s63, 4')
        a.e('s_cselect_b32 s3, K1_QH-KPC, 0')
        a.e('v_lshlrev_b32 v6, 7, v0')
        a.e('s_add_u32 s8, s3, 0x8000')
        a.e('buffer_load_dword v19, v6, s[4:7], s3 offen')
        a.e('buffer_load_dword v19, v6, s[4:7], s8 offen')
    a.e('s_load_dwordx2 s[64:65], s[0:1], 0')
    a.e('s_load_dwordx2 s[26:27], s[0:1], 8')
    a.e('s_load_dwordx2 s[66:67], s[0:1], 16')
    a.e('s_load_dwordx4 s[28:31], s[0:1], 32')
    a.e('s_load_dwordx8 s[68:75], s[0:1], 48')
    a.e('s_load_dwordx2 s[76:77], s[0:1], 80')
    a.e('s_getreg_b32 s62, hwreg(HW_REG_XCC_ID, 0, 3)')
    if BADSLOT: a.e('s_and_b32 s63, s63, 0x15')
    lane_decomp(a)
    a.e('s_lshl_b32 s59, s62, 8')
    a.e('s_waitcnt lgkmcnt(0)')
    a.e('s_mov_b64 s[24:25], s[76:77]')
    srd(a, 84, 74, 75, 0, 256)
    srd(a, 88, 64, 65, 0, SZ_ACT)
    claim_issue(a)
    srd(a, 80, 76, 77, FLG, 0x30000)
    a.label('RESTART')
    st_(16)
    a.e('s_lshl_b32 s21, s62, 1')
    a.e('s_and_b32 s3, s63, 1')
    a.e('s_add_u32 s21, s21, s3')
    a.e('s_bfe_u32 s22, s63, 0x30001')
    a.e('s_lshl_b32 s60, s62, 2')
    a.e('s_and_b32 s3, s63, 3')
    a.e('s_add_u32 s60, s60, s3')
    a.e('s_lshr_b32 s61, s63, 2')
    a.e('s_bitcmp1_b32 s63, 4')
    a.e('s_cbranch_scc1 K1_QH')
    k1_type(a, 'KV')
    a.label('K1_QH')
    k1_type(a, 'QH')
    a.label('KF_END')
    a.e('s_endpgm')
    return a

if __name__ == '__main__':
    a = gen_kf()
    out = HEADER + f'; @launch kernel=kf_kernel grid=(256,1,1) block=(256,1,1) lds={LDS_TOTAL}\n; G6\n'
    out += '.amdgcn_target "amdgcn-amd-amdhsa--gfx950"\n.text\n' + a.text()
    out += '.section .rodata,"a"\n.p2align 6\n' + desc('kf_kernel')
    open(os.environ.get('OUT', 'f8.s'), 'w').write(out)
```

```python
from g6_base import *
CPF = 'nocpf' not in X
CSK = int(os.environ.get('CSK', 1))
F0KSH, F0KSQ = eval(os.environ.get('F0KS', '(2,2)'))
FSH = 7
FK_O, FW_O, FS_O, FQ_O = 0x10000, 0x14000, 0x18000, 0x1000
FWS = int(os.environ.get('FWS', 3))
TS = int(os.environ.get('TS', 0))
TR = int(os.environ.get('TR', 2))
WLH = eval(os.environ.get('WLH', '{8:15,9:21}'))
WLQ = eval(os.environ.get('WLQ', '{8:18,9:18}'))
WEH = int(os.environ.get('WEH', 1))
WEQ = int(os.environ.get('WEQ', 3))
WF, SZ_WF = 0x1500000, 8*68*5120
PL = os.environ.get('PL', 'sp,cp,g,w').split(',')
SD = lambda k: '' if k in PL else SC
PRO = int(os.environ.get('PRO', 13))
NOROT = 'norot' in X
F0CH, F0CQ = eval(os.environ.get('F0C', '(7,7)'))
SLP = int(os.environ.get('SLP', 12))
GSL = int(os.environ.get('GSL', 2))
CPT = eval(os.environ.get('CPT', '(0.7,0.7)'))
OSC = os.environ.get('OSC', '')
SCQ = eval(os.environ.get('SCQ', '(12,7)'))
WOS = int(os.environ.get('WOS', 3))
BSC = os.environ.get('BSC', '')
ASC = os.environ.get('ASC', '')
PS = 6784
SZ_KV2 = 128*PS
BST = 31232
AOFF_Q, AOFF_H = 3*BST, 73728
SB_H = 122880
KRS = 13824
TB = 73728

ONES, RSA, GRA = 48, 52, 60
def stat1(a, S1, S2, r, B, T):
    a.e(f'v_mul_f32 v{S1}, {hx(f2u(1.0/640))}, v{S1}')
    a.e(f'v_mul_f32 v{S2}, {hx(f2u(1.0/640))}, v{S2}')
    a.e(f'v_fma_f32 v{S2}, -v{S1}, v{S1}, v{S2}')
    a.e(f'v_max_f32 v{S2}, 0, v{S2}')
    a.e(f'v_cvt_pk_bf16_f32 v{T}, v{S1}, v{S2}')
    a.e(f'v_and_b32 v{r}, 0xffff0000, v{T}')
    a.e(f'v_lshlrev_b32 v{T}, 16, v{T}')
    a.e(f'v_add_f32 v{r}, {hx(f2u(1e-5))}, v{r}')
    rnd1(a, r)
    a.e(f'v_sqrt_f32 v{r}, v{r}')
    rnd1(a, r)
    a.e(f'v_rcp_f32 v{r}, v{r}')
    a.e(f'v_mul_f32 v{B}, -v{T}, v{r}')
def stat2(a, S1, S2, r, B, T, va, vb):
    a.e(f'v_sub_f32 v{S1}, v{S1}, v{T}')
    a.e(f'v_mul_f32 v{S1}, v{S1}, v{r}')
    a.e(f'v_mul_f32 v{S2}, v{S2}, v{r}')
    a.e(f'v_mul_f32 v{S2}, v{S2}, v{r}')
    a.e(f'v_cvt_pk_bf16_f32 v{T}, v{S1}, v{S2}')
    a.e(f'v_and_b32 v{S2}, 0xffff0000, v{T}')
    a.e(f'v_lshlrev_b32 v{T}, 16, v{T}')
    a.e(f'v_add_f32 v{S2}, {hx(f2u(1e-5))}, v{S2}')
    rnd1(a, S2)
    a.e(f'v_sqrt_f32 v{S2}, v{S2}')
    rnd1(a, S2)
    a.e(f'v_rcp_f32 v{S2}, v{S2}')
    a.e(f'v_sub_f32 v{T}, v{B}, v{T}')
    a.e(f'v_mul_f32 v{va}, v{r}, v{S2}')
    a.e(f'v_mul_f32 v{vb}, v{T}, v{S2}')

def P(r): return f'v[{r}:{r+1}]'
def phi_tail(a, d, o, t, sL, vE):
    for h in (0, 2): a.e(f'v_pk_mul_f32 {P(t+h)}, {P(d+h)}, s[{sL}:{sL+1}]')
    for q in range(4): a.e(f'v_exp_f32 v{t+q}, v{t+q} clamp')
    for q in range(4): a.e(f'v_max_f32 v{d+q}, v{d+q}, v{vE}')
    for h in (0, 2): a.e(f'v_pk_add_f32 {P(d+h)}, {P(d+h)}, {P(t+h)}')
    a.e(f'v_cvt_pk_bf16_f32 v{o}, v{d}, v{d+1}')
    a.e(f'v_cvt_pk_bf16_f32 v{o+1}, v{d+2}, v{d+3}')
def phi_k(a, d, o, t, sL, vE, ra, rb, cs):
    c, s_ = cs & ~1, cs & 1
    for h in (0, 2): a.e(f'v_pk_fma_f32 {P(t+h)}, {P(rb+h)}, {P(c)}, {P(vE)} op_sel:[0,{s_},0] op_sel_hi:[1,{s_},1]')
    for h in (0, 2): a.e(f'v_pk_fma_f32 {P(d+h)}, {P(d+h)}, {P(ra+h)}, {P(t+h)}')
    phi_tail(a, d, o, t, sL, vE)
def lin_v(a, d, o, t, ra, rb, cs):
    c, s_ = cs & ~1, cs & 1
    for h in (0, 2): a.e(f'v_pk_mul_f32 {P(t+h)}, {P(rb+h)}, {P(c)} op_sel:[0,{s_}] op_sel_hi:[1,{s_}]')
    for h in (0, 2): a.e(f'v_pk_fma_f32 {P(d+h)}, {P(d+h)}, {P(ra+h)}, {P(t+h)}')
    a.e(f'v_cvt_pk_bf16_f32 v{o}, v{d}, v{d+1}')
    a.e(f'v_cvt_pk_bf16_f32 v{o+1}, v{d+2}, v{d+3}')
def phi_q(a, d, o, t, sL, vE, srb, rt, cs):
    for h in (0, 2): a.e(f'v_pk_fma_f32 {P(t+h)}, {P(cs+h)}, {P(srb+2)}, {P(vE)} op_sel:[0,{rt},0] op_sel_hi:[1,{rt},1]')
    for h in (0, 2): a.e(f'v_pk_fma_f32 {P(d+h)}, {P(d+h)}, {P(srb)}, {P(t+h)} op_sel:[0,{rt},0] op_sel_hi:[1,{rt},1]')
    phi_tail(a, d, o, t, sL, vE)

PO2 = 120
CSA = 68
CS2_O, ST2_O, FLG_SZ = 0x20000, 0x58000, 0x80000
class VT(VT):
    def mark(self, tag): self.q.append('@' + tag)
    def wait(self, *tags):
        last = -1
        for i, t in enumerate(self.q):
            if t.lstrip('@') in tags: last = i
        if last < 0: return
        rest = self.q[last+1:]
        n = sum(1 for t in rest if not t.startswith('@'))
        self.a.e(f's_waitcnt {self.CNT}({min(n, self.MX)})')
        assert n <= self.MX
        self.q = rest
def skip_block(a, pre, body):
    lb = newlab('SK')
    for x in pre: a.e(x)
    a.e(f's_cbranch_scc1 {lb}')
    mark = a.hist[-1]
    body()
    i = len(a.hist) - 1
    while i >= 0 and a.hist[i] is not mark:
        a.hist[i].states = 0; i -= 1
    a.lines.append(lb + ':')
def udiv(a, q, r, x, n):
    m = (1 << 20)//n + 1
    a.e(f'v_mul_u32_u24 v{q}, {m}, v{x}')
    a.e(f'v_lshrrev_b32 v{q}, 20, v{q}')
    a.e(f'v_mul_u32_u24 v{r}, {n}, v{q}')
    a.e(f'v_sub_u32 v{r}, v{x}, v{r}')
def k1_type(a, typ):
    st_ = St(a)
    vt = VT(a); lt = LT(a)
    QH = typ == 'H'
    NT = 12 if QH else 15
    F0C = F0CH if QH else F0CQ
    F0KS = F0KSH if QH else F0KSQ
    AOFF = AOFF_H if QH else AOFF_Q
    WL = WLH if QH else WLQ
    W0 = min(WL)
    def emit(L):
        for pre, ld, tag in L:
            for x in pre: a.e(x) if isinstance(x, str) else x()
            if ld: vt.op(ld, tag)
    st_(34)
    if QH:
        srd(a, 40, 28, 29, 0, 640*1536*2)
        srd(a, 16, 30, 31, 0, 1536*2)
    else:
        srd(a, 8, 26, 27, 0, 640*1920*2)
        srd(a, 16, 24, 25, KVP, SZ_KV2)
    a.e('s_lshl_b32 s23, s21, 3')
    a.e('s_lshl_b32 s36, s20, 1')
    a.e('s_add_u32 s23, s23, s36')
    a.e('s_mul_i32 s36, s23, 20480')
    a.e('v_lshrrev_b32 v24, 3, v1')
    a.e('v_mul_u32_u24 v25, 1280, v24')
    a.e('v_add_u32 v25, s36, v25')
    a.e('v_and_b32 v26, 7, v1')
    a.e('v_xor_b32 v26, v26, v2')
    a.e('v_lshl_add_u32 v6, v26, 4, v25')
    a.e('v_xor_b32 v26, 4, v26')
    a.e('v_lshl_add_u32 v7, v26, 4, v25')
    a.e(f'v_add_u32 v9, {24*1280 - 3072}, v7')
    a.e(f'v_add_u32 v7, {8*1280 - 1024}, v7')
    a.e(f'v_add_u32 v8, {16*1280 - 2048}, v6')
    a.e('s_lshl_b32 s47, s20, 12')
    a.e(f's_add_u32 s47, s47, {AOFF}')
    a.e(f's_add_u32 s32, s21, s22')
    if QH: a.e('s_add_u32 s32, s32, 8')
    for lim in (20, 10):
        a.e(f's_cmp_ge_u32 s32, {lim}')
        a.e(f's_cselect_b32 s36, {lim}, 0')
        a.e('s_sub_u32 s32, s32, s36')
    if NOROT: a.e('s_mov_b32 s32, 0')
    a.e(f's_mul_i32 s49, s22, 12800')
    a.e(f's_add_u32 s49, s49, {CS2_O + (102400 if QH else 0)}')
    a.e(f's_mul_i32 s50, s21, 10240')
    a.e(f's_add_u32 s50, s50, {ST2_O}')
    a.e('s_mul_i32 s45, s32, 1280')
    a.e('s_add_u32 s45, s45, s49')
    a.e('s_lshl_b32 s46, s32, 10')
    a.e('s_add_u32 s46, s46, s50')
    a.e('s_lshl_b32 s32, s32, 7')
    ADV = ['s_add_u32 s32, s32, 128', 's_cmpk_eq_u32 s32, 1280', 's_cselect_b32 s32, 0, s32']
    def issue_A(ks):
        st = ks % 3
        return [((ADV if ks else []) + [f's_add_u32 m0, s47, {st*16384}'] if i == 0 else [],
                 f'buffer_load_dwordx4 v{6+i}, s[88:91], s32 offen offset:{1024*i}{ASC} lds', f'r{ks}') for i in range(4)]
    st_(35)
    emit(issue_A(0))
    st_(36)
    BO = 10
    if QH:
        NB = 6
        a.e('s_mul_i32 s35, s22, 384')
        a.e(f's_mul_i32 s36, s20, {6*64}')
        a.e(f's_mul_i32 s34, s20, {6*1024}')
        def issue_B1(ks, i):
            st = ks % 3
            pre = ['s_mul_i32 s33, s32, 1536', f's_add_u32 m0, s34, {st*24576}'] if i == 0 else []
            if i == 4: pre = [f's_add_u32 m0, s34, {st*24576 + 4096}']
            return (pre, f'buffer_load_dwordx4 v{BO+i}, s[40:43], s33 offen offset:{1024*(i%4)} lds', f'r{ks}')
        for i in range(6):
            a.e(f'v_add_u32 v24, s36, v1')
            if i: a.e(f'v_add_u32 v24, {64*i}, v24')
            a.e(f'v_mul_u32_u24 v25, 43691, v24')
            a.e('v_lshrrev_b32 v25, 20, v25')
            a.e(f'v_mul_u32_u24 v26, 24, v25')
            a.e('v_sub_u32 v26, v24, v26')
            slot_k(a, 27, 25, 28)
            a.e(f'v_mul_u32_u24 v{BO+i}, 3072, v27')
            a.e('v_bfe_u32 v28, v25, 1, 2')
            a.e('v_lshlrev_b32 v28, 1, v28')
            a.e('v_xor_b32 v26, v26, v28')
            a.e(f'v_lshl_add_u32 v{BO+i}, v26, 4, v{BO+i}')
            a.e(f'v_add_u32 v{BO+i}, s35, v{BO+i}')
            if i % 4: a.e(f'v_subrev_u32 v{BO+i}, {1024*(i%4)}, v{BO+i}')
            emit([issue_B1(0, i)])
    else:
        NB = 8
        a.e('s_mul_i32 s34, s20, 7680')
        def issue_B1(ks, i):
            st = ks % 3
            pre = ['s_mul_i32 s33, s32, 1920', f's_add_u32 m0, s34, {st*BST}'] if i == 0 else []
            if i == 4: pre = [f's_add_u32 m0, s34, {st*BST + 4096}']
            return (pre, f'buffer_load_dwordx4 v{BO+i}, s[8:11], s33 offen offset:{1024*(i%4)}{BSC} lds', f'r{ks}')
        a.e('s_mul_i32 s36, s22, 160')
        a.e('s_mul_i32 s37, s20, 480')
        for i in range(8):
            a.e(f'v_add_u32 v24, s37, v1')
            if i: a.e(f'v_add_u32 v24, {64*i}, v24')
            a.e('v_mul_u32_u24 v25, 6554, v24')
            a.e('v_lshrrev_b32 v25, 16, v25')
            a.e('v_mul_u32_u24 v26, 10, v25')
            a.e('v_sub_u32 v26, v24, v26')
            a.e('v_lshrrev_b32 v29, 6, v25')
            a.e('v_and_b32 v25, 63, v25')
            slot_k(a, 27, 25, 28)
            a.e('v_lshrrev_b32 v28, 1, v29')
            a.e('v_sub_u32 v27, v27, v28')
            a.e(f'v_mul_i32_i24 v{BO+i}, 3840, v27')
            a.e(f'v_lshl_add_u32 v{BO+i}, v26, 4, v{BO+i}')
            a.e('v_mul_u32_u24 v29, 2560, v29')
            a.e(f'v_add3_u32 v{BO+i}, s36, v{BO+i}, v29')
            if i % 4: a.e(f'v_subrev_u32 v{BO+i}, {1024*(i%4)}, v{BO+i}')
            if i == 7:
                a.e('v_mov_b32 v25, 0x7f000000')
                a.e('v_cmp_lt_u32 vcc, 1919, v24')
                a.e(f'v_cndmask_b32 v{BO+i}, v{BO+i}, v25, vcc')
            emit([issue_B1(0, i)])
    def issue_list(ks):
        return issue_A(ks) + [issue_B1(ks, i) for i in range(NB)]
    st_(15)
    L1 = issue_list(1)
    emit(L1[:PRO]); L1 = L1[PRO:]
    st_(37)
    if QH:
        a.e('v_min_u32 v242, 95, v0')
        a.e('v_lshlrev_b32 v242, 2, v242')
        emit([([], 'buffer_load_dword v240, v242, s[16:19], s35 offen', 'cs0')])
        a.e('v_lshlrev_b32 v24, 1, v242')
        a.e(f'v_add_u32 v241, {BIL}, v24')
    a.e('v_mov_b32 v96, 0x3f803f80')
    for q in range(4): a.e(f'v_accvgpr_write_b32 a{ONES+q}, v96')
    st_(17)
    a.e('s_lshl_b32 s57, s21, 7')
    a.e('s_lshl_b32 s36, s22, 4')
    a.e('s_add_u32 s57, s57, s36')
    a.e('s_lshl_b32 s36, s20, 2')
    a.e('s_add_u32 s57, s57, s36')
    if QH:
        a.e(f's_lshl_b32 s58, s2, {FSH}')
        a.e(f's_add_u32 s58, s58, {FW_O - (128 << FSH)}')
    else:
        a.e(f's_add_u32 s57, s57, {FQ_O}')
        a.e(f's_lshl_b32 s58, s22, {FSH+4}')
        a.e(f's_lshl_b32 s36, s21, {FSH}')
        a.e('s_add_u32 s58, s58, s36')
        a.e(f's_add_u32 s58, s58, {FK_O}')
    a.e('v_lshrrev_b32 v24, 1, v2')
    a.e('v_lshlrev_b32 v24, 4, v24')
    a.e('v_and_b32 v25, 1, v2')
    a.e('v_lshl_add_u32 v24, v25, 2, v24')
    a.e('v_add_u32 v24, v24, v4')
    if QH:
        a.e(f'v_mul_u32_u24 v24, 384, v24')
        a.e('v_lshl_add_u32 v24, v5, 3, v24')
        a.e('v_lshrrev_b32 v26, 1, v4')
        a.e('v_lshl_or_b32 v25, v25, 1, v26')
        for m in range(4):
            a.e(f'v_xor_b32 v26, {m}, v25')
            a.e(f'v_subrev_u32 v26, {m}, v26')
            a.e(f'v_lshl_add_u32 v{96+m}, v26, 5, v24')
    else:
        a.e('v_mul_u32_u24 v28, 160, v24')
        a.e('v_lshl_add_u32 v28, v5, 3, v28')
        a.e(f'v_add_u32 v96, {2*BST}, v28')
    a.e('v_lshrrev_b32 v24, 1, v3')
    a.e('v_xor_b32 v24, v24, v2')
    a.e('v_lshlrev_b32 v24, 4, v24')
    a.e('v_lshl_add_u32 v24, v3, 7, v24')
    a.e('v_add_u32 v22, s47, v24')
    a.e('v_xor_b32 v24, 64, v24')
    a.e('v_add_u32 v23, s47, v24')
    a.e('v_lshlrev_b32 v30, 4, v1')
    TWB, TWD = 200, 212
    class Rec:
        def __init__(self): self.L = []
        def e(self, x): self.L.append(x)
    pre0 = Rec()
    if QH:
        b = pre0
        b.e('s_bfe_u32 s36, s2, 0x30004')
        b.e('s_bfe_u32 s37, s2, 0x20002')
        b.e('s_and_b32 s38, s2, 3')
        b.e('s_mul_i32 s39, s37, 12')
        b.e('s_mul_i32 s3, s38, 3')
        b.e('s_add_u32 s39, s39, s3')
        b.e('s_add_u32 s39, s39, s20')
        b.e('s_lshl_b32 s92, s39, 5')
        b.e('s_mul_i32 s93, s37, 160')
        b.e('s_lshl_b32 s3, s38, 5')
        b.e('s_add_u32 s93, s93, s3')
        b.e('s_cmp_eq_u32 s38, 3')
        b.e('s_cselect_b32 s3, 16, 0')
        b.e('s_sub_u32 s93, s93, s3')
        b.e('s_mul_i32 s94, s37, 5')
        b.e('s_add_u32 s94, s94, s38')
        b.e('s_add_u32 s94, s94, 48')
        b.e('s_cmp_eq_u32 s38, 2')
        b.e(f's_cselect_b32 s95, {64*1280}, 0')
        b.e('s_cmp_eq_u32 s38, 0')
        b.e('s_mov_b32 s3, 0x7f000000')
        b.e(f's_cselect_b32 s96, {112*1280}, s3')
        b.e(f's_cselect_b32 s97, {4*5120}, s3')
        b.e('s_cmp_eq_u32 s20, 3')
        b.e('s_cselect_b32 s92, s93, s92')
        b.e('s_cselect_b32 s39, s94, s39')
        b.e('s_cselect_b32 s95, s95, 0')
        b.e('s_cselect_b32 s96, s96, 0x7f000000')
        b.e('s_cselect_b32 s97, s97, 0x7f000000')
        b.e('s_cselect_b32 s52, s66, s68')
        b.e('s_cselect_b32 s53, s67, s69')
        b.e(f's_mov_b32 s54, {1536*640*2}')
        b.e(f's_cselect_b32 s54, {640*640*2}, s54')
        b.e('s_mov_b32 s55, 0x00020000')
        b.e(f's_mov_b32 s44, {SB_H + 5*5120}')
        b.e(f's_cselect_b32 s44, {SB_H + 4*5120}, s44')
        b.e('s_mul_i32 s92, s92, 1280')
        b.e('s_mul_i32 s3, s36, 160')
        b.e('s_add_u32 s92, s92, s3')
        b.e('s_mul_i32 s36, s36, 68')
        b.e('s_add_u32 s36, s36, s39')
        b.e('s_mul_i32 s36, s36, 5120')
        srd(b, 12, 24, 25, WF, SZ_WF)
        for i in range(5):
            unit_off(b, TWD+i, 24, i, 's92')
            if i % 4: b.e(f'v_subrev_u32 v{TWD+i}, {1024*(i%4)}, v{TWD+i}')
            if i == 2:
                b.e('v_mov_b32 v24, s95')
                b.e('v_cmp_lt_u32 vcc, 31, v1')
                b.e('v_cndmask_b32 v24, 0, v24, vcc')
                b.e(f'v_add_u32 v{TWD+i}, v24, v{TWD+i}')
            if i > 2: b.e(f'v_add_u32 v{TWD+i}, s95, v{TWD+i}')
            b.e(f'v_add_u32 v{TWD+5+i}, s96, v{TWD+i}')
        b.e('s_mul_i32 s56, s20, 5120')
        b.e(f's_add_u32 s56, s56, {SB_H}')
        b.e(f'v_lshl_add_u32 v24, v2, 2, v4')
        b.e(f'v_mul_u32_u24 v24, 160, v24')
        b.e(f'v_lshl_add_u32 v24, v5, 3, v24')
        b.e(f'v_add_u32 v{TWB}, s56, v24')
        b.e(f'v_add_u32 v{TWB+1}, s44, v24')
        b.e(f'v_add_u32 v{TWB+2}, s36, v30')
        b.e(f'v_add_u32 v{TWB+3}, 4096, v{TWB+2}')
        b.e(f'v_add_u32 v{TWB+4}, s97, v{TWB+2}')
        b.e(f'v_add_u32 v{TWB+5}, s97, v{TWB+3}')
    else:
        b = pre0
        for k in range(2):
            R = 97 + k
            if k: b.e('v_add_u32 v24, 256, v0'); b.e('v_min_u32 v24, 419, v24')
            else: b.e('v_mov_b32 v24, v0')
            udiv(b, 25, 26, 24, 21)
            udiv(b, 27, 24, 24, 105)
            b.e('v_mul_u32_u24 v27, 20, v27')
            b.e('v_add_u32 v27, v27, v26')
            b.e('v_lshrrev_b32 v24, 2, v25')
            b.e(f'v_lshrrev_b32 v{R}, 4, v27')
            b.e(f'v_lshl_add_u32 v{R}, v24, 1, v{R}')
            b.e(f'v_lshlrev_b32 v{R}, 10, v{R}')
            b.e('v_and_b32 v24, 3, v25')
            b.e(f'v_lshl_add_u32 v{R}, v24, 8, v{R}')
            b.e('v_and_b32 v27, 15, v27')
            b.e(f'v_lshl_add_u32 v{R}, v27, 4, v{R}')
            b.e('v_lshlrev_b32 v25, 4, v25')
            b.e('v_add_u32 v25, 13312, v25')
            b.e('v_cmp_eq_u32 vcc, 20, v26')
            b.e(f'v_cndmask_b32 v{R}, v{R}, v25, vcc')
    if TS == 0 and QH:
        for x in pre0.L: a.e(x)
        pre0.L = []
    st_(31)
    def rd1(ks, t, hq):
        st = ks % 3; bb = BF + ((ks*NT + t) % 4)*8
        ro = 32*(hq>>1) + 8*(hq&1)
        if QH:
            off = st*24576 + ro*384 + 32*t; base = 96 + (t % 4)
        else:
            off = (st % 2)*BST + (2 - t//5)*10240 + ro*160 + 32*(t%5); base = 96 if st == 2 else 28
        assert off < 65536
        lt.op(f'ds_read_b64_tr_b16 v[{bb+2*hq}:{bb+2*hq+1}], v{base} offset:{off}', f'b{ks}_{t}')
    def rdA(ks, i):
        rt, kh = i >> 1, i & 1
        r0 = ABUF + (ks & 1)*16 + i*4
        lt.op(f'ds_read_b128 v[{r0}:{r0+3}], v{22+kh} offset:{(ks%3)*16384 + rt*2048}', f'b{ks}_0')
    SAB, SRB = 240, 240
    RA, RBr = 224, 232
    CPA = 102
    f0poll = f'buffer_load_dword v20, v101, s[80:83], 0 offen{SC}'
    zpoll = f'buffer_load_dword v20, off, s[84:87], 0{SC}'
    CPR = list(range(6, 18, 2)) + [100, 102, 240, 242]
    CPL = 31
    SPR = list(range(244, 254, 2))
    def padd(R, i, j): return f'v_pk_add_f32 {P(R[i])}, {P(R[i])}, {P(R[j])}'
    rc = Rec()
    rc.e(lambda: vt.wait('cp'))
    for i, j in ((0,1),(2,3),(4,5),(6,7),(8,9),(0,2),(4,6),(0,8),(0,4)): rc.e(padd(CPR, i, j))
    rc.e(lambda: lt.op(f'ds_write_b64 v{CPL}, {P(CPR[0])}', 'w'))
    for i, j in ((0,1),(2,3),(0,4),(0,2)): rc.e(padd(SPR, i, j))
    for x in ('v_mov_b32 v246, v244', 'v_mov_b32 v247, v245', 'v_permlane32_swap_b32 v244, v246', 'v_permlane32_swap_b32 v245, v247',
              'v_add_f32 v248, v244, v246', 'v_add_f32 v249, v245, v247'): rc.e(x)
    stat1(rc, 248, 249, 244, 246, 250)
    if QH:
        stat2(rc, 248, 249, 244, 246, 250, 240, 242)
        for r in (240, 242): rc.e(f'v_mov_b32 v{r+1}, v{r}')
        for r in (240, 242): rc.e(f'v_permlane16_swap_b32 v{r}, v{r+1}')
    else:
        rc.e('v_lshlrev_b32 v24, 4, v2')
        for rt in range(2):
            for q in range(4):
                rc.e(lambda rt=rt, q=q: lt.op(f'ds_bpermute_b32 v{RA+4*rt+q}, v24, v244 offset:{64*rt+4*q}', 'w'))
                rc.e(lambda rt=rt, q=q: lt.op(f'ds_bpermute_b32 v{RBr+4*rt+q}, v24, v246 offset:{64*rt+4*q}', 'w'))
        for r in (240, 242):
            rc.e(f'v_mov_b32 v{r}, v{r+4}'); rc.e(f'v_mov_b32 v{r+1}, v{r+4}')
        for r in (240, 242): rc.e(f'v_permlane16_swap_b32 v{r}, v{r+1}')
    CT0 = int(NT*CPT[0 if QH else 1])
    CPER = -(-len(rc.L)//(4*(NT-CT0)))
    def cons(R_, n):
        for _ in range(n):
            if R_.L:
                x = R_.L.pop(0)
                a.e(x) if isinstance(x, str) else x()
    P0PER = -(-len(pre0.L)//(4*(NT-3)))
    WSR = 4
    W2L = [([f's_mov_b32 s51, {4096*(j//4)}'] if j % 4 == 0 else [],
            f'buffer_load_dwordx4 a[{4*j}:{4*j+3}], v29, s[{WSR}:{WSR+3}], s51 offen offset:{1024*(j%4)}{SD("w")}', 'w') for j in range(60)]
    vt.wait('r0')
    st_(23)
    a.e('s_barrier')
    st_(1)
    for i in range(4): rdA(0, i)
    for t in range(3):
        for hq in range(4): rd1(0, t, hq)
    zsignal(a)
    for ks in range(10):
        if ks == 1:
            a.e('s_lshl_b32 s36, s20, 6')
            a.e(f'v_lshl_add_u32 v{CPA}, v2, 4, s36')
            a.e('s_lshl_b32 s36, s20, 8')
            a.e(f'v_lshl_add_u32 v103, v3, 3, s36')
            for rt in range(2):
                a.e(f'v_accvgpr_read_b32 v{244+2*rt}, a{RSA+4*rt}')
                a.e(f'v_accvgpr_read_b32 v{245+2*rt}, a{GRA+4*rt}')
                for q in range(1, 4): a.e(f'v_accvgpr_read_b32 v{247+3*rt+q}, a{GRA+4*rt+q}')
            for q in range(1, 4):
                a.e(f'v_cmp_eq_u32 vcc, {q}, v5')
                for rt in range(2): a.e(f'v_cndmask_b32 v{245+2*rt}, v{245+2*rt}, v{247+3*rt+q}, vcc')
            a.e('s_mov_b32 exec_lo, 0x00010001')
            a.e('s_mov_b32 exec_hi, 0x00010001')
            for i in range((NT+3)//4):
                vt.op(f'buffer_store_dwordx4 a[{CSA+4*i}:{CSA+4*i+3}], v{CPA}, s[80:83], s45 offen offset:{256*i}{SC}', 'st')
            a.e('s_mov_b32 exec_lo, 0x00f0000f')
            a.e('s_mov_b32 exec_hi, 0xf0000f00')
            for rt in range(2):
                vt.op(f'buffer_store_dwordx2 v[{244+2*rt}:{245+2*rt}], v103, s[80:83], s46 offen offset:{128*rt}{SD("sp")}', 'st')
            a.e('s_mov_b64 exec, -1')
        L = issue_list(ks+2) if ks < 8 else []
        if ks == 0: L = L1 + L
        if QH and ks == TS:
            for rnd, sb in ((0, 56), (1, 44)):
                L += [([f's_mov_b32 m0, s{sb}'] if i == 0 else ([f's_add_u32 m0, s{sb}, 4096'] if i == 4 else []),
                       f'buffer_load_dwordx4 v{TWD+5*rnd+i}, s[52:55], 0 offen offset:{1024*(i%4)} lds', 'tw') for i in range(5)]
        if QH and ks == TR:
            def twr(rnd):
                for t in range(5):
                    for hq in range(2):
                        r = TWD+20*rnd+4*t+2*hq
                        lt.op(f'ds_read_b64_tr_b16 {P(r)}, v{TWB+rnd} offset:{32*t + 2560*hq}', f'tw{rnd}')
            twr(0)
            for rnd in range(2):
                L += [(([lambda: twr(1)] if (rnd, t) == (0, 0) else []) + [lambda rnd=rnd: lt.wait(f'tw{rnd}')],
                       f'buffer_store_dwordx4 v[{TWD+20*rnd+4*t}:{TWD+20*rnd+4*t+3}], v{TWB+2+2*rnd+t//4}, s[12:15], 0 offen offset:{1024*(t%4)}{SC}', 'st2') for t in range(5)]
        if ks == F0C:
            a.e('s_lshl_b32 s36, s22, 4')
            if QH: a.e('s_add_u32 s36, s36, 128')
            a.e('v_add_u32 v101, s36, v3')
            a.e('v_lshl_add_u32 v21, v3, 4, s21')
            a.e('v_and_b32 v20, 1, v2')
            a.e('v_cmp_eq_u32 vcc, 0, v20')
            a.e('v_cndmask_b32 v101, v21, v101, vcc')
            a.e(f'v_lshlrev_b32 v101, {FSH}, v101')
            a.e(f'v_add_u32 v101, {FS_O}, v101')
            wave0(a, lambda: a.e(f0poll))
            vt.mark('f0')
        if ks == F0KS:
            wave0(a, lambda: a.e(zpoll))
            vt.mark('f0')
        if ks == 8:
            a.e(f'v_min_u32 v26, {NT*8-1}, v0')
            a.e('v_lshlrev_b32 v26, 3, v26')
            a.e(f'v_add_u32 v{CPL}, {CSL}, v26')
            a.e('v_and_b32 v27, 31, v1')
            a.e('s_lshl_b32 s36, s20, 8')
            a.e('v_lshl_add_u32 v27, v27, 3, s36')
            a.e('v_lshrrev_b32 v25, 5, v1')
            a.e('v_lshl_add_u32 v27, v25, 10, v27')
            for j in range(5):
                L.append((['s_add_u32 s50, s50, 4096'] if j in (2, 4) else [],
                    f'buffer_load_dwordx2 {P(SPR[j])}, v27, s[80:83], s50 offen offset:{2048*(j&1)}{SD("sp")}', 'sp'))
            for j in range(10):
                L.append((['s_add_u32 s49, s49, 5120'] if j in (4, 8) else [],
                    f'buffer_load_dwordx2 {P(CPR[j])}, v26, s[80:83], s49 offen offset:{1280*(j&3)}{SD("cp")}', 'cp'))
            assert F0C <= 7
        if ks == W0:
            srd(a, WSR, 76, 77, WF, SZ_WF)
            a.e('s_mul_i32 s36, s61, 348160')
            a.e('s_mul_i32 s37, s20, 61440')
            a.e('s_add_u32 s36, s36, s37')
            a.e('v_add_u32 v29, s36, v30')
            assert W0 > F0KS
            a.e(f'v_lshlrev_b32 v19, {FSH}, v5')
            a.e(f's_lshl_b32 s48, s61, {FSH+4}')
            a.e(f's_lshl_b32 s36, s20, {FSH+2}')
            a.e('s_add_u32 s48, s48, s36')
            a.e(f's_add_u32 s48, s48, {FW_O}')
            fwpoll = f'buffer_load_dword v18, v19, s[80:83], s48 offen{SC}'
            L.insert(0, ([], fwpoll, 'fw'))
            W2L[0][0].insert(0, lambda: (vt.wait('fw'), poll_check(a, [18], FWV, fwpoll)))
        if ks in WL:
            n_ = WL[ks]
            L += W2L[:n_]; del W2L[:n_]
        ab = ABUF + (ks & 1)*16
        NI = NT - 2
        per = -(-len(L)//NI) if L else 0
        for t in range(NT):
            R = []
            if t + 3 < NT: R = [(lambda hq=hq: rd1(ks, t+3, hq)) for hq in range(4)]
            if t == NT-2 and ks < 9:
                if ks == CSK and QH:
                    vt.wait('cs0')
                    unpack(a, 242, 243, 240)
                    a.e('ds_write_b64 v241, v[242:243]')
                lt.drain()
                tags = [f'r{ks+1}']
                if ks in (F0C, F0KS): tags.append('f0')
                if ks == F0KS: tags.append('st')
                if ks == TR-1: tags.append('tw')
                if ks == FWS: tags.append('st2')
                vt.wait(*tags)
                if ks in (F0C, F0KS):
                    def b():
                        Lp = newlab('PL'); D = newlab('PD')
                        a.e('s_mov_b32 s98, 0')
                        a.label(Lp)
                        a.e(f'v_cmp_ne_u32 vcc, {1 if ks == F0C else "0x01010101"}, v20')
                        a.e(f's_cbranch_vccz {D}')
                        a.e('s_add_u32 s98, s98, 1')
                        a.e('s_cmp_ge_u32 s98, 0x40000')
                        a.e(f's_cbranch_scc1 {D}')
                        a.e(f's_sleep {SLP}')
                        a.e(f0poll if ks == F0C else zpoll)
                        a.e('s_waitcnt vmcnt(0)')
                        a.e(f's_branch {Lp}')
                        a.label(D)
                    wave0(a, b)
                a.e('s_barrier')
                st_(2+ks)
                if ks == F0KS:
                    def b():
                        a.e('s_lshl_b32 s36, s22, 4')
                        a.e('s_add_u32 s36, s36, s21')
                        a.e(f's_lshl_b32 s36, s36, {FSH}')
                        a.e(f's_add_u32 s36, s36, {FS_O + ((128 << FSH) if QH else 0)}')
                        a.e('v_mov_b32 v24, 1')
                        a.e('s_mov_b64 exec, 1')
                        a.e(f'buffer_store_dword v24, off, s[80:83], s36{SC}')
                        a.e('s_mov_b64 exec, -1')
                    wave0(a, b)
                assert FWS >= F0KS
                if ks == FWS and QH:
                    def b():
                        a.e('v_mov_b32 v24, 1')
                        a.e('s_mov_b64 exec, 1')
                        a.e(f'buffer_store_dword v24, off, s[80:83], s58{SC}')
                        a.e('s_mov_b64 exec, -1')
                    wave0(a, b)
                R = [(lambda i=i: (rdA(ks+1, i), rd1(ks+1, 0, i))) for i in range(4)]
            elif t == NT-1 and ks < 9:
                R = [(lambda i=i: (rd1(ks+1, 1, i), rd1(ks+1, 2, i))) for i in range(4)]
            lt.wait(f'b{ks}_{t}')
            bb = BF + ((ks*NT + t) % 4)*8
            G = [L.pop(0) for _ in range(per) if L]
            n = 0
            for kh in range(2):
                for rt in range(2):
                    d = ACC + (rt*NT + t)*4
                    A_ = f'v[{ab+(rt*2+kh)*4}:{ab+(rt*2+kh)*4+3}]'
                    B_ = f'v[{bb+kh*4}:{bb+kh*4+3}]'
                    C_ = '0' if (ks == 0 and kh == 0) else f'v[{d}:{d+3}]'
                    it = G.pop(0) if (n in (0, 2) and G) else None
                    if it:
                        for x in it[0]: a.e(x) if isinstance(x, str) else x()
                    if QH or t >= 10: a.e(f'v_mfma_f32_16x16x32_bf16 v[{d}:{d+3}], {B_}, {A_}, {C_}')
                    else:  a.e(f'v_mfma_f32_16x16x32_bf16 v[{d}:{d+3}], {A_}, {B_}, {C_}')
                    if R: R[n]()
                    if it: vt.op(it[1], it[2])
                    if ks == 9 and t >= CT0: cons(rc, CPER)
                    if ks == (0 if QH else 3): cons(pre0, P0PER)
                    n += 1
            emit(G)
            if 1 <= t <= 8 and ks == 0:
                e_ = t - 1
                rt, kh, gr = e_ & 1, (e_ >> 2) & 1, (e_ >> 1) & 1
                A_ = f'v[{ab+(rt*2+kh)*4}:{ab+(rt*2+kh)*4+3}]'
                d = (GRA if gr else RSA) + 4*rt
                C_ = '0' if (ks == 0 and kh == 0) else f'a[{d}:{d+3}]'
                O_ = f'a[{ONES}:{ONES+3}]'
                if gr: a.e(f'v_mfma_f32_16x16x32_bf16 a[{d}:{d+3}], {A_}, {A_}, {C_}')
                else: a.e(f'v_mfma_f32_16x16x32_bf16 a[{d}:{d+3}], {O_}, {A_}, {C_}')
            def csb():
                d = CSA + 4*(t >> 2)
                O_ = f'a[{ONES}:{ONES+3}]'
                for kh in range(2):
                    B_ = f'v[{bb+kh*4}:{bb+kh*4+3}]'
                    C_ = '0' if (ks == 0 and kh == 0) else f'a[{d}:{d+3}]'
                    a.e(f'v_mfma_f32_16x16x32_bf16 a[{d}:{d+3}], {B_}, {O_}, {C_}')
            if ks == 0: skip_block(a, [f's_cmp_lg_u32 s20, {t & 3}'], csb)
        assert not L
    assert not rc.L and not pre0.L
    lt.drain()
    a.e('s_barrier')
    st_(11)
    def wl(n):
        emit(W2L[:n]); del W2L[:n]
    if QH:
        srd(a, 12, 24, 25, H, SZ_H)
        a.e('v_lshlrev_b32 v24, 4, v2')
        a.e(f'v_add_u32 v24, {CSL}, v24')
        CB = [32, 48]
        def rd_cb(u):
            c = CB[u & 1]
            for hi in range(2):
                lt.op(f'ds_read_b128 v[{c+8*hi}:{c+8*hi+3}], v24 offset:{64*(2*u+hi)}', f'c{u}')
                lt.op(f'ds_read_b128 v[{c+8*hi+4}:{c+8*hi+7}], v24 offset:{BIL - CSL + 64*(2*u+hi)}', f'c{u}')
        rd_cb(0)
        a.e('s_mul_i32 s36, s23, 49152')
        a.e('s_mul_i32 s37, s22, 6144')
        a.e('s_add_u32 s36, s36, s37')
        a.e('v_add_u32 v6, s36, v30')
        a.e('v_add_u32 v7, 4096, v6')
        a.e('v_add_u32 v8, 49152, v6')
        a.e('v_add_u32 v9, 53248, v6')
        a.e(f's_mov_b32 s36, {hx(f2u(C1))}')
        a.e(f's_mov_b32 s37, {hx(f2u(C1))}')
        a.e(f'v_mov_b32 v26, {hx(f2u(C2))}')
        a.e(f'v_mov_b32 v27, {hx(f2u(C2))}')
        for u in range(6):
            if u < 5: rd_cb(u+1)
            if u == 4: st_(24)
            lt.wait(f'c{u}')
            c = CB[u & 1]
            for rt in range(2):
                o = 64 + ((2*u+rt) % 4)*4
                for hi in range(2):
                    t = 2*u + hi
                    d = ACC + (rt*NT + t)*4
                    gelu4pk(a, d, o+2*hi, 80 + 4*hi, 36, 26, SAB, rt, c+8*hi, c+8*hi+4)
                    wl(WEH)
                vt.op(f'buffer_store_dwordx4 v[{o}:{o+3}], v{6 + 2*rt + (0 if u < 4 else 1)}, s[12:15], 0 offen offset:{(u%4)*1024}', 'h')
        assert not W2L
        st_(12)
        k2_setup(a)
        vt.wait('h')
        a.e('v_mov_b32 v24, 1')
        a.e('v_mov_b32 v25, 0')
        vt.op(f'buffer_store_dword v24, v25, s[80:83], s57 offen', 'fl')
        st_(14)
        vt.op(FHPOLL, 'fh')
        k2_start(a, vt)
        k2_main(a, vt, True)
    else:
        CSLN, OP, VE = 76, 32, 94
        a.e('v_lshlrev_b32 v25, 2, v3')
        a.e(f'v_add_u32 v25, {CSL}, v25')
        for t in range(10):
            a.e(f'ds_read_b32 v{CSLN+t}, v25 offset:{64*t}')
        a.e(f's_mov_b32 s36, {hx(f2u(LOG2E))}')
        a.e(f's_mov_b32 s37, {hx(f2u(LOG2E))}')
        a.e(f'v_mov_b32 v{VE}, {hx(f2u(1e-6))}')
        a.e(f'v_mov_b32 v{VE+1}, {hx(f2u(1e-6))}')
        for i in range(4): a.e(f'v_mov_b32 v{72+i}, 0')
        a.e('v_lshlrev_b32 v24, 4, v0')
        a.e(f'v_add_u32 v24, {TB}, v24')
        for i in range(5): a.e(f'ds_write_b128 v24, v[72:75] offset:{4096*i}')
        a.e(f's_mul_i32 s38, s20, {KRS}')
        a.e(f'v_add_u32 v23, s38, v30')
        a.e(f'v_lshl_add_u32 v22, v2, 4, s38')
        a.e('s_waitcnt lgkmcnt(5)')
        for i in range(4): a.e(f'v_mov_b32 v{72+i}, 0x3f803f80')
        free = []; pend = []
        def flush(keep):
            while len(pend) > keep:
                n, r = pend.pop(0)
                a.e(f'ds_write_b128 v23, v[{r}:{r+3}] offset:{1024*n}')
        ZT = []
        for t in range(5):
            for rt in range(2):
                d = ACC + (rt*NT + t)*4
                phi_k(a, d, OP + 4*t + 2*rt, 86 + 4*rt, 36, VE, RA+4*rt, RBr+4*rt, CSLN+t)
                free.append(d)
                wl(WEQ)
                flush(1 - rt)
            for rt in range(2):
                d = ACC + (rt*NT + 5 + t)*4
                lin_v(a, d, OP + 20 + 4*t + 2*rt, 86 + 4*rt, RA+4*rt, RBr+4*rt, CSLN+5+t)
                free.append(d)
            for n, (i, j) in enumerate(KV_PAIRS):
                if max(i, j) == t:
                    r = free.pop(0)
                    a.e(f'v_mfma_f32_16x16x32_bf16 v[{r}:{r+3}], v[{OP+4*i}:{OP+4*i+3}], v[{OP+20+4*j}:{OP+20+4*j+3}], 0')
                    pend.append((n, r))
            r = free.pop(0); ZT.append(r)
            a.e(f'v_mfma_f32_16x16x32_bf16 v[{r}:{r+3}], v[{OP+4*t}:{OP+4*t+3}], v[72:75], 0')
        assert not W2L
        CSQ = 76
        a.e('v_lshlrev_b32 v24, 4, v2')
        a.e(f'v_add_u32 v24, {CSL}, v24')
        a.e('s_lshl_b32 s39, s22, 4')
        a.e('s_add_u32 s39, s39, s21')
        a.e(f's_mul_i32 s39, s39, {PS}')
        a.e('v_lshlrev_b32 v26, 4, v0')
        a.e('v_add_u32 v27, 4096, v26')
        a.e('v_mov_b32 v28, 0x7fff0000')
        a.e('v_cmp_lt_u32 vcc, 163, v0')
        a.e('v_cndmask_b32 v27, v27, v28, vcc')
        flush(0)
        a.e('s_mov_b32 exec_lo, 0x00010001')
        a.e('s_mov_b32 exec_hi, 0x00010001')
        for t in range(5):
            a.e(f'ds_write_b128 v22, v[{ZT[t]}:{ZT[t]+3}] offset:{13312 + 64*t}')
        a.e('s_mov_b64 exec, -1')
        a.e('s_waitcnt lgkmcnt(0)')
        a.e('s_barrier')
        st_(12)
        for k in range(2):
            for wv in range(4):
                R = 32 + 16*k + 4*wv
                a.e(f'ds_read_b128 v[{R}:{R+3}], v{97+k} offset:{wv*KRS}')
        CSQ = 64
        for t in range(5):
            a.e(f'ds_read_b128 v[{CSQ+4*t}:{CSQ+4*t+3}], v24 offset:{640+64*t}')
        for k in range(2):
            R = 32 + 16*k
            a.e(f's_waitcnt lgkmcnt({9-4*k})')
            for h in (0, 2): a.e(f'v_pk_add_f32 {P(R+h)}, {P(R+h)}, {P(R+4+h)}')
            for h in (0, 2): a.e(f'v_pk_add_f32 {P(R+8+h)}, {P(R+8+h)}, {P(R+12+h)}')
            for h in (0, 2): a.e(f'v_pk_add_f32 {P(R+h)}, {P(R+h)}, {P(R+8+h)}')
            vt.op(f'buffer_store_dwordx4 v[{R}:{R+3}], v{26+k}, s[16:19], s39 offen{SC}', 'kv')
        st_(13)
        a.e('s_waitcnt lgkmcnt(0)')
        def phq(rt, ts):
            for t in ts:
                d = ACC + (rt*NT + 10 + t)*4
                phi_q(a, d, PO2+12*rt+2*t, 86 + 4*(t%2), 36, VE, SRB, rt, CSQ+4*t)
        NPQ = int(os.environ.get('NPQ', 5))
        seq = [(rt, t) for rt in range(2) for t in range(5)]
        for rt, t in seq[:NPQ]: phq(rt, [t])
        vt.drain()
        a.e('s_barrier')
        def b():
            a.e('v_mov_b32 v24, 1')
            a.e('s_mov_b64 exec, 1')
            a.e(f'buffer_store_dword v24, off, s[80:83], s58{SC}')
            a.e('s_mov_b64 exec, -1')
        wave0(a, b)
        st_(14)
        a.e(f'v_lshlrev_b32 v15, {FSH}, v3')
        a.e(f's_lshl_b32 s52, s22, {FSH+4}')
        a.e(f's_add_u32 s52, s52, {FK_O}')
        fkpoll = f'buffer_load_dword v25, v15, s[80:83], s52 offen{SC}'
        a.e(fkpoll)
        for rt, t in seq[NPQ:]: phq(rt, [t])
        for rt in range(2):
            a.e(f'v_mov_b32 v{PO2+12*rt+10}, 0')
            a.e(f'v_mov_b32 v{PO2+12*rt+11}, 0')
        a.e(f's_mul_i32 s32, s22, {16*PS}')
        a.e('s_mul_i32 s33, s20, 1680')
        a.e('s_add_u32 s32, s32, s33')
        a.e('s_mul_i32 s33, s20, 5')
        a.e('s_mul_i32 s34, s20, 20')
        for p in range(2):
            GA, LA = 18+p, 20+p
            t0, t1, t2, t3 = 32, 33, 34, 35
            if p:
                a.e(f'v_add_u32 v{t0}, 64, v1'); a.e(f'v_min_u32 v{t0}, 119, v{t0}')
            else: a.e(f'v_mov_b32 v{t0}, v1')
            udiv(a, t1, t2, t0, 20)
            a.e(f'v_add_u32 v{t3}, s34, v{t2}')
            if p:
                a.e(f'v_cmp_lt_u32 vcc, 99, v{t0}')
                a.e(f'v_lshrrev_b32 v36, 2, v{t2}')
                a.e(f'v_cndmask_b32 v{t1}, v{t1}, v36, vcc')
                a.e(f'v_and_b32 v36, 3, v{t2}')
                a.e(f'v_lshlrev_b32 v36, 2, v36')
                a.e(f'v_add3_u32 v36, v36, s20, 64')
                a.e(f'v_add_u32 v36, 16, v36')
                a.e(f'v_cndmask_b32 v{t3}, v{t3}, v36, vcc')
                a.e(f'v_cndmask_b32 v{t2}, v{t2}, 20, vcc')
            a.e(f'v_mul_u32_u24 v{GA}, 21, v{t1}')
            a.e(f'v_add_u32 v{GA}, v{GA}, v{t2}')
            a.e(f'v_lshl_add_u32 v{GA}, v{GA}, 4, s32')
            a.e(f'v_add_u32 v{t1}, s33, v{t1}')
            a.e(f'v_lshrrev_b32 v{LA}, 4, v{t3}')
            a.e(f'v_mul_u32_u24 v{LA}, 3, v{LA}')
            a.e(f'v_lshrrev_b32 v{t0}, 3, v{t1}')
            a.e(f'v_add_u32 v{LA}, v{LA}, v{t0}')
            a.e(f'v_lshlrev_b32 v{LA}, 10, v{LA}')
            a.e(f'v_and_b32 v{t0}, 3, v{t1}')
            a.e(f'v_lshl_add_u32 v{LA}, v{t0}, 8, v{LA}')
            a.e(f'v_and_b32 v{t0}, 15, v{t3}')
            a.e(f'v_lshl_add_u32 v{LA}, v{t0}, 4, v{LA}')
            a.e(f'v_bfe_u32 v{t0}, v{t1}, 2, 1')
            a.e(f'v_lshl_add_u32 v{LA}, v{t0}, 3, v{LA}')
            a.e(f'v_add_u32 v{LA}, {TB}, v{LA}')
        srd(a, 12, 76, 77, KVP, SZ_KV2)
        k2_setup(a)
        a.e('s_mul_i32 s32, s23, 20480')
        a.e('s_lshr_b32 s33, s22, 1')
        a.e('s_mul_i32 s33, s33, 5120')
        a.e('s_add_u32 s32, s32, s33')
        a.e('v_add_u32 v22, s32, v26')
        a.e('v_add_u32 v23, 20480, v22')
        a.e(f'v_add_u32 v31, {TB}, v26')
        a.e('s_bitcmp1_b32 s22, 0')
        a.e('s_cselect_b32 s54, 3072, 0')
        a.e('s_cselect_b32 s55, 8, 0')
        a.e(f'v_mov_b32 v24, {hx(f2u(1e-6))}')
        a.e('v_cmp_gt_u32 s[92:93], 1, v2')
        a.e('v_cmp_gt_u32 s[94:95], 2, v2')
        a.e('v_cmp_gt_u32 s[96:97], 3, v2')
        TR_ = list(range(32, 120, 4)) + list(range(144, 184, 4))
        T = lambda rb, p: TR_[rb*2+p]
        st_(24)
        a.e('s_mov_b32 s49, 0')
        a.e('s_mov_b32 s98, 0')
        a.label('GL')
        a.e('s_waitcnt vmcnt(0)')
        a.e('v_cmp_eq_u32 vcc, 1, v25')
        a.e('s_nop 3')
        a.e('s_andn2_b32 s50, vcc_lo, s49')
        for g_ in range(4):
            lb = newlab('GS')
            a.e(f's_bfe_u32 s51, s50, {(4 << 16) | (4*g_)}')
            a.e('s_cmp_lg_u32 s51, 15')
            a.e(f's_cbranch_scc1 {lb}')
            a.e(f's_or_b32 s49, s49, {15 << (4*g_)}')
            for rb in range(4*g_, 4*g_+4):
                a.e(f's_mov_b32 s51, {rb*PS}')
                for p in range(2):
                    a.e(f'buffer_load_dwordx4 v[{T(rb,p)}:{T(rb,p)+3}], v{18+p}, s[12:15], s51 offen{SD("g")}')
            a.label(lb)
        a.e('s_cmp_eq_u32 s49, 0xffff')
        a.e('s_cbranch_scc1 GD')
        a.e('s_add_u32 s98, s98, 1')
        a.e('s_cmp_ge_u32 s98, 0x40000')
        a.e('s_cbranch_scc1 GD')
        if GSL: a.e(f's_sleep {GSL}')
        a.e(fkpoll)
        a.e('s_branch GL')
        a.label('GD')
        vt = VT(a)
        st_(29)
        vt.op(FHPOLL, 'fh')
        a.e('s_waitcnt vmcnt(1)')
        st_(25)
        for s_ in (8, 4, 2, 1):
            for rb in range(s_):
                for p in range(2):
                    for h in (0, 2):
                        a.e(f'v_pk_add_f32 {P(T(rb,p)+h)}, {P(T(rb,p)+h)}, {P(T(rb+s_,p)+h)}')
        for p in range(2):
            r = T(0, p)
            a.e(f'v_cvt_pk_bf16_f32 v{r}, v{r}, v{r+1}')
            a.e(f'v_cvt_pk_bf16_f32 v{r+1}, v{r+2}, v{r+3}')
            a.e(f'ds_write_b64 v{20+p}, {P(r)}')
        a.e('s_waitcnt lgkmcnt(0)')
        a.e('s_barrier')
        st_(26)
        FR = [(5,0),(5,1),(5,2),(0,0),(1,0),(1,1),(2,0),(2,1),(3,1),(3,2),(4,1),(4,2)]
        FB, OA = 144, 192
        for n, (t, u) in enumerate(FR):
            a.e(f'ds_read_b128 v[{FB+4*n}:{FB+4*n+3}], v31 offset:{(t*3+u)*1024}')
        k2_start(a, vt)
        seen = set()
        for n, (t, u) in enumerate(FR):
            a.e(f's_waitcnt lgkmcnt({11-n})')
            for rt in range(2):
                d = OA + (rt*6+t)*4
                C_ = f'v[{d}:{d+3}]' if t in seen else '0'
                a.e(f'v_mfma_f32_16x16x32_bf16 v[{d}:{d+3}], v[{FB+4*n}:{FB+4*n+3}], v[{PO2+12*rt+4*u}:{PO2+12*rt+4*u+3}], {C_}')
            seen.add(t)
            if n == 6:
                for rt in range(2):
                    D = OA + (rt*6+5)*4
                    for h in (0, 2): a.e(f'v_cvt_pk_bf16_f32 v{D+h}, v{D+h}, v{D+h+1}')
                    for h in (0, 2):
                        a.e(f'v_and_b32 v{D+h+1}, 0xffff0000, v{D+h}')
                        a.e(f'v_lshlrev_b32 v{D+h}, 16, v{D+h}')
                    for q in range(4): a.e(f'v_add_f32 v{D+q}, v24, v{D+q}')
                    for h in (0, 2): a.e(f'v_cvt_pk_bf16_f32 v{D+h}, v{D+h}, v{D+h+1}')
                    for h in (0, 2):
                        a.e(f'v_and_b32 v{D+h+1}, 0xffff0000, v{D+h}')
                        a.e(f'v_lshlrev_b32 v{D+h}, 16, v{D+h}')
                    for q in range(4): a.e(f'v_rcp_f32 v{D+q}, v{D+q}')
        for rt in range(2):
            D = OA + (rt*6+5)*4
            S = 240 + 4*rt
            a.e(f'v_cndmask_b32 v{S}, v{D+1}, v{D}, s[92:93]')
            a.e(f'v_cndmask_b32 v{S+1}, v{D+2}, v{D+1}, s[94:95]')
            a.e(f'v_cndmask_b32 v{S+2}, v{D+3}, v{D+2}, s[96:97]')
            sel = [D, S, S+1, S+2, D+3]
            for t in range(5):
                d = OA + (rt*6+t)*4
                p = PO2 + 12*rt + 2*t
                c, s_ = sel[t] & ~1, sel[t] & 1
                for h in (0, 2): a.e(f'v_pk_mul_f32 {P(d+h)}, {P(d+h)}, {P(c)} op_sel:[0,{s_}] op_sel_hi:[1,{s_}]')
                a.e(f'v_cvt_pk_bf16_f32 v{p}, v{d}, v{d+1}')
                a.e(f'v_cvt_pk_bf16_f32 v{p+1}, v{d+2}, v{d+3}')
                o = PO2 + 12*rt + 4*(t//2)
                if t in (1, 3): vt.op(f'buffer_store_dwordx4 v[{o}:{o+3}], v{22+rt}, s[8:11], s54 offen offset:{1024*(t//2)}', 'pq')
                if t == 4: vt.op(f'buffer_store_dwordx2 {P(o)}, v{22+rt}, s[8:11], s55 offen offset:2048', 'pq')
        st_(27)
        k2_main(a, vt, False)

A2 = 40
AC2 = 168
XB = 144
NS = 5
FWV = '1'
FHPOLL = f'buffer_load_dword v16, v17, s[80:83], 0 offen{SC}'
FQPOLL = f'buffer_load_dword v16, v17, s[80:83], s46 offen{SC}'
so = lambda k: '0' if k == 0 else f's{39+k}'
S_FQ = int(os.environ.get('S_FQ', 1))
def k2_epi(a):
    st_ = St(a)
    RR = lambda r, t: 40 + (t*3+r)*4
    a.e('s_waitcnt lgkmcnt(0)')
    a.e('s_barrier')
    st_(57)
    for t in range(5):
        for r in range(3):
            a.e(f'ds_read_b128 v[{RR(r,t)}:{RR(r,t)+3}], v{6+r} offset:{(r*5+t)*1024}')
    for t in range(5):
        d = AC2 + (15+t)*4
        a.e(f's_waitcnt lgkmcnt({12-3*t})')
        for h in (0, 2): a.e(f'v_pk_add_f32 {P(RR(0,t)+h)}, {P(RR(0,t)+h)}, {P(RR(1,t)+h)}')
        for h in (0, 2): a.e(f'v_pk_add_f32 {P(d+h)}, {P(d+h)}, {P(RR(2,t)+h)}')
        for h in (0, 2): a.e(f'v_pk_add_f32 {P(d+h)}, {P(d+h)}, {P(RR(0,t)+h)}')
        a.e(f'v_cvt_pk_bf16_f32 v{d}, v{d}, v{d+1}')
        a.e(f'v_cvt_pk_bf16_f32 v{d+1}, v{d+2}, v{d+3}')
        a.e(f'buffer_store_dwordx2 {P(d)}, v28, s[36:39], 0 offen offset:{32*t}{OSC}')
    if STAMP:
        st_(58)
        a.e('s_waitcnt vmcnt(0)')
        st_(33); st_.dump()
    a.e('s_branch KF_END')

def k2_setup(a):
    srd(a, 16, 76, 77, H, SZ_H)
    srd(a, 8, 76, 77, PQS, SZ_ACT)
    srd(a, 28, 70, 71, 0, 1280)
    srd(a, 36, 72, 73, 0, SZ_ACT)
    a.e('s_lshr_b32 s34, s60, 1')
    a.e('s_lshl_b32 s34, s34, 7')
    a.e('s_lshl_b32 s33, s20, 5')
    a.e('s_add_u32 s34, s34, s33')
    a.e('s_and_b32 s33, s60, 1')
    a.e('s_lshl_b32 s33, s33, 3')
    a.e('s_add_u32 s34, s34, s33')
    a.e('v_bfe_u32 v17, v1, 1, 1')
    a.e('v_lshlrev_b32 v17, 4, v17')
    a.e('v_and_b32 v16, 1, v1')
    a.e('v_lshl_add_u32 v17, v16, 2, v17')
    a.e('v_add_u32 v17, s34, v17')
    for k in range(6): a.e(f's_mov_b32 s{40+k}, {4096*(k+1)}')
    a.e(f's_mov_b32 s46, {FQ_O}')
    a.e('v_lshlrev_b32 v26, 4, v1')
    a.e('s_mul_i32 s33, s60, 196608')
    a.e('s_mul_i32 s32, s20, 12288')
    a.e('s_add_u32 s33, s33, s32')
    a.e('s_mul_i32 s34, s60, 81920')
    a.e('s_mul_i32 s32, s20, 5120')
    a.e('s_add_u32 s34, s34, s32')
    for r in range(4):
        a.e(f's_add_u32 s32, s20, {r+1}')
        a.e('s_and_b32 s32, s32, 3')
        a.e('s_mul_i32 s35, s32, 49152')
        a.e('s_add_u32 s35, s35, s33')
        a.e(f'v_add_u32 v{6+r}, s35, v26')
        a.e('s_mul_i32 s35, s32, 20480')
        a.e('s_add_u32 s35, s35, s34')
        a.e(f'v_add_u32 v{10+r}, s35, v26')
    a.e('s_lshl_b32 s32, s20, 14')
    a.e('v_add_u32 v27, s32, v26')
    a.e('s_mul_i32 s32, s61, 160')
    a.e('s_lshl_b32 s33, s60, 6')
    a.e('s_lshl_b32 s34, s20, 4')
    a.e('s_add_u32 s33, s33, s34')
    a.e('v_add_u32 v28, s33, v3')
    a.e('v_mul_u32_u24 v28, 1280, v28')
    a.e('v_lshl_add_u32 v28, v2, 3, v28')
    a.e('v_add_u32 v28, s32, v28')
    a.e('v_lshlrev_b32 v29, 3, v2')
    a.e('v_add_u32 v29, s32, v29')
    a.e('s_mul_i32 s33, s61, 348160')
    a.e('s_mul_i32 s32, s20, 25600')
    a.e('s_add_u32 s33, s33, s32')
    a.e('s_add_u32 s33, s33, 245760')
    a.e('v_add_u32 v14, s33, v26')

def ldA(i):
    b = A2 + (i % NS)*16
    L = []
    for r in range(4):
        if i < 12:
            L.append((f'buffer_load_dwordx4 v[{b+4*r}:{b+4*r+3}], v{6+r}, s[16:19], {so(i//4)} offen offset:{(i%4)*1024}{SD("h")}', f'a{i}'))
        else:
            j = i - 12
            L.append((f'buffer_load_dwordx4 v[{b+4*r}:{b+4*r+3}], v{10+r}, s[8:11], {so(j//4)} offen offset:{(j%4)*1024}{SD("h")}', f'a{i}'))
    return L
def ldM(i):
    L = []
    for t in range(5):
        j = i*5+t
        L.append((f'buffer_load_dwordx4 a[{4*j}:{4*j+3}], v14, s[4:7], {so(j//4)} offen offset:{(j%4)*1024}{SD("w")}', f'm{12+i}'))
    return L
def k2_start(a, vt):
    st_ = St(a)
    st_(18)
    vt.wait('fh')
    poll_check(a, [16], '1', FHPOLL)
    st_(19)
    for i in range(NS):
        for x in ldA(i): vt.op(*x)

def k2_main(a, vt, QH):
    st_ = St(a)
    S_CQ = SCQ[0 if QH else 1]
    L = []
    for i in range(17):
        if (not QH) and i == S_FQ:
            vt.wait('pq')
            a.e('v_mov_b32 v30, 1')
            a.e('v_mov_b32 v31, 0')
            vt.op(f'buffer_store_dword v30, v31, s[80:83], s57 offen', 'fl')
            st_(28)
        if i == 2:
            for t in range(5):
                L.append((f'buffer_load_dwordx2 {P(XB+2*t)}, v28, s[88:91], 0 offen offset:{32*t}', 'x'))
                L.append((f'buffer_load_dwordx2 {P(XB+10+2*t)}, v29, s[28:31], 0 offen offset:{32*t}', 'x'))
        if 0 <= i - WOS < 5: L += ldM(i - WOS)
        if i == S_CQ-1: L.insert(0, (FQPOLL, 'fq'))
        def addx():
            vt.wait('x')
            for t in range(5):
                d = AC2 + (15+t)*4
                for hf in range(2):
                    unpack(a, 120, 121, XB+2*t+hf)
                    unpack(a, 122, 123, XB+10+2*t+hf)
                    a.e(f'v_pk_add_f32 {P(120)}, {P(120)}, {P(122)}')
                    a.e(f'v_pk_add_f32 {P(d+2*hf)}, {P(d+2*hf)}, {P(120)}')
        if i == 12 and S_CQ == 12: addx()
        if i == S_CQ:
            vt.wait('fq')
            poll_check(a, [16], '1', FQPOLL)
            st_(21)
            LL = []
            for j in range(12, min(17, i+NS)): LL += ldA(j)
            L = LL + L
            if i == 12:
                for x in L: vt.op(*x)
                L = []
        if i == 12 and S_CQ != 12: addx()
        vt.wait(f'a{i}', f'm{i}')
        if i == 0: st_(20)
        if i == 12: st_(22)
        st_(40+i)
        b = A2 + (i % NS)*16
        bi = i if i < 12 else i - 12
        if i == 13:
            for r in range(3):
                a.e(f's_sub_u32 s32, s20, {r+1}')
                a.e('s_and_b32 s32, s32, 3')
                a.e('s_lshl_b32 s32, s32, 14')
                a.e(f'v_add_u32 v{6+r}, s32, v26')
        order = [(t, r) for t in range(5) for r in range(4)] if i < 16 else [(t, r) for r in range(4) for t in range(5)]
        for t, r in order:
            d = AC2 + (r*5+t)*4
            C_ = '0' if i == 0 else f'v[{d}:{d+3}]'
            a.e(f'v_mfma_f32_16x16x32_bf16 v[{d}:{d+3}], a[{(bi*5+t)*4}:{(bi*5+t)*4+3}], v[{b+4*r}:{b+4*r+3}], {C_}')
            if L: vt.op(*L.pop(0))
            if i == 16 and r > 0:
                a.e(f'ds_write_b128 v27, v[{d-20}:{d-17}] offset:{((r-1)*5+t)*1024}')
        if i >= 11:
            for x in L: vt.op(*x)
            L = []
        j = i + NS
        if j < 12 or (i >= S_CQ and j < 17): L = ldA(j) + L
    assert not L
    st_(32)
    k2_epi(a)

def zsignal(a):
    lb = newlab('ZS')
    a.e('s_lshl_b32 s3, s20, 2')
    a.e('s_add_u32 s3, s3, s99')
    a.e('s_cmp_ge_u32 s3, 4')
    a.e(f's_cbranch_scc1 {lb}')
    a.e('v_mov_b32 v24, 1')
    a.e('s_mov_b64 exec, 1')
    a.e('buffer_store_byte v24, off, s[84:87], s99 sc1')
    a.e('s_mov_b64 exec, -1')
    a.label(lb)
def zero_flags(a):
    lb = newlab('ZF')
    a.e('s_mov_b32 s99, s2')
    a.e('s_cmp_ge_u32 s2, 4')
    a.e(f's_cbranch_scc1 {lb}')
    a.e('s_and_b32 s3, s2, 1')
    a.e('s_lshl_b32 s3, s3, 8')
    a.e('v_add_u32 v24, s3, v0')
    a.e('s_cmp_ge_u32 s2, 2')
    a.e(f's_cselect_b32 s3, 4, {FSH}')
    a.e(f's_cselect_b32 s92, 0, {FK_O}')
    a.e('v_lshlrev_b32 v24, s3, v24')
    for q in range(4): a.e(f'v_mov_b32 v{20+q}, 0')
    a.e('buffer_store_dwordx4 v[20:23], v24, s[80:83], s92 offen sc1')
    a.label(lb)

def claim2(a):
    a.e('s_and_b32 s3, s2, 7')
    if BADSLOT:
        a.e('s_and_b32 s92, s63, 0x0a')
        a.e('s_lshl_b32 s92, s92, 3')
        a.e('s_or_b32 s3, s3, s92')
    a.e('s_cmp_eq_u32 s3, s62')
    a.e('s_cbranch_scc1 RESTART')
    a.e('s_waitcnt vmcnt(0)')
    a.e('s_barrier')
    zsignal(a)
    a.e('s_mov_b32 s99, 255')
    def b():
        zp = 'buffer_load_dword v23, off, s[84:87], 0 sc1'
        a.e(zp)
        a.e('s_waitcnt vmcnt(0)')
        poll_check(a, [23], '0x01010101', zp)
        a.e('s_lshl_b32 s96, s62, 2')
        a.e('s_add_u32 s96, s96, 128')
        a.e('v_mov_b32 v20, 1')
        a.e('s_mov_b64 exec, 1')
        a.e('buffer_atomic_add v20, off, s[84:87], s96 sc1')
        a.e('s_mov_b64 exec, -1')
        a.e('v_bfe_u32 v21, v1, 1, 4')
        a.e('v_lshlrev_b32 v21, 4, v21')
        a.e('v_and_b32 v22, 1, v1')
        a.e('v_add_u32 v21, v21, v22')
        a.e('s_lshl_b32 s92, s62, 1')
        a.e('v_add_u32 v21, s92, v21')
        a.e(f'v_lshlrev_b32 v21, {FSH}, v21')
        a.e(f'v_add_u32 v21, {FS_O}, v21')
        a.e('v_lshlrev_b32 v22, 5, v1')
        a.e('v_min_u32 v22, 64, v22')
        a.e('s_mov_b32 s98, 0')
        a.label('CL_L')
        a.e('buffer_load_dword v23, v21, s[80:83], 0 offen sc1')
        a.e('buffer_load_dword v24, v22, s[84:87], s96 offen sc1')
        a.e('s_waitcnt vmcnt(0)')
        a.e('v_cmp_eq_u32 vcc, 1, v23')
        a.e('v_readlane_b32 s94, v24, 0')
        a.e('v_readlane_b32 s95, v24, 2')
        a.e('s_nop 3')
        a.e('s_mov_b32 s92, vcc_lo')
        a.e('s_bcnt1_i32_b32 s93, s92')
        a.e('s_add_u32 s93, s93, s94')
        a.e('s_cmp_ge_u32 s93, 32')
        a.e('s_cbranch_scc1 CL_D')
        a.e('s_add_u32 s98, s98, 1')
        a.e('s_cmp_ge_u32 s98, 0x20000')
        a.e('s_cbranch_scc1 CL_D')
        a.e('s_sleep 8')
        a.e('s_branch CL_L')
        a.label('CL_D')
        a.e('s_or_b32 s92, s92, s95')
        a.e('s_add_u32 s96, s96, 64')
        a.label('CL_C')
        a.e('s_not_b32 s93, s92')
        a.e('s_cbranch_scc0 CL_E')
        a.e('s_ff1_i32_b32 s63, s93')
        a.e('s_lshl_b32 s93, 1, s63')
        a.e('v_mov_b32 v20, s93')
        a.e('s_mov_b64 exec, 1')
        a.e('buffer_atomic_or v20, off, s[84:87], s96 sc0 sc1')
        a.e('s_mov_b64 exec, -1')
        a.e('s_waitcnt vmcnt(0)')
        a.e('v_readfirstlane_b32 s94, v20')
        a.e('s_nop 3')
        a.e('s_or_b32 s92, s92, s94')
        a.e('s_and_b32 s94, s94, s93')
        a.e('s_cbranch_scc1 CL_C')
        a.label('CL_E')
        a.e('v_mov_b32 v24, s63')
        a.e(f'v_mov_b32 v25, {ROLE_L}')
        a.e('ds_write_b32 v25, v24')
        a.e('s_waitcnt lgkmcnt(0)')
    wave0(a, b)
    a.e('s_barrier')
    a.e(f'v_mov_b32 v25, {ROLE_L}')
    a.e('ds_read_b32 v24, v25')
    a.e('s_waitcnt lgkmcnt(0)')
    a.e('v_readfirstlane_b32 s63, v24')
    a.e('s_nop 3')
    a.e('s_and_b32 s63, s63, 31')
    a.e('s_lshl_b32 s2, s63, 3')
    a.e('s_add_u32 s2, s2, s62')

def gen_kf():
    a = Asm()
    kernel_head(a, 'kf_kernel')
    a.e('s_cmp_ge_u32 s2, 256')
    a.e('s_cbranch_scc1 KF_END')
    st_ = St(a)
    st_.real(62); st_(0)
    a.e('s_getpc_b64 s[4:5]')
    a.label('KPC')
    a.e('s_lshr_b32 s63, s2, 3')
    a.e('s_mov_b32 s6, KF_END-KPC')
    a.e('s_mov_b32 s7, 0x00020000')
    if CPF:
        a.e('s_bitcmp1_b32 s63, 4')
        a.e('s_cselect_b32 s3, K1_QH-KPC, 0')
        a.e('v_lshlrev_b32 v6, 7, v0')
        a.e('s_add_u32 s8, s3, 0x8000')
        a.e('buffer_load_dword v19, v6, s[4:7], s3 offen')
        a.e('buffer_load_dword v19, v6, s[4:7], s8 offen')
    a.e('s_load_dwordx2 s[64:65], s[0:1], 0')
    a.e('s_load_dwordx2 s[26:27], s[0:1], 8')
    a.e('s_load_dwordx2 s[66:67], s[0:1], 16')
    a.e('s_load_dwordx4 s[28:31], s[0:1], 32')
    a.e('s_load_dwordx8 s[68:75], s[0:1], 48')
    a.e('s_load_dwordx2 s[76:77], s[0:1], 80')
    a.e('s_getreg_b32 s62, hwreg(HW_REG_XCC_ID, 0, 3)')
    lane_decomp(a)
    a.e('s_lshl_b32 s59, s62, 8')
    a.e('s_waitcnt lgkmcnt(0)')
    a.e('s_mov_b64 s[24:25], s[76:77]')
    srd(a, 84, 74, 75, 0, 256)
    srd(a, 88, 64, 65, 0, SZ_ACT)
    srd(a, 80, 76, 77, FLG, FLG_SZ)
    zero_flags(a)
    claim2(a)
    a.label('RESTART')
    st_(16)
    a.e('s_lshl_b32 s21, s62, 1')
    a.e('s_and_b32 s3, s63, 1')
    a.e('s_add_u32 s21, s21, s3')
    a.e('s_bfe_u32 s22, s63, 0x30001')
    a.e('s_lshl_b32 s60, s62, 2')
    if 'oldcg' in X:
        a.e('s_and_b32 s3, s63, 3')
        a.e('s_add_u32 s60, s60, s3')
        a.e('s_lshr_b32 s61, s63, 2')
    else:
        a.e('s_add_u32 s60, s60, s3')
        a.e('s_lshr_b32 s3, s63, 4')
        a.e('s_lshl_b32 s3, s3, 1')
        a.e('s_add_u32 s60, s60, s3')
        a.e('s_mov_b32 s61, s22')
    a.e('s_bitcmp1_b32 s63, 4')
    a.e('s_cbranch_scc1 K1_QH')
    k1_type(a, 'Q')
    a.label('K1_QH')
    k1_type(a, 'H')
    a.label('KF_END')
    a.e('s_endpgm')
    return a

if __name__ == '__main__':
    a = gen_kf()
    out = HEADER + f'; @launch kernel=kf_kernel grid=(256,1,1) block=(256,1,1) lds={LDS_TOTAL}\n; G6\n'
    out += '.amdgcn_target "amdgcn-amd-amdhsa--gfx950"\n.text\n' + a.text()
    out += '.section .rodata,"a"\n.p2align 6\n' + desc('kf_kernel')
    open(os.environ.get('OUT', 'f9.s'), 'w').write(out)
```
